```python
import torch

def _softmax(x, axis=-1):
    return torch.softmax(x, dim=axis)
def _gelu(x):
    return torch.nn.functional.gelu(x, approximate="tanh")
def _silu(x):
    return torch.nn.functional.silu(x)
def _sigmoid(x):
    return torch.sigmoid(x)
def _layernorm(x, axis=-1, eps=1e-5):
    m = x.mean(dim=axis, keepdim=True)
    v = x.var(dim=axis, keepdim=True, unbiased=False)
    return (x - m) / torch.sqrt(v + eps)
def _scatter_add(tgt, idx, src, axis=0):
    return tgt.clone().index_add_(axis, idx, src)
def _segment_sum(src, seg, n):
    out = torch.zeros((n,) + src.shape[1:], dtype=src.dtype)
    return out.index_add_(0, seg, src)
def _pad(x, pw):
    flat = tuple(v for pair in reversed(pw) for v in pair)
    return torch.nn.functional.pad(x, flat)

kernel_name = 'interleave_layers__spectral_gfnet__glu_gated_geglu__prompt'

def setup_inputs():

    _w = (lambda a: (lambda t: t.to(torch.bfloat16) if t.is_floating_point() else t)(torch.as_tensor(a)))
    def _A_setup():
        B, S, D = 1, 2048, 512
        Df = D // 2 + 1
        return {
            "x": _w((lambda *s: torch.randn(*s, dtype=torch.bfloat16) * 0.05)(B, S, D)),
            "w_r": _w((lambda *s: torch.randn(*s, dtype=torch.bfloat16) * 0.4)(S, Df) * 0.02),
            "w_i": _w((lambda *s: torch.randn(*s, dtype=torch.bfloat16) * 0.4)(S, Df) * 0.02),
        }
    _A_in = _A_setup()

    def _B_setup():
        B, S, Dm, Df = 1, 2048, 512, 1376
        return {
            "x": _w((lambda *s: torch.randn(*s, dtype=torch.bfloat16) * 0.05)(B, S, Dm)),
            "w_gate": _w((lambda *s: torch.randn(*s, dtype=torch.bfloat16) * 0.4)(Dm, Df) * (Dm ** -0.5)),
            "w_up": _w((lambda *s: torch.randn(*s, dtype=torch.bfloat16) * 0.4)(Dm, Df) * (Dm ** -0.5)),
            "w_down": _w((lambda *s: torch.randn(*s, dtype=torch.bfloat16) * 0.4)(Df, Dm) * (Df ** -0.5)),
        }
    _B_in = _B_setup()

    return {
        "A_x": _A_in["x"],
        "A_w_r": _A_in["w_r"],
        "A_w_i": _A_in["w_i"],
        "B_x": _B_in["x"],
        "B_w_gate": _B_in["w_gate"],
        "B_w_up": _B_in["w_up"],
        "B_w_down": _B_in["w_down"],
    }

def reference(A_x, A_w_r, A_w_i, B_x, B_w_gate, B_w_up, B_w_down):
    def _A_ref(x, w_r, w_i):
        B, S, D = x.shape
        X = (lambda x, axes=(-2,-1): torch.fft.rfft2(x.float(), dim=axes))(x, axes=(-2, -1))
        W = w_r + 1j * w_i
        X = X * W
        y = (lambda x, s, axes=(-2,-1): torch.fft.irfft2(x, s=s, dim=axes).to(torch.bfloat16))(X, (S, D), axes=(-2, -1))
        return y

    def _B_ref(x, w_gate, w_up, w_down):
        g = torch.einsum("bsd,df->bsf", x, w_gate)
        u = torch.einsum("bsd,df->bsf", x, w_up)
        h = _gelu(g) * u
        return torch.einsum("bsf,fd->bsd", h, w_down)

    x = A_x
    x = x + _A_ref(_layernorm(x, axis=-1), A_w_r, A_w_i)
    x = x + _B_ref(_layernorm(x, axis=-1), B_w_gate, B_w_up, B_w_down)
    x = x + _A_ref(_layernorm(x, axis=-1), A_w_r, A_w_i)
    x = x + _B_ref(_layernorm(x, axis=-1), B_w_gate, B_w_up, B_w_down)
    return x
```

```python
import re

_REG = re.compile(r'^(v|a|s)(\d+)$')
_RNG = re.compile(r'^(v|a|s)\[(\d+):(\d+)\]$')

def regs_of(tok):
    tok = tok.strip()
    neg = tok
    for pre in ('-', '|'):
        neg = neg.strip(pre)
    if neg.startswith('abs(') and neg.endswith(')'):
        neg = neg[4:-1]
    m = _REG.match(neg)
    if m:
        return {(m.group(1), int(m.group(2)))}
    m = _RNG.match(neg)
    if m:
        return {(m.group(1), i) for i in range(int(m.group(2)), int(m.group(3)) + 1)}
    if neg == 'vcc':
        return {('s', 106), ('s', 107)}
    if neg == 'vcc_lo':
        return {('s', 106)}
    if neg == 'vcc_hi':
        return {('s', 107)}
    if neg == 'exec':
        return {('s', 126), ('s', 127)}
    if neg == 'm0':
        return {('s', 124)}
    return set()

TRANS = ('v_exp_f32', 'v_log_f32', 'v_rcp_f32', 'v_rsq_f32', 'v_sqrt_f32', 'v_sin_f32', 'v_cos_f32', 'v_rcp_iflag_f32')

class Ins:
    __slots__ = ('text', 'op', 'ops', 'mods', 'kind', 'defs', 'uses', 'srcc', 'passes', 'dpp', 'wide_store', 'lds_dma', 'srcab')
    def __init__(self, text):
        self.text = text
        t = text.split(';')[0].strip()
        parts = t.split(None, 1)
        self.op = parts[0]
        rest = parts[1] if len(parts) > 1 else ''
        ops = []; cur = ''; depth = 0
        for ch in rest:
            if ch in '[(': depth += 1
            if ch in '])': depth -= 1
            if ch == ',' and depth == 0:
                ops.append(cur.strip()); cur = ''
            else:
                cur += ch
        if cur.strip(): ops.append(cur.strip())
        mods = ''
        if ops:
            last = ops[-1].split(None, 1)
            if len(last) > 1:
                ops[-1] = last[0]; mods = last[1]
        self.ops = ops; self.mods = mods
        op = self.op
        self.defs = set(); self.uses = set(); self.srcc = set(); self.srcab = set()
        self.passes = 0; self.dpp = False; self.wide_store = False; self.lds_dma = False
        R = [regs_of(o) for o in ops]
        def U(i0):
            u = set()
            for r in R[i0:]: u |= r
            return u
        if op.startswith('v_mfma'):
            self.kind = 'mfma'
            self.passes = 8 if '32x32x16' in op else 4
            self.defs = R[0]; self.srcab = R[1] | R[2]; self.srcc = R[3]; self.uses = self.srcab | self.srcc
        elif op.startswith('v_'):
            self.kind = 'trans' if op.replace('_e32', '').replace('_e64', '') in TRANS else 'valu'
            if op.startswith('v_dot'): self.kind = 'dot'
            if op.startswith('v_cmp'):
                self.defs = R[0]; self.uses = U(1)
            elif op.startswith('v_readfirstlane') or op.startswith('v_readlane'):
                self.defs = R[0]; self.uses = U(1); self.kind = 'readlane'
            elif 'permlane' in op and 'swap' in op or op.startswith('v_swap'):
                self.defs = R[0] | R[1]; self.uses = R[0] | R[1]; self.kind = 'permlane'
            elif op.startswith(('v_add_co', 'v_sub_co', 'v_addc_co', 'v_subb_co', 'v_subrev_co')):
                self.defs = R[0] | R[1]; self.uses = U(2)
            else:
                self.defs = R[0]; self.uses = U(1)
                if op.startswith(('v_fmac', 'v_dot2c', 'v_pk_fmac', 'v_mac')) or 'd16' in op:
                    self.uses |= R[0]
                if op.startswith('v_cndmask') and len(ops) == 3:
                    self.uses |= regs_of('vcc')
            if any(k in mods for k in ('row_', 'quad_perm', 'wave_', 'dpp')) or '_dpp' in op:
                self.dpp = True
                self.uses |= R[0] if ('bound_ctrl' not in mods) else set()
        elif op.startswith(('buffer_load', 'global_load')):
            self.kind = 'vmem'
            if ' lds' in (' ' + mods) or op.startswith('global_load_lds'):
                self.lds_dma = True; self.uses = U(0) | regs_of('m0')
            else:
                self.defs = R[0]; self.uses = U(1)
                if 'd16' in op: self.uses |= R[0]
        elif op.startswith(('buffer_store', 'global_store', 'buffer_atomic', 'global_atomic')):
            self.kind = 'vmem'; self.uses = U(0)
            if 'x4' in op or 'x3' in op: self.wide_store = True
        elif op.startswith('ds_read') or op.startswith('ds_bpermute') or op.startswith('ds_swizzle'):
            self.kind = 'ds'; self.defs = R[0]; self.uses = U(1)
        elif op.startswith('ds_'):
            self.kind = 'ds'; self.uses = U(0)
        elif op.startswith('s_'):
            self.kind = 'salu'
            if op in ('s_nop', 's_waitcnt', 's_barrier', 's_endpgm', 's_sleep', 's_setprio', 's_branch') or op.startswith(('s_cbranch', 's_cmp', 's_bitcmp')):
                self.uses = U(0)
            else:
                self.defs = R[0]; self.uses = U(1)
                if 'saveexec' in op: self.defs |= regs_of('exec'); self.uses |= regs_of('exec')
        else:
            raise ValueError('unknown op ' + text)
    def states(self):
        if self.op == 's_nop':
            return int(self.ops[0], 0) + 1
        return 1

def is_valu(i): return i.kind in ('valu', 'trans', 'dot', 'readlane', 'permlane')

def need(p, c):
    n = 0
    vdef = {r for r in p.defs if r[0] in 'va'}
    sdef = {r for r in p.defs if r[0] == 's'}
    if p.kind == 'mfma':
        big = p.passes == 8
        if c.kind == 'mfma':
            if c.srcab & p.defs: n = max(n, 12 if big else 8)
            if c.srcc & p.defs and c.srcc != p.defs: n = max(n, 10 if big else 6)
            if c.srcc == p.defs and c.passes != p.passes: n = max(n, 10 if big else 6)
            if (c.defs & p.defs) and c.defs != c.srcc: n = max(n, 12 if big else 8)
        else:
            if (c.uses | c.defs) & p.defs: n = max(n, 12 if big else 8)
            if is_valu(c) and (c.defs & p.srcc): n = max(n, 7 if big else 3)
        return n
    if is_valu(p):
        if c.kind == 'mfma' and (c.uses & vdef): n = max(n, 2)
        if sdef:
            if c.kind == 'vmem' and (c.uses & sdef): n = max(n, 5)
            if is_valu(c) and (c.uses & sdef): n = max(n, 2)
            if c.kind == 'readlane' and (c.uses & sdef): n = max(n, 4)
            if c.kind == 'salu' and (c.uses & sdef): n = max(n, 1)
        if c.kind == 'readlane' and (c.uses & vdef): n = max(n, 1)
        if c.dpp and (c.uses & vdef): n = max(n, 2)
        if c.kind == 'permlane' and (c.uses & vdef): n = max(n, 2)
        if p.kind == 'trans' and is_valu(c) and c.kind != 'trans' and (c.uses & vdef): n = max(n, 1)
        if p.kind == 'trans' and c.kind == 'mfma' and (c.uses & vdef): n = max(n, 2)
        if p.kind == 'dot' and ((c.uses | c.defs) & vdef):
            if not (c.kind == 'dot' and c.op == p.op and not (_srcs01(c) & vdef)): n = max(n, 3)
    if p.kind == 'vmem' and p.wide_store:
        data = regs_of(p.ops[0]) if p.op.startswith('buffer') else regs_of(p.ops[1])
        if c.defs & data: n = max(n, 2 if is_valu(c) else 1)
    if p.kind == 'salu' and ('s', 124) in p.defs and c.lds_dma: n = max(n, 1)
    if p.kind == 'salu' and (('s', 126) in p.defs) and c.dpp: n = max(n, 0)
    return n

def _srcs01(c):
    s = set()
    for o in c.ops[1:3]: s |= regs_of(o)
    return s

class Asm:
    def __init__(self):
        self.items = []
    def __call__(self, text):
        for line in text.split('\n'):
            line = line.strip()
            if not line or line.startswith(';'):
                continue
            if line.endswith(':') or line.startswith('.'):
                self.items.append(line)
            else:
                self.items.append(Ins(line))
    def label(self, name): self.items.append(name + ':')
    def raw(self, text): self.items.append(text)
    def finish(self):
        out = []
        window = []
        WIN = 14
        def flush():
            worst = 0
            for (p, d) in window:
                w = 0
                if p.kind == 'mfma': w = 12 if p.passes == 8 else 8
                elif is_valu(p):
                    w = 2 if p.kind != 'dot' else 3
                    if any(r[0] == 's' for r in p.defs): w = 5
                elif p.kind == 'vmem' and p.wide_store: w = 2
                elif p.kind == 'salu' and ('s', 124) in p.defs: w = 1
                worst = max(worst, w - d)
            return worst
        def emit_nop(n):
            while n > 0:
                k = min(n, 16)
                out.append('    s_nop %d' % (k - 1))
                for j in range(len(window)): window[j] = (window[j][0], window[j][1] + k)
                n -= k
        for it in self.items:
            if isinstance(it, str):
                if it.endswith(':'):
                    emit_nop(flush()); window.clear()
                    out.append(it)
                else:
                    out.append(it)
                continue
            req = 0
            for (p, d) in window:
                req = max(req, need(p, it) - d)
            if it.op.startswith('s_cbranch') or it.op == 's_branch':
                req = max(req, flush() - 1)
            if req > 0: emit_nop(req)
            out.append('    ' + it.text)
            st = it.states()
            window[:] = [(p, d + st) for (p, d) in window if d + st < WIN]
            window.append((it, 0))
            if it.op == 's_branch' or it.op == 's_endpgm':
                window.clear()
        return '\n'.join(out) + '\n'

NAME = "interleave_layers__spectral_gfnet__glu_gated_geglu__prompt"

def kernel_text(name, asm):
    return f".globl {name}\n.p2align 8\n.type {name},@function\n{name}:\n" + asm.finish()

def kd_text(name, vgpr, agpr=0, sgpr=96):
    acc = (vgpr + 3) // 4 * 4
    nfv = acc + agpr if agpr else vgpr
    return f""".p2align 6
.amdhsa_kernel {name}
  .amdhsa_next_free_vgpr {nfv}
  .amdhsa_next_free_sgpr {sgpr}
  .amdhsa_accum_offset {acc}
  .amdhsa_group_segment_fixed_size 0
  .amdhsa_kernarg_size 80
  .amdhsa_user_sgpr_count 2
  .amdhsa_user_sgpr_kernarg_segment_ptr 1
  .amdhsa_system_sgpr_workgroup_id_x 1
  .amdhsa_float_denorm_mode_32 3
.end_amdhsa_kernel
"""

class Cnt:
    def __init__(self, a, name, maxv):
        self.a = a; self.name = name; self.maxv = maxv; self.n = 0
    def issue(self, text):
        self.a(text); self.n += 1
        return self.n
    def mark(self): return self.n
    def wait(self, ticket):
        out = self.n - ticket
        assert out >= 0
        if out > self.maxv: out = self.maxv
        self.a(f"s_waitcnt {self.name}({out})")
    def wait_all(self):
        self.a(f"s_waitcnt {self.name}(0)")
```

```python
import struct, math
from asmlib import *

def f2u(x): return struct.unpack('<I', struct.pack('<f', x))[0]
def fhex(x): return '0x%08x' % f2u(x)

XP_SZ = 512 * 2048 * 2
XP = [0x000000, 0x200000, 0x400000, 0x600000]
H_SZ = 64 * 86 * 1024
H = [0x800000, 0xE00000]
SS = [0x1400000, 0x1410000]
SS_SZ = 8 * 2048 * 4
WGU = 0x1500000
WGU_SZ = 86 * 32 * 1024
WDP = 0x1800000
WDP_SZ = 16 * 86 * 1024
WDF = 0x1A00000
GF = 0x1C00000
GF_SZ = 16 * 32 * 1024
WT = 0x1D00000
WT_SZ = 256 * 8192
SYNC = 0x1F00000
PROF = 0x1F80000
WS_USED = 0x2000000

P_X, P_WR, P_WI, P_WG, P_WU, P_WD, P_OUT, P_DBG, P_WS = 64, 66, 68, 72, 74, 76, 78, 80, 82

class Alloc:
    def __init__(self, start=0, limit=256, cls='v'):
        self.n = start; self.limit = limit; self.cls = cls; self.hi = start
    def get(self, n=1, align=None):
        if align is None: align = 1 if n == 1 else (2 if n < 4 else 4)
        self.n = (self.n + align - 1) // align * align
        r = self.n; self.n += n
        self.hi = max(self.hi, self.n)
        assert self.n <= self.limit, f"out of {self.cls} regs"
        return r
    def mark(self): return self.n
    def release(self, m): self.n = m

def vr(b, n=1, c='v'):
    return f"{c}{b}" if n == 1 else f"{c}[{b}:{b+n-1}]"

def srd(a, s, base, off, size):
    if off:
        a(f"s_add_u32 s{s}, s{base}, {hex(off)}")
        a(f"s_addc_u32 s{s+1}, s{base+1}, 0")
    else:
        a(f"s_mov_b32 s{s}, s{base}")
        a(f"s_mov_b32 s{s+1}, s{base+1}")
    a(f"s_mov_b32 s{s+2}, {hex(size)}")
    a(f"s_mov_b32 s{s+3}, 0x00020000")

def load_ptrs(a):
    a("s_load_dwordx16 s[64:79], s[0:1], 0")
    a("s_load_dwordx4 s[80:83], s[0:1], 64")
    a("s_waitcnt lgkmcnt(0)")

class Prof:
    def __init__(self, a, on, base=84, maxn=8):
        self.a = a; self.on = on; self.n = 0; self.base = base; self.names = []; self.maxn = maxn
    def stamp(self, name, real=True):
        if not self.on: return
        assert self.n < self.maxn
        r = self.base + 2 * self.n
        self.a(f"s_memrealtime s[{r}:{r+1}]" if real else f"s_memtime s[{r}:{r+1}]")
        self.names.append(name); self.n += 1
```

```python
from common import *

M32 = "v_mfma_f32_32x32x16_bf16"
M16 = "v_mfma_f32_16x16x32_bf16"
S_W, S_X, S_L = 20, 21, 22
V_LANE, V_L31, V_HH = 1, 2, 3
VBASE = 4
LDS_TOTAL = 160 * 1024
LDS_PROF = LDS_TOTAL - 1024

class G:
    def __init__(self, pers=False, prof=False):
        self.a = Asm(); self.pers = pers; self.prof = prof
        self.st = " sc1" if pers else ""
        self.ld = " sc1" if pers else ""
        self.uid = 0; self.names = []
        self.vlimit = 252 if prof else 256
    def lab(self, s):
        self.uid += 1; return f"L_{s}_{self.uid}"
    def V(self): return Alloc(VBASE, self.vlimit)
    def stamp(self, name):
        if not self.prof: return
        a = self.a; n = len(self.names); self.names.append(name)
        a("s_memrealtime s[98:99]")
        a("s_waitcnt lgkmcnt(0)")
        a("v_mov_b32 v253, s98")
        a(f"ds_write_b32 v252, v253 offset:{4*n}")
        a("s_waitcnt lgkmcnt(0)")
    def prologue(self):
        a = self.a
        load_ptrs(a)
        a(f"v_lshrrev_b32 v4, 6, v0")
        a(f"v_and_b32 v{V_LANE}, 63, v0")
        a(f"v_readfirstlane_b32 s{S_W}, v4")
        a(f"v_and_b32 v{V_L31}, 31, v0")
        a(f"v_lshrrev_b32 v{V_HH}, 5, v{V_LANE}")
        a(f"s_and_b32 s{S_X}, s2, 7")
        a(f"s_lshr_b32 s{S_L}, s2, 3")
        if self.prof:
            a(f"v_lshlrev_b32 v252, 7, v4")
            a(f"v_add_u32 v252, {LDS_PROF}, v252")
    def prof_dump(self):
        if not self.prof: return
        a = self.a
        a("s_waitcnt vmcnt(0) lgkmcnt(0)")
        a("s_barrier")
        srd(a, 8, P_WS, PROF, 256 * 512)
        a("v_lshlrev_b32 v4, 2, v0")
        a(f"v_add_u32 v5, {LDS_PROF}, v4")
        a("ds_read_b32 v6, v5")
        a("s_lshl_b32 s24, s2, 9")
        a("s_waitcnt lgkmcnt(0)")
        a("v_cmp_gt_u32 vcc, 128, v0")
        a("s_and_saveexec_b64 s[26:27], vcc")
        a("buffer_store_dword v6, v4, s[8:11], s24 offen")
        a("s_mov_b64 exec, s[26:27]")

def reduce_write(g, V, acc, cls, mode_perm, RED=0):
    a = g.a
    ad = V.get(3, 1); t = V.get()
    a(f"v_lshlrev_b32 v{t}, 4, v{V_LANE}")
    for c in range(1, 4):
        a(f"s_xor_b32 s24, s{S_W}, {c}")
        a(f"s_mul_i32 s24, s24, 12288")
        a(f"s_add_u32 s24, s24, {RED + (c-1)*4096}")
        a(f"v_add_u32 v{ad+c-1}, s24, v{t}")
    for c in range(1, 4):
        for k in range(4):
            r = acc(k, c) if mode_perm == 'g' else acc(c, k)
            a(f"ds_write_b128 v{ad+c-1}, {vr(r,4,cls)} offset:{k*1024}")

def reduce_read(g, V, dst, RED=0):
    a = g.a
    ad = V.get()
    a(f"s_mul_i32 s24, s{S_W}, 12288")
    a(f"s_add_u32 s24, s24, {RED}")
    a(f"v_lshlrev_b32 v{ad}, 4, v{V_LANE}")
    a(f"v_add_u32 v{ad}, s24, v{ad}")
    for c in range(3):
        for k in range(4):
            a(f"ds_read_b128 {vr(dst + c*16 + k*4, 4)}, v{ad} offset:{c*4096 + k*1024}")

def sum32(g, regs, tmp):
    a = g.a
    for sh in (8, 4, 2, 1):
        for r in regs:
            a(f"v_add_f32_dpp v{r}, v{r}, v{r} row_ror:{sh} row_mask:0xf bank_mask:0xf")
    for r, t in zip(regs, tmp): a(f"v_mov_b32 v{t}, v{r}")
    for r, t in zip(regs, tmp): a(f"v_permlane16_swap_b32 v{r}, v{t}")
    for r, t in zip(regs, tmp): a(f"v_add_f32 v{r}, v{r}, v{t}")

def epi_out(g, V, val, OT, srd_out, row_voff_fn, stats=None):
    a = g.a
    pk = V.get(8); wad = V.get(); t = V.get()
    for k in range(4):
        for j in range(2):
            a(f"v_cvt_pk_bf16_f32 v{pk+2*k+j}, v{val+4*k+2*j}, v{val+4*k+2*j+1}")
    a(f"v_mul_u32_u24 v{wad}, 144, v{V_L31}")
    a(f"v_lshl_add_u32 v{wad}, v{V_HH}, 3, v{wad}")
    a(f"s_lshl_b32 s24, s{S_W}, 4")
    a(f"s_add_u32 s24, s24, {OT}")
    a(f"v_add_u32 v{wad}, s24, v{wad}")
    for tr in range(2):
        for tc in range(2):
            k = 2 * tr + tc
            a(f"ds_write_b64 v{wad}, {vr(pk+2*k,2)} offset:{tc*32*144 + tr*64}")
    a("s_waitcnt lgkmcnt(0)")
    a("s_barrier")
    rad = V.get(); o = V.get(8)
    a(f"v_lshrrev_b32 v{t}, 3, v0")
    a(f"v_mul_u32_u24 v{rad}, 144, v{t}")
    a(f"v_and_b32 v{t}, 7, v0")
    a(f"v_lshl_add_u32 v{rad}, v{t}, 4, v{rad}")
    a(f"v_add_u32 v{rad}, {OT}, v{rad}")
    a(f"ds_read_b128 {vr(o,4)}, v{rad}")
    a(f"ds_read_b128 {vr(o+4,4)}, v{rad} offset:{32*144}")
    voff, soffs, flags = row_voff_fn()
    a("s_waitcnt lgkmcnt(1)")
    a(f"buffer_store_dwordx4 {vr(o,4)}, v{voff}, s[{srd_out}:{srd_out+3}], {soffs[0]} offen{flags}")
    a("s_waitcnt lgkmcnt(0)")
    a(f"buffer_store_dwordx4 {vr(o+4,4)}, v{voff}, s[{srd_out}:{srd_out+3}], {soffs[1]} offen{flags}")

def stats_out(g, V, val, sSG, s_tok0, SSoff, first_sg_mask):
    a = g.a
    sq = V.get(8); tmp = V.get(8); msk = V.get()
    a(f"v_cmp_eq_u32 vcc, 0, v{V_L31}")
    a(f"s_cmp_eq_u32 s{sSG}, 0")
    a(f"s_cselect_b64 s[26:27], vcc, 0")
    a(f"v_cndmask_b32 v{msk}, 1.0, 0, s[26:27]")
    for tr in range(2):
        for t in range(4):
            x0 = val + (2*tr)*4 + t; x1 = val + (2*tr+1)*4 + t
            a(f"v_mul_f32 v{tmp+4*tr+t}, v{x0}, v{msk}")
            a(f"v_mul_f32 v{sq+4*tr+t}, v{x1}, v{x1}")
            a(f"v_fmac_f32 v{sq+4*tr+t}, v{tmp+4*tr+t}, v{tmp+4*tr+t}")
    sum32(g, [sq+i for i in range(8)], [tmp+i for i in range(8)])
    srd(a, 12, P_WS, SSoff, SS_SZ)
    ad = V.get()
    a(f"v_lshlrev_b32 v{ad}, 4, v{V_HH}")
    a(f"s_lshl_b32 s24, s{sSG}, 13")
    a(f"s_lshl_b32 s25, s{s_tok0}, 2")
    a(f"s_add_u32 s24, s24, s25")
    a(f"s_lshl_b32 s25, s{S_W}, 5")
    a(f"s_add_u32 s24, s24, s25")
    a(f"s_mov_b32 s26, 1")
    a(f"s_mov_b32 s27, 1")
    a(f"s_mov_b64 exec, s[26:27]")
    a(f"buffer_store_dwordx4 {vr(sq,4)}, v{ad}, s[12:15], s24 offen{g.st}")
    a(f"buffer_store_dwordx4 {vr(sq+4,4)}, v{ad}, s[12:15], s24 offen offset:128{g.st}")
    a(f"s_mov_b64 exec, -1")

def gen_F(g, V, Ff, sSG):
    a = g.a
    m = V.mark()
    sl = V.get(); fk = V.get(); ab = V.get(); sg_ = V.get(); t = V.get(); t2 = V.get(); ar = V.get(8); fd = V.get()
    a(f"s_lshl_b32 s24, s{S_W}, 6")
    a(f"v_lshl_add_u32 v{t}, v{V_HH}, 3, s24")
    a(f"v_cvt_f32_u32 v{fd}, v{t}")
    for u in range(2):
        a(f"s_lshl_b32 s24, s{sSG}, 6")
        a(f"s_add_u32 s24, s24, {32*u}")
        a(f"v_add_u32 v{sl}, s24, v{V_L31}")
        a(f"v_lshrrev_b32 v{t}, 1, v{sl}")
        a(f"v_and_b32 v{t2}, 1, v{sl}")
        a(f"v_cmp_eq_u32 vcc, 1, v{sl}")
        a(f"v_mov_b32 v{sg_}, 256")
        a(f"v_cndmask_b32 v{t}, v{t}, v{sg_}, vcc")
        a(f"v_cndmask_b32 v{t2}, v{t2}, 0, vcc") if False else None
        a(f"v_mov_b32 v{sg_}, 0")
        a(f"v_cndmask_b32 v{t2}, v{t2}, v{sg_}, vcc")
        a(f"v_cvt_f32_u32 v{fk}, v{t}")
        a(f"v_mul_f32 v{fk}, {fhex(1/512)}, v{fk}")
        a(f"v_cvt_f32_u32 v{ab}, v{t2}")
        a(f"v_mul_f32 v{ab}, 0.25, v{ab}") if False else a(f"v_mul_f32 v{ab}, {fhex(0.25)}, v{ab}")
        a(f"v_fmac_f32 v{ab}, v{fk}, v{fd}")
        a(f"v_and_b32 v{t}, 1, v{t}")
        a(f"v_mov_b32 v{sg_}, 0x80008000")
        a(f"v_mul_lo_u32 v{sg_}, v{sg_}, v{t}")
        for kq in range(4):
            for j in range(8):
                a(f"v_fmamk_f32 v{ar+j}, v{fk}, {fhex(float(16*kq+j))}, v{ab}")
            for j in range(8): a(f"v_fract_f32 v{ar+j}, v{ar+j}")
            for j in range(8): a(f"v_cos_f32 v{ar+j}, v{ar+j}")
            f = Ff + (u * 8 + kq) * 4
            for j in range(4):
                a(f"v_cvt_pk_bf16_f32 v{f+j}, v{ar+2*j}, v{ar+2*j+1}")
            for j in range(4):
                a(f"v_xor_b32 v{f+16+j}, v{sg_}, v{f+j}")
    V.release(m)

def Ffr(Ff, u, k8): return Ff + (u * 8 + k8) * 4

def job1(g, V, Ff, sRT, sSG):
    a = g.a
    m = V.mark()
    srd(a, 8, P_X, 0, 2048 * 512 * 2)
    A = V.get(64); vo = V.get(); t = V.get()
    a(f"s_lshl_b32 s24, s{S_W}, 3")
    a(f"v_xor_b32 v{t}, s24, v{V_L31}")
    a(f"v_lshlrev_b32 v{vo}, 15, v{t}")
    a(f"v_lshl_add_u32 v{vo}, v{V_HH}, 4, v{vo}")
    a(f"s_lshl_b32 s25, s{sRT}, 10")
    a(f"s_lshl_b32 s24, s{S_W}, 7")
    a(f"s_add_u32 s25, s25, s24")
    for tr in range(2):
        for half in range(2):
            a(f"s_add_u32 s24, s25, {hex(tr*1048576 + half*512)}")
            for kq in range(4):
                a(f"buffer_load_dwordx4 {vr(A + (tr*8 + half*4 + kq)*4, 4)}, v{vo}, s[8:11], s24 offen offset:{kq*32}")
    return dict(A=A, m=m)

def job1_main(g, V, Ff, sRT, sSG, st):
    a = g.a
    A = st['A']
    acc = V.get(64)
    first = True
    for k8 in range(8):
        a(f"s_waitcnt vmcnt({0})") if k8 == 0 else None
        for tr in range(2):
            for tc in range(2):
                d = acc + (2*tr+tc)*16
                c = "0" if k8 == 0 else vr(d, 16)
                a(f"{M32} {vr(d,16)}, {vr(A + (tr*8+k8)*4, 4)}, {vr(Ffr(Ff,tc,k8),4)}, {c}")
    reduce_write(g, V, lambda k, grp: acc + k*16 + grp*4, 'v', 'g')
    a("s_waitcnt lgkmcnt(0)")
    a("s_barrier")
    part = A
    reduce_read(g, V, part)
    val = V.get(16)
    sc = V.get();
    a(f"v_cmp_gt_u32 vcc, 2, v{V_L31}")
    a(f"s_cmp_eq_u32 s{sSG}, 0")
    a(f"s_cselect_b64 s[26:27], vcc, 0")
    a(f"v_mov_b32 v{sc}, {fhex(1/16)}")
    a(f"v_mov_b32 v{val}, {fhex(1/16/math.sqrt(2))}")
    a(f"v_cndmask_b32 v{sc}, v{sc}, v{val}, s[26:27]")
    a("s_waitcnt lgkmcnt(0)")
    for k in range(4):
        for t in range(4):
            v = val + 4*k + t
            a(f"v_add_f32 v{v}, v{acc+k*16+t}, v{part+k*4+t}")
            a(f"v_add_f32 v{part+16+k*4+t}, v{part+16+k*4+t}, v{part+32+k*4+t}")
        for t in range(4):
            v = val + 4*k + t
            a(f"v_add_f32 v{v}, v{v}, v{part+16+k*4+t}")
        for t in range(4):
            v = val + 4*k + t
            if (k & 1) == 0: a(f"v_mul_f32 v{v}, v{v}, v{sc}")
            else: a(f"v_mul_f32 v{v}, {fhex(1/16)}, v{v}")
    a(f"s_lshl_b32 s28, s{sRT}, 6")
    V2 = Alloc(acc, acc + 64)
    stats_out(g, V2, val, sSG, 28, SS[0], None)
    planes_out(g, V2, val, sRT, sSG, XP[0], OT=49152)
    V.release(st['m'])

def planes_out(g, V, val, sRT, sSG, XPoff, OT):
    a = g.a
    srd(a, 8, P_WS, XPoff, XP_SZ)
    def rowfn():
        vo = V.get(); t = V.get()
        a(f"v_lshrrev_b32 v{t}, 3, v0")
        a(f"v_lshlrev_b32 v{vo}, 12, v{t}")
        a(f"v_and_b32 v{t}, 7, v0")
        a(f"v_lshl_add_u32 v{vo}, v{t}, 4, v{vo}")
        a(f"s_lshl_b32 s24, s{sSG}, 18")
        a(f"s_lshl_b32 s25, s{sRT}, 7")
        a(f"s_add_u32 s24, s24, s25")
        a(f"s_add_u32 s25, s24, {32*4096}")
        return vo, ["s24", "s25"], g.st
    epi_out(g, V, val, OT, 8, rowfn)

def job4_issue(g, V):
    a = g.a
    wt = V.get(8); wti = V.get(8); vo = V.get(); t = V.get()
    srd(a, 12, P_WR, 0, 2048 * 257 * 2)
    srd(a, 16, P_WI, 0, 2048 * 257 * 2)
    a(f"s_and_b32 s24, s2, 3")
    a(f"s_lshl_b32 s24, s24, 6")
    a(f"v_add_u32 v{t}, s24, v{V_LANE}")
    a(f"v_cmp_eq_u32 vcc, 0, v{t}")
    a(f"v_mov_b32 v{vo}, 256")
    a(f"v_cndmask_b32 v{vo}, v{t}, v{vo}, vcc")
    a(f"v_lshlrev_b32 v{vo}, 1, v{vo}")
    a(f"s_lshr_b32 s25, s2, 2")
    a(f"s_lshl_b32 s26, s{S_W}, 8")
    a(f"s_add_u32 s25, s25, s26")
    a(f"s_mul_i32 s25, s25, 514")
    for n in range(8):
        td, r = n >> 2, n & 3
        a(f"s_add_u32 s24, s25, {514*64*(16*td + r)}")
        a(f"buffer_load_ushort v{wt+n}, v{vo}, s[12:15], s24 offen")
        a(f"buffer_load_ushort v{wti+n}, v{vo}, s[16:19], s24 offen")
    return dict(wt=wt, wti=wti, k=t)

def job4_store(g, V, st):
    a = g.a
    wt = st['wt']; t = st['k']
    vo = V.get()
    for n in range(8): a(f"v_lshl_or_b32 v{wt+n}, v{st['wti']+n}, 16, v{wt+n}")
    srd(a, 12, P_WS, WT, WT_SZ)
    a(f"v_lshlrev_b32 v{vo}, 13, v{t}")
    a(f"s_lshr_b32 s25, s2, 2")
    a(f"s_lshl_b32 s24, s25, 7")
    a(f"s_lshl_b32 s25, s{S_W}, 5")
    a(f"s_add_u32 s24, s24, s25")
    a(f"buffer_store_dwordx4 {vr(wt,4)}, v{vo}, s[12:15], s24 offen{g.st}")
    a(f"buffer_store_dwordx4 {vr(wt+4,4)}, v{vo}, s[12:15], s24 offen offset:16{g.st}")

def reduce_t(g, V, acc, part):
    a = g.a
    reduce_write(g, V, lambda c, k: acc + c*16 + k*4, 'v', 't')
    a("s_waitcnt lgkmcnt(0)")
    a("s_barrier")
    reduce_read(g, V, part)
    a("s_waitcnt lgkmcnt(0)")
    a("s_barrier")
    for r in range(16):
        a(f"v_add_f32 v{acc+r}, v{acc+r}, v{part+r}")
        a(f"v_add_f32 v{part+16+r}, v{part+16+r}, v{part+32+r}")
    for r in range(16):
        a(f"v_add_f32 v{acc+r}, v{acc+r}, v{part+16+r}")

def swap_F(g, Ff):
    a = g.a
    L = g.lab("noswap")
    a(f"s_cmp_lt_u32 s{S_W}, 2")
    a(f"s_cbranch_scc1 {L}")
    for r in range(32):
        a(f"v_swap_b32 v{Ff+r}, v{Ff+32+r}")
    a.label(L)

STG3 = 65536

def job3_issue(g, V, sKK):
    a = g.a
    vo = V.get(); t = V.get()
    srd(a, 12, P_WG, 0, 512 * 1376 * 2)
    srd(a, 16, P_WU, 0, 512 * 1376 * 2)
    a(f"v_lshrrev_b32 v{t}, 2, v{V_LANE}")
    a(f"v_mul_u32_u24 v{vo}, 2752, v{t}")
    a(f"v_and_b32 v{t}, 3, v{V_LANE}")
    a(f"v_lshl_add_u32 v{vo}, v{t}, 4, v{vo}")
    a(f"s_mul_i32 s25, s{S_W}, {64*2752}")
    a(f"s_lshl_b32 s24, s{sKK}, 6")
    a(f"s_add_u32 s25, s25, s24")
    a(f"s_lshl_b32 s26, s{S_W}, 14")
    a(f"s_add_u32 s26, s26, {STG3}")
    for p in range(2):
        for m in range(8):
            d0 = 16*m if m < 4 else 256 + 16*(m-4)
            a(f"s_add_u32 m0, s26, {p*8192 + m*1024}")
            a(f"s_add_u32 s24, s25, {d0*2752}")
            a(f"buffer_load_dwordx4 v{vo}, s[{12+4*p}:{15+4*p}], s24 offen lds")

def job3_main(g, V, Ff, sKK, sSG):
    a = g.a
    m = V.mark()
    B = V.get(64)
    ad = V.get(); acc = V.get(64); t = V.get()
    a(f"v_and_b32 v{t}, 15, v{V_LANE}")
    a(f"v_lshrrev_b32 v{ad}, 2, v{t}")
    a(f"v_lshl_add_u32 v{ad}, v{V_HH}, 3, v{ad}")
    a(f"v_lshlrev_b32 v{ad}, 6, v{ad}")
    a(f"v_and_b32 v{t}, 3, v{t}")
    a(f"v_lshl_add_u32 v{ad}, v{t}, 3, v{ad}")
    a(f"v_lshrrev_b32 v{t}, 4, v{V_LANE}")
    a(f"v_and_b32 v{t}, 1, v{t}")
    a(f"v_lshl_add_u32 v{ad}, v{t}, 5, v{ad}")
    a(f"s_lshl_b32 s26, s{S_W}, 14")
    a(f"s_add_u32 s26, s26, {STG3}")
    a(f"v_add_u32 v{ad}, s26, v{ad}")
    ad2 = V.get(2, 1)
    a(f"s_and_b32 s24, s{S_W}, 1")
    a(f"s_lshl_b32 s24, s24, 13")
    a(f"v_add_u32 v{ad2}, s24, v{ad}")
    a(f"s_xor_b32 s24, s24, 8192")
    a(f"v_add_u32 v{ad2+1}, s24, v{ad}")
    for uc in range(2):
        for k8 in range(8):
            for rd in range(2):
                a(f"ds_read_b64_tr_b16 {vr(B+(uc*8+k8)*4+2*rd,2)}, v{ad2+uc} offset:{k8*1024 + rd*256}")
        if uc == 0: a("s_waitcnt lgkmcnt(8)") if False else None
    a("s_waitcnt lgkmcnt(0)")
    for k8 in range(8):
        for ur in range(2):
            for uc in range(2):
                d = acc + (2*ur+uc)*16
                c = "0" if k8 == 0 else vr(d, 16)
                a(f"{M32} {vr(d,16)}, {vr(Ffr(Ff,ur,k8),4)}, {vr(B+(uc*8+k8)*4,4)}, {c}")
    reduce_t(g, V, acc, B)
    s0 = V.get(); s1 = V.get()
    a(f"v_mov_b32 v{s0}, {fhex(1/16)}")
    a(f"v_mov_b32 v{s1}, {fhex(1/16)}")
    a(f"v_cmp_eq_u32 vcc, 0, v{V_HH}")
    a(f"s_lshr_b32 s24, s{S_W}, 1")
    a(f"s_or_b32 s24, s24, s{sSG}")
    a(f"s_cmp_eq_u32 s24, 0")
    a(f"s_cselect_b64 s[26:27], vcc, 0")
    a(f"v_mov_b32 v{t}, 0")
    a(f"v_cndmask_b32 v{s0}, v{s0}, v{t}, s[26:27]")
    a(f"v_mov_b32 v{t}, {fhex(1/16/math.sqrt(2))}")
    a(f"v_cndmask_b32 v{s1}, v{s1}, v{t}, s[26:27]")
    a(f"v_mul_f32 v{acc}, v{acc}, v{s0}")
    a(f"v_mul_f32 v{acc+1}, v{acc+1}, v{s1}")
    for r in range(2, 16): a(f"v_mul_f32 v{acc+r}, {fhex(1/16)}, v{acc+r}")
    pk = B
    for j in range(8): a(f"v_cvt_pk_bf16_f32 v{pk+j}, v{acc+2*j}, v{acc+2*j+1}")
    srd(a, 8, P_WS, WGU, WGU_SZ)
    a(f"v_lshlrev_b32 v{t}, 4, v{V_LANE}")
    a(f"s_lshl_b32 s24, s{sKK}, 16")
    a(f"s_and_b32 s25, s{S_W}, 1")
    a(f"s_lshl_b32 s25, s25, 15")
    a(f"s_add_u32 s24, s24, s25")
    a(f"s_lshl_b32 s25, s{sSG}, 12")
    a(f"s_add_u32 s24, s24, s25")
    a(f"s_lshr_b32 s25, s{S_W}, 1")
    a(f"s_lshl_b32 s25, s25, 11")
    a(f"s_add_u32 s24, s24, s25")
    a(f"buffer_store_dwordx4 {vr(pk,4)}, v{t}, s[8:11], s24 offen{g.st}")
    a(f"buffer_store_dwordx4 {vr(pk+4,4)}, v{t}, s[8:11], s24 offen offset:1024{g.st}")
    V.release(m)

def job2_issue(g, V, sFP):
    a = g.a
    srd(a, 8, P_WD, 0, 1376 * 512 * 2)
    A = V.get(64); vo = V.get(); t = V.get()
    a(f"v_lshlrev_b32 v{vo}, 10, v{V_L31}")
    a(f"v_lshl_add_u32 v{vo}, v{V_HH}, 4, v{vo}")
    a(f"s_lshl_b32 s25, s{sFP}, 16")
    a(f"s_lshl_b32 s24, s{S_W}, 7")
    a(f"s_add_u32 s25, s25, s24")
    a(f"s_and_b32 s24, s{S_W}, 1")
    a(f"s_lshl_b32 s26, s24, 15")
    for ur in range(2):
        if ur == 1: a(f"s_xor_b32 s26, s26, 32768")
        for half in range(2):
            a(f"s_add_u32 s24, s25, s26")
            if half: a(f"s_add_u32 s24, s24, 512")
            for kq in range(4):
                a(f"buffer_load_dwordx4 {vr(A + (ur*8 + half*4 + kq)*4, 4)}, v{vo}, s[8:11], s24 offen offset:{kq*32}")
    return dict(A=A)

def job2_main(g, V, Ff, sFP, sSG, st):
    a = g.a
    A = st['A']
    acc = V.get(64); t = V.get(); sc = V.get()
    for k8 in range(8):
        for ur in range(2):
            for uc in range(2):
                d = acc + (ur | (uc << 1))*16
                c = "0" if k8 == 0 else vr(d, 16)
                a(f"{M32} {vr(d,16)}, {vr(A+(ur*8+k8)*4,4)}, {vr(Ffr(Ff,uc,k8),4)}, {c}")
    reduce_t(g, V, acc, A)
    a(f"v_cmp_gt_u32 vcc, 2, v{V_L31}")
    a(f"s_lshr_b32 s24, s{S_W}, 1")
    a(f"s_or_b32 s24, s24, s{sSG}")
    a(f"s_cmp_eq_u32 s24, 0")
    a(f"s_cselect_b64 s[26:27], vcc, 0")
    a(f"v_mov_b32 v{sc}, {fhex(1/16)}")
    a(f"v_mov_b32 v{t}, {fhex(1/16/math.sqrt(2))}")
    a(f"v_cndmask_b32 v{sc}, v{sc}, v{t}, s[26:27]")
    for r in range(16): a(f"v_mul_f32 v{acc+r}, v{acc+r}, v{sc}")
    pk = A
    for j in range(8): a(f"v_cvt_pk_bf16_f32 v{pk+j}, v{acc+2*j}, v{acc+2*j+1}")
    srd(a, 8, P_WS, WDP, WDP_SZ)
    a(f"s_lshl_b32 s24, s{sFP}, 2")
    a(f"s_and_b32 s25, s{S_W}, 1")
    a(f"s_lshl_b32 s25, s25, 1")
    a(f"s_add_u32 s24, s24, s25")
    L = g.lab("j2skip")
    a(f"s_cmp_ge_u32 s24, 86")
    a(f"s_cbranch_scc1 {L}")
    a(f"s_lshl_b32 s25, s{sSG}, 1")
    a(f"s_lshr_b32 s26, s{S_W}, 1")
    a(f"s_add_u32 s25, s25, s26")
    a(f"s_mul_i32 s25, s25, 86")
    a(f"s_add_u32 s24, s24, s25")
    a(f"s_lshl_b32 s24, s24, 10")
    a(f"v_lshlrev_b32 v{t}, 4, v{V_LANE}")
    a(f"buffer_store_dwordx4 {vr(pk,4)}, v{t}, s[8:11], s24 offen{g.st}")
    a(f"buffer_store_dwordx4 {vr(pk+4,4)}, v{t}, s[8:11], s24 offen offset:1024{g.st}")
    a.label(L)

def job5(g, V):
    a = g.a
    m = V.mark()
    L = g.lab("j5skip")
    a(f"s_cmp_ge_u32 s{S_W}, 2")
    a(f"s_cbranch_scc1 {L}")
    d = V.get(); fd = V.get(); ar = V.get(8); sl = V.get(); kf = V.get(); im = V.get(); t = V.get(); sc = V.get(); pk = V.get(4)
    a(f"s_lshl_b32 s24, s2, 1")
    a(f"s_add_u32 s24, s24, s{S_W}")
    a(f"s_lshr_b32 s25, s24, 5")
    a(f"s_and_b32 s26, s24, 31")
    a(f"s_lshl_b32 s27, s25, 5")
    a(f"v_add_u32 v{d}, s27, v{V_L31}")
    a(f"s_lshl_b32 s27, s26, 4")
    for j in range(8):
        a(f"v_lshl_add_u32 v{sl}, v{V_HH}, 2, s27")
        a(f"v_add_u32 v{sl}, {8*(j>>2) + (j&3)}, v{sl}")
        a(f"v_lshrrev_b32 v{kf}, 1, v{sl}")
        a(f"v_and_b32 v{im}, 1, v{sl}")
        a(f"v_cmp_eq_u32 vcc, 1, v{sl}")
        a(f"v_mov_b32 v{t}, 256")
        a(f"v_cndmask_b32 v{kf}, v{kf}, v{t}, vcc")
        a(f"v_mov_b32 v{t}, 0")
        a(f"v_cndmask_b32 v{im}, v{im}, v{t}, vcc")
        a(f"v_mul_lo_u32 v{kf}, v{kf}, v{d}")
        a(f"v_lshl_add_u32 v{kf}, v{im}, 7, v{kf}")
        a(f"v_and_b32 v{kf}, 511, v{kf}")
        a(f"v_cvt_f32_u32 v{kf}, v{kf}")
        a(f"v_mul_f32 v{kf}, {fhex(1/512)}, v{kf}")
        a(f"v_cos_f32 v{ar+j}, v{kf}")
        a(f"v_cmp_gt_u32 vcc, 2, v{sl}")
        a(f"v_mov_b32 v{sc}, {fhex(1/16)}")
        a(f"v_mov_b32 v{t}, {fhex(1/16/math.sqrt(2))}")
        a(f"v_cndmask_b32 v{sc}, v{sc}, v{t}, vcc")
        a(f"v_mul_f32 v{ar+j}, v{ar+j}, v{sc}")
    for j in range(4): a(f"v_cvt_pk_bf16_f32 v{pk+j}, v{ar+2*j}, v{ar+2*j+1}")
    srd(a, 8, P_WS, GF, GF_SZ)
    a(f"s_lshl_b32 s24, s24, 10")
    a(f"v_lshlrev_b32 v{t}, 4, v{V_LANE}")
    a(f"buffer_store_dwordx4 {vr(pk,4)}, v{t}, s[8:11], s24 offen{g.st}")
    a.label(L)
    V.release(m)

def job6(g, V, stg):
    a = g.a
    m = V.mark()
    vo = V.get(); ad = V.get(); t = V.get(); fr = V.get(4)
    srd(a, 12, P_WD, 0, 1376 * 512 * 2)
    srd(a, 8, P_WS, WDF, WDP_SZ)
    a(f"v_lshrrev_b32 v{t}, 2, v{V_LANE}")
    a(f"v_lshlrev_b32 v{vo}, 10, v{t}")
    a(f"v_and_b32 v{t}, 3, v{V_LANE}")
    a(f"v_lshl_add_u32 v{vo}, v{t}, 4, v{vo}")
    a(f"v_and_b32 v{t}, 15, v{V_LANE}")
    a(f"v_lshrrev_b32 v{ad}, 2, v{t}")
    a(f"v_lshl_add_u32 v{ad}, v{V_HH}, 2, v{ad}")
    a(f"v_lshlrev_b32 v{ad}, 6, v{ad}")
    a(f"v_and_b32 v{t}, 3, v{t}")
    a(f"v_lshl_add_u32 v{ad}, v{t}, 3, v{ad}")
    a(f"v_lshrrev_b32 v{t}, 4, v{V_LANE}")
    a(f"v_and_b32 v{t}, 1, v{t}")
    a(f"v_lshl_add_u32 v{ad}, v{t}, 5, v{ad}")
    a(f"s_lshl_b32 s26, s{S_W}, 10")
    a(f"s_add_u32 s26, s26, {stg}")
    a(f"v_add_u32 v{ad}, s26, v{ad}")
    a(f"v_lshlrev_b32 v{t}, 4, v{V_LANE}")
    fr2 = V.get(4)
    frs = [fr, fr2]
    Ls = g.lab("j6one")
    def ids(it):
        a(f"s_lshl_b32 s24, s2, 2")
        a(f"s_add_u32 s24, s24, s{S_W}")
        if it: a(f"s_add_u32 s24, s24, 1024")
    for it in range(2):
        ids(it)
        if it:
            a(f"s_cmp_ge_u32 s24, 1376")
            a(f"s_cbranch_scc1 {Ls}")
        a(f"s_mul_hi_u32 s25, s24, {hex((2**32 + 85)//86)}")
        a(f"s_mul_i32 s27, s25, 86")
        a(f"s_sub_u32 s27, s24, s27")
        a(f"s_lshl_b32 s27, s27, 14")
        a(f"s_lshl_b32 s25, s25, 6")
        a(f"s_add_u32 s27, s27, s25")
        a(f"s_add_u32 m0, s26, {it*4096}")
        a("s_nop 0")
        a(f"buffer_load_dwordx4 v{vo}, s[12:15], s27 offen lds")
    a.label(Ls)
    a("s_waitcnt vmcnt(0)")
    Le = g.lab("j6end")
    for it in range(2):
        ids(it)
        if it:
            a(f"s_cmp_ge_u32 s24, 1376")
            a(f"s_cbranch_scc1 {Le}")
        a(f"ds_read_b64_tr_b16 {vr(frs[it],2)}, v{ad} offset:{it*4096}")
        a(f"ds_read_b64_tr_b16 {vr(frs[it]+2,2)}, v{ad} offset:{it*4096+512}")
        a(f"s_lshl_b32 s24, s24, 10")
        a("s_waitcnt lgkmcnt(0)")
        a(f"buffer_store_dwordx4 {vr(frs[it],4)}, v{t}, s[8:11], s24 offen{g.st}")
    a.label(Le)
    V.release(m)

def fft_pre(g, V):
    a = g.a
    vi = V.get(); vq = V.get(); t1 = V.get(); t2 = V.get()
    a(f"v_and_b32 v{vi}, 15, v{V_LANE}")
    a(f"v_lshrrev_b32 v{vq}, 4, v{V_LANE}")
    C64 = V.get(8); S64 = V.get(8); N64 = V.get(8)
    C32 = V.get(8); S32 = V.get(8); N32 = V.get(8)
    tw1c = V.get(8); tw1s = V.get(8); tw2c = V.get(8); tw2s = V.get(8)
    tmp = V.get(8); tmp2 = V.get(8)
    m = V.mark()
    fn = V.get(); fb = V.get(); fq = V.get(); fi = V.get()
    sT = 24
    a(f"v_cvt_f32_u32 v{fi}, v{vi}")
    a(f"v_cvt_f32_u32 v{fq}, v{vq}")
    a(f"s_lshl_b32 s{sT}, s{S_W}, 4")
    a(f"v_cvt_f32_u32 v{t1}, s{sT}")
    a(f"v_add_f32 v{fn}, v{t1}, v{fi}")
    a(f"v_mul_f32 v{fb}, v{fn}, v{fq}")
    a(f"v_mul_f32 v{fb}, {fhex(0.125)}, v{fb}")
    def cs(C, S, N):
        for e in range(8): a(f"v_cos_f32 v{tmp2+e}, v{tmp+e}")
        for e in range(8): a(f"v_sin_f32 v{tmp+e}, v{tmp+e}")
        for j in range(4): a(f"v_cvt_pk_bf16_f32 v{C+j}, v{tmp2+2*j}, v{tmp2+2*j+1}")
        for j in range(4): a(f"v_cvt_pk_bf16_f32 v{S+j}, v{tmp+2*j}, v{tmp+2*j+1}")
        for j in range(4): a(f"v_xor_b32 v{N+j}, 0x80008000, v{S+j}")
    for ks in range(2):
        for e in range(8):
            a(f"v_fmamk_f32 v{tmp+e}, v{fn}, {fhex((32*ks+e)/64)}, v{fb}")
        cs(C64+4*ks, S64+4*ks, N64+4*ks)
    for t in range(2):
        a(f"v_add_f32 v{t1}, {fhex(16.0*t)}, v{fi}") if t else a(f"v_mov_b32 v{t1}, v{fi}")
        a(f"v_mul_f32 v{fb}, v{t1}, v{fq}")
        a(f"v_mul_f32 v{fb}, {fhex(0.125)}, v{fb}")
        for e in range(8):
            a(f"v_fmamk_f32 v{tmp+e}, v{t1}, {fhex((16*(e>>2)+(e&3))/32)}, v{fb}")
        cs(C32+4*t, S32+4*t, N32+4*t)
    a(f"v_mul_f32 v{fb}, v{fn}, v{fq}")
    a(f"v_mul_f32 v{fb}, {fhex(4/2048)}, v{fb}")
    for tb in range(2):
        for r in range(4):
            a(f"v_fmamk_f32 v{tmp+4*tb+r}, v{fn}, {fhex((16*tb+r)/2048)}, v{fb}")
    for e in range(8): a(f"v_cos_f32 v{tw1c+e}, v{tmp+e}")
    for e in range(8): a(f"v_sin_f32 v{tw1s+e}, v{tmp+e}")
    a(f"s_lshl_b32 s{sT}, s{S_W}, 4")
    a(f"v_cvt_f32_u32 v{t1}, s{sT}")
    a(f"v_fmamk_f32 v{t1}, v{fq}, {fhex(4.0)}, v{t1}")
    for tb in range(2):
        a(f"v_add_f32 v{t2}, {fhex(16.0*tb)}, v{fi}") if tb else a(f"v_mov_b32 v{t2}, v{fi}")
        a(f"v_mul_f32 v{t2}, {fhex(1/2048)}, v{t2}")
        a(f"v_mul_f32 v{fb}, v{t2}, v{t1}")
        for r in range(4):
            if r == 0: a(f"v_mov_b32 v{tmp+4*tb}, v{fb}")
            else: a(f"v_fmamk_f32 v{tmp+4*tb+r}, v{t2}, {fhex(float(r))}, v{fb}")
    for e in range(8): a(f"v_cos_f32 v{tw2c+e}, v{tmp+e}")
    for e in range(8): a(f"v_sin_f32 v{tw2s+e}, v{tmp+e}")
    for e in range(8): a(f"v_mul_f32 v{tw2c+e}, {fhex(1/2048)}, v{tw2c+e}")
    for e in range(8): a(f"v_mul_f32 v{tw2s+e}, {fhex(1/2048)}, v{tw2s+e}")
    V.release(m)
    return dict(vi=vi, vq=vq, t1=t1, t2=t2, C64=C64, S64=S64, N64=N64, C32=C32, S32=S32, N32=N32,
                tw1c=tw1c, tw1s=tw1s, tw2c=tw2c, tw2s=tw2s, tmp=tmp, tmp2=tmp2)

def fft_wt_load(g, V, st):
    a = g.a
    wt = V.get(8); t0 = V.get()
    srd(a, 16, P_WS, WT, WT_SZ)
    a(f"v_lshlrev_b32 v{t0}, 2, v{st['vi']}")
    a(f"v_add_u32 v{t0}, v{t0}, v{st['vq']}")
    a(f"v_lshlrev_b32 v{t0}, 5, v{t0}")
    a(f"s_lshl_b32 s24, s2, 13")
    a(f"s_lshl_b32 s25, s{S_W}, 11")
    a(f"s_add_u32 s24, s24, s25")
    a(f"buffer_load_dwordx4 {vr(wt,4)}, v{t0}, s[16:19], s24 offen{g.ld}")
    a(f"buffer_load_dwordx4 {vr(wt+4,4)}, v{t0}, s[16:19], s24 offen offset:16{g.ld}")
    st['wt'] = wt

def fft_main(g, V, st, XPin, SSin, XPout):
    a = g.a
    vi, vq, t0, t1 = st['vi'], st['vq'], st['t1'], st['t2']
    C64, S64, N64, C32, S32, N32 = (st[k] for k in ('C64', 'S64', 'N64', 'C32', 'S32', 'N32'))
    tw1c, tw1s, tw2c, tw2s, tmp, tmp2, wt = (st[k] for k in ('tw1c', 'tw1s', 'tw2c', 'tw2s', 'tmp', 'tmp2', 'wt'))
    sP, sQ, sT, sFlag = 28, 29, 24, 30
    srd(a, 8, P_WS, XPin, XP_SZ)
    srd(a, 12, P_WS, SSin, SS_SZ)
    a(f"s_lshl_b32 s{sP}, s2, 13")
    a(f"s_add_u32 s{sQ}, s{sP}, 4096")
    a(f"s_mov_b32 s{sFlag}, 1.0")
    a(f"s_cmp_lg_u32 s2, 0")
    a(f"s_cselect_b32 s{sP}, s{sP}, 4096")
    a(f"s_cselect_b32 s{sQ}, s{sQ}, 0")
    a(f"s_cselect_b32 s{sFlag}, s{sFlag}, 0")
    xr = V.get(4); xi = V.get(4); ss = V.get(64)
    off16 = V.get(); off32 = V.get()
    a(f"v_lshlrev_b32 v{off16}, 4, v0")
    a(f"v_lshlrev_b32 v{off32}, 5, v0")
    a(f"buffer_load_dwordx4 {vr(xr,4)}, v{off16}, s[8:11], s{sP} offen{g.ld}")
    a(f"buffer_load_dwordx4 {vr(xi,4)}, v{off16}, s[8:11], s{sQ} offen{g.ld}")
    a(f"s_mov_b32 s{sT}, 0")
    for p in range(8):
        a(f"buffer_load_dwordx4 {vr(ss+8*p,4)}, v{off32}, s[12:15], s{sT} offen{g.ld}")
        a(f"buffer_load_dwordx4 {vr(ss+8*p+4,4)}, v{off32}, s[12:15], s{sT} offen offset:16{g.ld}")
        if p < 7: a(f"s_add_u32 s{sT}, s{sT}, 8192")
    RS = 144; PS = 32 * RS
    XN, UX, ZX = 0, 2 * PS, 4 * PS
    ZRS = 272; ZPS = 32 * ZRS
    wad = V.get(); rad = V.get(); uad = V.get()
    a(f"v_lshrrev_b32 v{t0}, 3, v0")
    a(f"v_mul_u32_u24 v{wad}, {RS}, v{t0}")
    a(f"v_and_b32 v{t0}, 7, v0")
    a(f"v_lshl_add_u32 v{wad}, v{t0}, 4, v{wad}")
    a(f"v_mul_u32_u24 v{rad}, {RS}, v{vi}")
    a(f"v_lshl_add_u32 v{rad}, v{vq}, 4, v{rad}")
    a(f"v_mul_u32_u24 v{uad}, {RS}, v{vi}")
    a(f"v_lshl_add_u32 v{uad}, v{vq}, 3, v{uad}")
    a(f"s_lshl_b32 s{sT}, s{S_W}, 5")
    a(f"v_add_u32 v{uad}, s{sT}, v{uad}")
    for p in range(1, 8):
        a(f"s_waitcnt vmcnt({2*(7-p)})")
        for j in range(8):
            a(f"v_add_f32 v{ss+j}, v{ss+j}, v{ss+8*p+j}")
    for j in range(8): a(f"v_mul_f32 v{ss+j}, {fhex(1/512)}, v{ss+j}")
    for j in range(8): a(f"v_add_f32 v{ss+j}, {fhex(1e-5)}, v{ss+j}")
    for j in range(8): a(f"v_rsq_f32 v{ss+j}, v{ss+j}")
    for j in range(8): a(f"v_mul_f32 v{ss+8+j}, s{sFlag}, v{ss+j}")
    nx = ss + 16
    for pl, (x, rs) in enumerate(((xr, ss), (xi, ss + 8))):
        for j in range(4):
            a(f"v_lshlrev_b32 v{tmp+2*j}, 16, v{x+j}")
            a(f"v_and_b32 v{tmp+2*j+1}, 0xffff0000, v{x+j}")
        for j in range(8): a(f"v_mul_f32 v{tmp+j}, v{tmp+j}, v{rs+j}")
        for j in range(4): a(f"v_cvt_pk_bf16_f32 v{nx+4*pl+j}, v{tmp+2*j}, v{tmp+2*j+1}")
        a(f"ds_write_b128 v{wad}, {vr(nx+4*pl,4)} offset:{XN+pl*PS}")
    a("s_waitcnt lgkmcnt(0)")
    a("s_barrier")
    fr = ss + 32
    def frag(pl, tb, ks): return fr + ((pl * 2 + tb) * 2 + ks) * 4
    def read_frags(base):
        for ks in range(2):
            for pl in range(2):
                for tb in range(2):
                    a(f"ds_read_b128 {vr(frag(pl,tb,ks),4)}, v{rad} offset:{base + pl*PS + tb*16*RS + ks*64}")
    read_frags(XN)
    Tr = V.get(8); Ti = V.get(8)
    def mf(d, A, B, first=False): a(f"{M16} {vr(d,4)}, {vr(A,4)}, {vr(B,4)}, {'0' if first else vr(d,4)}")
    for ks in range(2):
        a(f"s_waitcnt lgkmcnt({4 if ks == 0 else 0})")
        for tb in range(2):
            mf(Tr+4*tb, frag(0,tb,ks), C64+4*ks, ks == 0)
            mf(Ti+4*tb, frag(1,tb,ks), C64+4*ks, ks == 0)
        for tb in range(2):
            mf(Tr+4*tb, frag(1,tb,ks), S64+4*ks)
            mf(Ti+4*tb, frag(0,tb,ks), N64+4*ks)
    def cmul_pack(Rr, Ri, cc, ssn, sign, Pr, Pi):
        for e in range(8):
            a(f"v_mul_f32 v{tmp+e}, v{Rr+e}, v{cc+e}")
            a(f"v_mul_f32 v{tmp2+e}, v{Ri+e}, v{cc+e}")
        for e in range(8):
            if sign > 0:
                a(f"v_fma_f32 v{tmp+e}, v{Ri+e}, v{ssn+e}, v{tmp+e}")
                a(f"v_fma_f32 v{tmp2+e}, -v{Rr+e}, v{ssn+e}, v{tmp2+e}")
            else:
                a(f"v_fma_f32 v{tmp+e}, -v{Ri+e}, v{ssn+e}, v{tmp+e}")
                a(f"v_fma_f32 v{tmp2+e}, v{Rr+e}, v{ssn+e}, v{tmp2+e}")
        for j in range(4):
            a(f"v_cvt_pk_bf16_f32 v{Pr+j}, v{tmp+2*j}, v{tmp+2*j+1}")
            a(f"v_cvt_pk_bf16_f32 v{Pi+j}, v{tmp2+2*j}, v{tmp2+2*j+1}")
    Pr = V.get(4); Pi = V.get(4)
    cmul_pack(Tr, Ti, tw1c, tw1s, +1, Pr, Pi)
    Yr = ss; Yi = ss + 8
    for td in range(2):
        mf(Yr+4*td, C32+4*td, Pr, True)
        mf(Yi+4*td, C32+4*td, Pi, True)
    for td in range(2):
        mf(Yr+4*td, S32+4*td, Pi)
        mf(Yi+4*td, N32+4*td, Pr)
    wr = Tr; wi = Ti
    for e in range(8):
        a(f"v_lshlrev_b32 v{wr+e}, 16, v{wt+e}")
        a(f"v_and_b32 v{wi+e}, 0xffff0000, v{wt+e}")
    cmul_pack(Yr, Yi, wr, wi, -1, Pr, Pi)
    Ur = Yr; Ui = Yi
    for tb in range(2):
        mf(Ur+4*tb, Pr, C32+4*tb, True)
        mf(Ui+4*tb, Pi, C32+4*tb, True)
    for tb in range(2):
        mf(Ur+4*tb, Pi, N32+4*tb)
        mf(Ui+4*tb, Pr, S32+4*tb)
    cmul_pack(Ur, Ui, tw2c, tw2s, -1, Pr, Pi)
    for tb in range(2):
        a(f"ds_write_b64 v{uad}, {vr(Pr+2*tb,2)} offset:{UX + tb*16*RS}")
        a(f"ds_write_b64 v{uad}, {vr(Pi+2*tb,2)} offset:{UX + PS + tb*16*RS}")
    a("s_waitcnt lgkmcnt(0)")
    a("s_barrier")
    read_frags(UX)
    Zr = Tr; Zi = Ti
    for ks in range(2):
        a(f"s_waitcnt lgkmcnt({4 if ks == 0 else 0})")
        for tb in range(2):
            mf(Zr+4*tb, C64+4*ks, frag(0,tb,ks), ks == 0)
            mf(Zi+4*tb, C64+4*ks, frag(1,tb,ks), ks == 0)
        for tb in range(2):
            mf(Zr+4*tb, N64+4*ks, frag(1,tb,ks))
            mf(Zi+4*tb, S64+4*ks, frag(0,tb,ks))
    zad = V.get()
    a(f"v_mul_u32_u24 v{zad}, {ZRS}, v{vi}")
    a(f"v_lshl_add_u32 v{zad}, v{vq}, 4, v{zad}")
    a(f"s_lshl_b32 s{sT}, s{S_W}, 6")
    a(f"v_add_u32 v{zad}, s{sT}, v{zad}")
    for pl, Z in enumerate((Zr, Zi)):
        for tb in range(2):
            a(f"ds_write_b128 v{zad}, {vr(Z+4*tb,4)} offset:{ZX + pl*ZPS + tb*16*ZRS}")
    a("s_waitcnt lgkmcnt(0)")
    a("s_barrier")
    a(f"v_lshrrev_b32 v{t0}, 3, v0")
    a(f"v_mul_u32_u24 v{zad}, {ZRS}, v{t0}")
    a(f"v_and_b32 v{t0}, 7, v0")
    a(f"v_lshl_add_u32 v{zad}, v{t0}, 5, v{zad}")
    zz = ss + 16
    for pl in range(2):
        a(f"ds_read_b128 {vr(zz+8*pl,4)}, v{zad} offset:{ZX + pl*ZPS}")
        a(f"ds_read_b128 {vr(zz+8*pl+4,4)}, v{zad} offset:{ZX + pl*ZPS + 16}")
    srd(a, 8, P_WS, XPout, XP_SZ)
    for pl, x in enumerate((xr, xi)):
        for j in range(4):
            a(f"v_lshlrev_b32 v{tmp+2*j}, 16, v{x+j}")
            a(f"v_and_b32 v{tmp+2*j+1}, 0xffff0000, v{x+j}")
        a(f"s_waitcnt lgkmcnt({2 if pl == 0 else 0})")
        for j in range(8):
            if pl == 0: a(f"v_add_f32 v{tmp+j}, v{tmp+j}, v{zz+j}")
            else: a(f"v_fma_f32 v{tmp+j}, v{zz+8+j}, s{sFlag}, v{tmp+j}")
        o = tmp2 + 4 * pl
        for j in range(4): a(f"v_cvt_pk_bf16_f32 v{o+j}, v{tmp+2*j}, v{tmp+2*j+1}")
        a(f"buffer_store_dwordx4 {vr(o,4)}, v{off16}, s[8:11], s{sP if pl == 0 else sQ} offen{g.st}")

S_RT, S_CG, S_KK = 32, 33, 34
def g4_map(g, skip_label):
    a = g.a
    a(f"s_min_u32 s24, s{S_X}, 2")
    a(f"s_mul_i32 s25, s{S_X}, 30")
    a(f"s_add_u32 s25, s25, s24")
    a(f"s_cmp_lt_u32 s{S_X}, 2")
    a(f"s_cselect_b32 s24, 31, 30")
    a(f"s_cmp_ge_u32 s{S_L}, s24")
    a(f"s_cbranch_scc1 {skip_label}")
    a(f"s_add_u32 s25, s25, s{S_L}")
    a(f"s_cmp_ge_u32 s25, 121")
    a(f"s_cselect_b32 s24, 121, 0")
    a(f"s_cselect_b32 s{S_RT}, 11, 0")
    a(f"s_sub_u32 s25, s25, s24")
    a(f"s_mul_hi_u32 s{S_CG}, s25, 0x1745D175")
    a(f"s_mul_i32 s24, s{S_CG}, 11")
    a(f"s_sub_u32 s25, s25, s24")
    a(f"s_add_u32 s{S_RT}, s{S_RT}, s25")
    a(f"s_lshl_b32 s{S_KK}, s{S_CG}, 2")
    a(f"s_add_u32 s{S_KK}, s{S_KK}, s{S_W}")

def g4_weights(g, V, j0=0, j1=32):
    a = g.a
    m = V.mark()
    l16 = V.get()
    srd(a, 16, P_WS, WGU, WGU_SZ)
    a(f"v_lshlrev_b32 v{l16}, 4, v{V_LANE}")
    n = 0
    for gq in range(j0 // 8, (j1 + 7) // 8):
        a(f"s_add_u32 s24, s{S_W}, {gq}")
        a(f"s_and_b32 s24, s24, 3")
        a(f"s_lshl_b32 s24, s24, 13")
        a(f"s_lshl_b32 s25, s{S_KK}, 16")
        a(f"s_add_u32 s25, s25, s24")
        for jj in range(8):
            j = gq * 8 + jj
            if j < j0 or j >= j1: continue
            for p in range(2):
                a(f"s_add_u32 s24, s25, {p*32768 + (jj>>2)*4096}")
                a(f"buffer_load_dwordx4 {vr((2*j+p)*4,4,'a')}, v{l16}, s[16:19], s24 offen offset:{(jj&3)*1024}{g.ld}")
                n += 1
    V.release(m)
    return n

def g4_main(g, V, XPin, Hout):
    a = g.a
    TOK = 32768; SSL = 98304
    srd(a, 8, P_WS, XPin, XP_SZ)
    srd(a, 12, P_WS, Hout, H_SZ)
    t0 = V.get(); t1 = V.get(); dv = V.get(); l16 = V.get()
    sNT, sXo, sM0 = 35, 36, 37
    a(f"s_cmp_eq_u32 s{S_RT}, 21")
    a(f"s_cselect_b32 s{sNT}, 1, 3")
    a(f"v_lshrrev_b32 v{t0}, 2, v{V_LANE}")
    a(f"v_lshlrev_b32 v{dv}, 12, v{t0}")
    a(f"v_and_b32 v{t0}, 3, v{V_LANE}")
    a(f"v_lshl_add_u32 v{dv}, v{t0}, 4, v{dv}")
    a(f"v_lshlrev_b32 v{l16}, 4, v{V_LANE}")
    a(f"s_mul_i32 s{sXo}, s{S_RT}, 192")
    a(f"s_lshl_b32 s24, s{S_W}, 19")
    a(f"s_add_u32 s{sXo}, s{sXo}, s24")
    a(f"s_lshl_b32 s{sM0}, s{S_W}, 13")
    def dma_tile(t):
        for mm in range(8):
            a(f"s_add_u32 m0, s{sM0}, {t*TOK + mm*1024}")
            a(f"s_add_u32 s24, s{sXo}, {mm*65536 + t*64}")
            a(f"buffer_load_dwordx4 v{dv}, s[8:11], s24 offen lds{g.ld}")
    dma_tile(0)
    Lone = g.lab("g4_one")
    a(f"s_cmp_eq_u32 s{sNT}, 1")
    a(f"s_cbranch_scc1 {Lone}")
    dma_tile(1); dma_tile(2)
    a.label(Lone)
    ad = V.get(4, 1)
    a(f"v_and_b32 v{t0}, 15, v{V_LANE}")
    a(f"v_lshrrev_b32 v{t1}, 2, v{t0}")
    a(f"v_lshl_add_u32 v{t1}, v{V_HH}, 2, v{t1}")
    a(f"v_lshlrev_b32 v{t1}, 6, v{t1}")
    a(f"v_and_b32 v{t0}, 3, v{t0}")
    a(f"v_lshl_add_u32 v{t1}, v{t0}, 3, v{t1}")
    a(f"v_lshrrev_b32 v{t0}, 4, v{V_LANE}")
    a(f"v_and_b32 v{t0}, 1, v{t0}")
    a(f"v_lshl_add_u32 v{t1}, v{t0}, 5, v{t1}")
    for gq in range(4):
        a(f"s_add_u32 s24, s{S_W}, {gq}")
        a(f"s_and_b32 s24, s24, 3")
        a(f"s_lshl_b32 s24, s24, 13")
        a(f"v_add_u32 v{ad+gq}, s24, v{t1}")
    NR = 4
    fr = V.get(4 * NR)
    acc = V.get(64)
    ssa = V.get(2); u = V.get(4); msk = V.get(); sad = V.get(); srd_ = V.get()
    kc = V.get(6); sv = V.get(8); et = V.get(24); hb = V.get(8)
    a(f"v_cmp_eq_u32 vcc, 0, v{V_HH}")
    a(f"s_cmp_eq_u32 s{S_W}, 0")
    a(f"s_cselect_b64 s[26:27], vcc, 0")
    a(f"v_cndmask_b32 v{msk}, 1.0, 0, s[26:27]")
    a(f"v_lshlrev_b32 v{srd_}, 5, v{V_L31}")
    a(f"v_add_u32 v{srd_}, {SSL}, v{srd_}")
    a(f"v_lshl_add_u32 v{sad}, v{V_HH}, 2, v{srd_}")
    a(f"s_lshl_b32 s24, s{S_W}, 3")
    a(f"v_add_u32 v{sad}, s24, v{sad}")
    a(f"s_cmp_ge_u32 s{S_KK}, 43")
    a(f"s_cselect_b32 s38, 0x7f000000, 0")
    c0 = -2.0 * math.sqrt(2.0 / math.pi) * math.log2(math.e); c1 = c0 * 0.044715
    lg = Cnt(a, "lgkmcnt", 15)
    def epi_ops(t):
        ops = []
        A0 = acc + (t & 1) * 32
        ops.append(("ds", f"ds_read_b128 {vr(sv,4)}, v{srd_} offset:{t*1024}"))
        ops.append(("ds", f"ds_read_b128 {vr(sv+4,4)}, v{srd_} offset:{t*1024+16}"))
        ops.append(("waitds", None))
        for j in range(4): ops.append(f"v_add_f32 v{sv+j}, v{sv+j}, v{sv+4+j}")
        ops.append(f"v_add_f32 v{sv}, v{sv}, v{sv+1}")
        ops.append(f"v_add_f32 v{sv+2}, v{sv+2}, v{sv+3}")
        ops.append(f"v_add_f32 v{sv}, v{sv}, v{sv+2}")
        ops.append(f"v_mul_f32 v{sv}, {fhex(1/512)}, v{sv}")
        ops.append(f"v_add_f32 v{kc+4}, {fhex(1e-5)}, v{sv}")
        ops.append(f"v_rsq_f32 v{sv+1}, v{kc+4}")
        ops.append(f"v_mul_f32 v{kc}, {fhex(c0)}, v{sv+1}")
        ops.append(f"v_mul_f32 v{sv+2}, v{sv+1}, v{sv+1}")
        ops.append(f"v_mul_f32 v{sv+2}, v{sv+2}, v{sv+1}")
        ops.append(f"v_mul_f32 v{kc+2}, {fhex(c1)}, v{sv+2}")
        k0 = vr(kc, 2); k1 = vr(kc+2, 2); ir = vr(kc+4, 2)
        for i in range(8):
            gg = vr(A0 + 2*i, 2); uu = vr(A0 + 16 + 2*i, 2)
            tq = et + (i % 4) * 6
            T1 = vr(tq, 2); T2 = vr(tq+2, 2); T3 = vr(tq+4, 2)
            ops += [f"v_pk_mul_f32 {T1}, {gg}, {gg}",
                    f"v_pk_mul_f32 {T3}, {gg}, {uu}",
                    f"v_pk_fma_f32 {T1}, {T1}, {k1}, {k0} op_sel_hi:[1,0,0]",
                    f"v_pk_mul_f32 {T1}, {T1}, {gg}",
                    f"v_exp_f32 v{tq+2}, v{tq}",
                    f"v_exp_f32 v{tq+3}, v{tq+1}",
                    f"v_pk_fma_f32 {T2}, {T2}, {ir}, {ir} op_sel_hi:[1,0,0]",
                    f"v_rcp_f32 v{tq+2}, v{tq+2}",
                    f"v_rcp_f32 v{tq+3}, v{tq+3}",
                    f"v_pk_mul_f32 {T3}, {T3}, {T2}",
                    f"v_cvt_pk_bf16_f32 v{hb+i}, v{tq+4}, v{tq+5}"]
            if i == 3 or i == 7:
                f = i // 4
                ops.append(f"s_mul_i32 s24, s{S_RT}, {3*86*1024}")
                ops.append(f"s_lshl_b32 s25, s{S_KK}, 11")
                ops.append(f"s_add_u32 s24, s24, s25")
                ops.append(f"s_add_u32 s24, s24, s38")
                ops.append(f"s_add_u32 s24, s24, {(t*86 + f)*1024}")
                ops.append(f"buffer_store_dwordx4 {vr(hb+4*f,4)}, v{l16}, s[12:15], s24 offen{g.st}")
        return ops
    def emit_op(o):
        if isinstance(o, tuple):
            if o[0] == "ds": o_t = lg.issue(o[1]); state['dst'] = o_t
            elif o[0] == "waitds": lg.wait(state['dst'])
        else: a(o)
    state = {}
    def reads(t, j):
        gq = j >> 3
        r = []
        for rd in range(2):
            off = t*TOK + (j & 7)*1024 + rd*512
            r.append((fr + (j % NR)*4 + 2*rd, ad + gq, off))
        return r
    Ldone = g.lab("g4_done")
    for t in range(3):
        if t == 2:
            for gq in range(4): a(f"v_add_u32 v{ad+gq}, {TOK}, v{ad+gq}")
        toff = 0 if t < 2 else -TOK
        if t == 0:
            a(f"s_waitcnt vmcnt(16)") if True else None
            Lw = g.lab("g4_w1")
            a(f"s_cmp_eq_u32 s{sNT}, 3")
            a(f"s_cbranch_scc1 {Lw}")
            a("s_waitcnt vmcnt(0)")
            a.label(Lw)
        elif t == 1:
            a(f"s_cmp_eq_u32 s{sNT}, 1")
            a(f"s_cbranch_scc1 {Ldone}_1")
            a("s_waitcnt vmcnt(8)")
        else:
            a("s_waitcnt vmcnt(2)")
        a("s_barrier")
        lg = Cnt(a, "lgkmcnt", 15)
        tick = {}
        def issue_reads(j):
            for (dst, areg, off) in reads(t, j):
                tick[j] = lg.issue(f"ds_read_b64_tr_b16 {vr(dst,2)}, v{areg} offset:{off+toff}")
        PF = 3
        for j in range(PF): issue_reads(j)
        epi = epi_ops(t - 1) if t > 0 else []
        a(f"v_mov_b32 v{ssa}, 0")
        a(f"v_mov_b32 v{ssa+1}, 0")
        A0 = acc + (t & 1) * 32
        for j in range(32):
            lg.wait(tick[j])
            f = fr + (j % NR) * 4
            st_ops = []
            if j < 8:
                for dw in range(4):
                    lo, hi = (u, u+1) if dw % 2 == 0 else (u+2, u+3)
                    st_ops.append(f"v_lshlrev_b32 v{lo}, 16, v{f+dw}")
                    st_ops.append(f"v_and_b32 v{hi}, 0xffff0000, v{f+dw}")
                    if j == 0 and dw == 0: st_ops.append(f"v_mul_f32 v{lo}, v{lo}, v{msk}")
                    st_ops.append(f"v_fmac_f32 v{ssa}, v{lo}, v{lo}")
                    st_ops.append(f"v_fmac_f32 v{ssa+1}, v{hi}, v{hi}")
            for p in range(2):
                d = A0 + 16*p
                c = "0" if j == 0 else vr(d, 16)
                a(f"{M32} {vr(d,16)}, {vr((2*j+p)*4,4,'a')}, {vr(f,4)}, {c}")
                if p == 0 and j + PF < 32: issue_reads(j + PF)
                if j < 8:
                    for _ in range(8 if p == 0 else 20):
                        if st_ops: a(st_ops.pop(0))
                else:
                    for _ in range(3):
                        if epi: emit_op(epi.pop(0))
            if j == 8:
                a(f"v_add_f32 v{ssa}, v{ssa}, v{ssa+1}")
                lg.issue(f"ds_write_b32 v{sad}, v{ssa} offset:{t*1024}")
        while epi: emit_op(epi.pop(0))
    a("s_waitcnt lgkmcnt(0)")
    a("s_barrier")
    lg = Cnt(a, "lgkmcnt", 15)
    for o in epi_ops(2): emit_op(o)
    a(f"s_branch {Ldone}")
    a.label(f"{Ldone}_1")
    a("s_waitcnt lgkmcnt(0)")
    a("s_barrier")
    lg = Cnt(a, "lgkmcnt", 15)
    for o in epi_ops(0): emit_op(o)
    a.label(Ldone)

S_R64, S_SG, S_K0, S_NK = 40, 41, 42, 43
NKMAX = 22
def g5_map(g):
    a = g.a
    a(f"s_lshr_b32 s24, s{S_L}, 3")
    a(f"s_lshl_b32 s{S_R64}, s{S_X}, 2")
    a(f"s_add_u32 s{S_R64}, s{S_R64}, s24")
    a(f"s_and_b32 s{S_SG}, s{S_L}, 7")
    a(f"s_mul_i32 s{S_K0}, s{S_W}, 22")
    a(f"s_cmp_eq_u32 s{S_W}, 3")
    a(f"s_cselect_b32 s24, 1, 0")
    a(f"s_sub_u32 s{S_K0}, s{S_K0}, s24")

ACC5 = 176
def g5_weights(g, V, final):
    a = g.a
    m = V.mark()
    vo = V.get()
    srd(a, 16, P_WS, WDF if final else WDP, WDP_SZ)
    if final:
        a(f"s_lshl_b32 s24, s{S_W}, 3")
        a(f"v_xor_b32 v{vo}, s24, v{V_LANE}")
        a(f"v_lshlrev_b32 v{vo}, 4, v{vo}")
    else:
        a(f"v_lshlrev_b32 v{vo}, 4, v{V_LANE}")
    a(f"s_mul_i32 s25, s{S_SG}, {2*86*1024}")
    a(f"s_lshl_b32 s24, s{S_K0}, 10")
    a(f"s_add_u32 s25, s25, s24")
    def step(i):
        for tile in range(2):
            a(f"s_add_u32 s24, s25, {tile*86*1024 + (i>>2)*4096}")
            a(f"buffer_load_dwordx4 {vr((i*2+tile)*4,4,'a')}, v{vo}, s[16:19], s24 offen offset:{(i&3)*1024}{g.ld}")
    for i in range(21): step(i)
    L = g.lab("g5w")
    a(f"s_cmp_ge_u32 s{S_W}, 2")
    a(f"s_cbranch_scc1 {L}")
    step(21)
    a.label(L)
    V.release(m)

def g5_resid_load(g, V, XPres):
    a = g.a
    res = V.get(8); vo = V.get()
    srd(a, 12, P_WS, XPres, XP_SZ)
    a(f"v_lshlrev_b32 v{vo}, 12, v{V_L31}")
    a(f"v_lshl_add_u32 v{vo}, v{V_HH}, 3, v{vo}")
    a(f"s_lshl_b32 s24, s{S_SG}, 18")
    a(f"s_lshl_b32 s25, s{S_R64}, 7")
    a(f"s_add_u32 s24, s24, s25")
    a(f"s_lshl_b32 s25, s{S_W}, 4")
    a(f"s_add_u32 s24, s24, s25")
    for tr in range(2):
        for tc in range(2):
            a(f"s_add_u32 s25, s24, {tc*32*4096}")
            a(f"buffer_load_dwordx2 {vr(res+(2*tr+tc)*2,2)}, v{vo}, s[12:15], s25 offen offset:{tr*64}{g.ld}")
    return res

STG7 = 65536
def g7_gpart(g, V, XPin):
    a = g.a
    m = V.mark()
    GA = V.get(64); B = V.get(64); vo = V.get(); dv = V.get(); ad = V.get(); t = V.get()
    srd(a, 8, P_WS, XPin, XP_SZ)
    srd(a, 12, P_WS, GF, GF_SZ)
    a(f"v_lshrrev_b32 v{t}, 2, v{V_LANE}")
    a(f"v_lshlrev_b32 v{dv}, 12, v{t}")
    a(f"v_and_b32 v{t}, 3, v{V_LANE}")
    a(f"v_lshl_add_u32 v{dv}, v{t}, 4, v{dv}")
    a(f"s_lshl_b32 s25, s{S_W}, 19")
    a(f"s_lshl_b32 s24, s{S_R64}, 7")
    a(f"s_add_u32 s25, s25, s24")
    a(f"s_lshl_b32 s26, s{S_W}, 14")
    a(f"s_add_u32 s26, s26, {STG7}")
    for tc in range(2):
        for mm in range(8):
            a(f"s_add_u32 m0, s26, {tc*8192 + mm*1024}")
            a(f"s_add_u32 s24, s25, {mm*65536 + tc*64}")
            a(f"buffer_load_dwordx4 v{dv}, s[8:11], s24 offen lds{g.ld}")
    a(f"s_lshl_b32 s24, s{S_W}, 3")
    a(f"v_xor_b32 v{vo}, s24, v{V_LANE}")
    a(f"v_lshlrev_b32 v{vo}, 4, v{vo}")
    a(f"s_lshl_b32 s25, s{S_SG}, 16")
    a(f"s_lshl_b32 s24, s{S_W}, 13")
    a(f"s_add_u32 s25, s25, s24")
    for tr in range(2):
        for i in range(8):
            a(f"s_add_u32 s24, s25, {tr*32768 + (i>>2)*4096}")
            a(f"buffer_load_dwordx4 {vr(GA+(tr*8+i)*4,4)}, v{vo}, s[12:15], s24 offen offset:{(i&3)*1024}{g.ld}")
    a(f"v_and_b32 v{t}, 15, v{V_LANE}")
    a(f"v_lshrrev_b32 v{ad}, 2, v{t}")
    a(f"v_lshl_add_u32 v{ad}, v{V_HH}, 2, v{ad}")
    a(f"v_lshlrev_b32 v{ad}, 6, v{ad}")
    a(f"v_and_b32 v{t}, 3, v{t}")
    a(f"v_lshl_add_u32 v{ad}, v{t}, 3, v{ad}")
    a(f"v_lshrrev_b32 v{t}, 4, v{V_LANE}")
    a(f"v_and_b32 v{t}, 1, v{t}")
    a(f"v_lshl_add_u32 v{ad}, v{t}, 5, v{ad}")
    a(f"v_add_u32 v{ad}, s26, v{ad}")
    a("s_waitcnt vmcnt(16)")
    for tc in range(2):
        for i in range(8):
            for rd in range(2):
                a(f"ds_read_b64_tr_b16 {vr(B+(tc*8+i)*4+2*rd,2)}, v{ad} offset:{tc*8192 + i*1024 + rd*512}")
    a("s_waitcnt vmcnt(0) lgkmcnt(0)")
    for i in range(8):
        for tr in range(2):
            for tc in range(2):
                d = ACC5 + (2*tr+tc)*16
                c = "0" if i == 0 else vr(d, 16, 'a')
                a(f"{M32} {vr(d,16,'a')}, {vr(GA+(tr*8+i)*4,4)}, {vr(B+(tc*8+i)*4,4)}, {c}")
    V.release(m)

def g5_main(g, V, Hin, final, res=None, XPout=None, SSout=None):
    a = g.a
    srd(a, 8, P_WS, Hin, H_SZ)
    Hf = V.get(176); vo = V.get()
    if final:
        a(f"v_lshlrev_b32 v{vo}, 4, v{V_LANE}")
    else:
        a(f"s_lshl_b32 s24, s{S_W}, 3")
        a(f"v_xor_b32 v{vo}, s24, v{V_LANE}")
        a(f"v_lshlrev_b32 v{vo}, 4, v{vo}")
    a(f"s_mul_i32 s25, s{S_R64}, {2*86*1024}")
    a(f"s_lshl_b32 s24, s{S_K0}, 10")
    a(f"s_add_u32 s25, s25, s24")
    vm = Cnt(a, "vmcnt", 63)
    tk = {}
    def ld(i):
        for tile in range(2):
            a(f"s_add_u32 s24, s25, {tile*86*1024 + (i>>2)*4096}")
            tk[i] = vm.issue(f"buffer_load_dwordx4 {vr(Hf+(i*2+tile)*4,4)}, v{vo}, s[8:11], s24 offen offset:{(i&3)*1024}{g.ld}")
    def mm(i):
        for tr in range(2):
            for tc in range(2):
                d = ACC5 + (2*tr+tc)*16
                c = "0" if (i == 0 and not final) else vr(d, 16, 'a')
                if final: A = vr((i*2+tr)*4, 4, 'a'); B = vr(Hf+(i*2+tc)*4, 4)
                else: A = vr(Hf+(i*2+tr)*4, 4); B = vr((i*2+tc)*4, 4, 'a')
                a(f"{M32} {vr(d,16,'a')}, {A}, {B}, {c}")
    for i in range(21): ld(i)
    L = g.lab("g5l")
    a(f"s_cmp_ge_u32 s{S_W}, 2")
    a(f"s_cbranch_scc1 {L}")
    for tile in range(2):
        a(f"s_add_u32 s24, s25, {tile*86*1024 + (21>>2)*4096}")
        a(f"buffer_load_dwordx4 {vr(Hf+(21*2+tile)*4,4)}, v{vo}, s[8:11], s24 offen offset:{(21&3)*1024}{g.ld}")
    a.label(L)
    for i in range(21):
        out = vm.n - tk[i]
        a(f"s_waitcnt vmcnt({min(out,63)})")
        mm(i)
    L2 = g.lab("g5m")
    a(f"s_cmp_ge_u32 s{S_W}, 2")
    a(f"s_cbranch_scc1 {L2}")
    a("s_waitcnt vmcnt(0)")
    mm(21)
    a.label(L2)
    Hm = Hf
    reduce_write(g, V, lambda k, grp: ACC5 + k*16 + grp*4, 'a', 'g')
    a("s_waitcnt lgkmcnt(0)")
    a("s_barrier")
    part = Hf; val = Hf + 48; own = Hf + 64
    reduce_read(g, V, part)
    for k in range(4):
        for t in range(4):
            a(f"v_accvgpr_read_b32 v{own+4*k+t}, a{ACC5+k*16+t}")
    if not final:
        rx = Hf + 80
        for k in range(4):
            for j in range(2):
                a(f"v_lshlrev_b32 v{rx+4*k+2*j}, 16, v{res+2*k+j}")
                a(f"v_and_b32 v{rx+4*k+2*j+1}, 0xffff0000, v{res+2*k+j}")
        for r in range(16): a(f"v_add_f32 v{own+r}, v{own+r}, v{rx+r}")
    a("s_waitcnt lgkmcnt(0)")
    for r in range(16):
        a(f"v_add_f32 v{val+r}, v{own+r}, v{part+r}")
        a(f"v_add_f32 v{part+16+r}, v{part+16+r}, v{part+32+r}")
    for r in range(16): a(f"v_add_f32 v{val+r}, v{val+r}, v{part+16+r}")
    V2 = Alloc(Hf + 96, Hf + 176)
    if not final:
        a(f"s_lshl_b32 s28, s{S_R64}, 6")
        stats_out(g, V2, val, S_SG, 28, SSout, None)
        planes_out(g, V2, val, S_R64, S_SG, XPout, OT=49152)
    else:
        srd(a, 8, P_OUT, 0, 2048 * 512 * 2)
        def rowfn():
            vo2 = V2.get(); t = V2.get()
            a(f"v_lshrrev_b32 v{t}, 3, v0")
            a(f"v_lshlrev_b32 v{vo2}, 15, v{t}")
            a(f"v_and_b32 v{t}, 7, v0")
            a(f"v_lshl_add_u32 v{vo2}, v{t}, 4, v{vo2}")
            a(f"s_lshl_b32 s24, s{S_R64}, 10")
            a(f"s_lshl_b32 s25, s{S_SG}, 7")
            a(f"s_add_u32 s24, s24, s25")
            a(f"s_add_u32 s25, s24, {32*32768}")
            return vo2, ["s24", "s25"], ""
        epi_out(g, V2, val, 49152, 8, rowfn)
```

```python
import sys
from mega import *

def k_prep(g):
    a = g.a
    V = g.V()
    sRT, sSG, sKK = 44, 45, 46
    a(f"s_lshr_b32 s24, s{S_L}, 3")
    a(f"s_lshl_b32 s{sRT}, s{S_X}, 2")
    a(f"s_add_u32 s{sRT}, s{sRT}, s24")
    a(f"s_and_b32 s{sSG}, s{S_L}, 7")
    Ff = V.get(64)
    m0 = V.mark()
    j4 = job4_issue(g, V)
    j1 = job1(g, V, Ff, sRT, sSG)
    a(f"s_mov_b32 s{sKK}, s{sRT}")
    job3_issue(g, V, sKK)
    gen_F(g, V, Ff, sSG)
    a("s_waitcnt vmcnt(32)")
    job4_store(g, V, j4)
    a("s_waitcnt vmcnt(18)")
    job1_main_nowait(g, V, Ff, sRT, sSG, j1)
    V.release(m0)
    swap_F(g, Ff)
    a("s_waitcnt vmcnt(0)")
    job3_main(g, V, Ff, sKK, sSG)
    L = g.lab("no3b")
    a(f"s_add_u32 s{sKK}, s{sRT}, 32")
    a(f"s_cmp_ge_u32 s{sKK}, 43")
    a(f"s_cbranch_scc1 {L}")
    job3_issue(g, V, sKK)
    a("s_waitcnt vmcnt(0)")
    job3_main(g, V, Ff, sKK, sSG)
    a.label(L)
    L = g.lab("no2")
    a(f"s_cmp_ge_u32 s{sRT}, 22")
    a(f"s_cbranch_scc1 {L}")
    m = V.mark()
    j2 = job2_issue(g, V, sRT)
    a("s_waitcnt vmcnt(0)")
    job2_main(g, V, Ff, sRT, sSG, j2)
    V.release(m)
    a.label(L)
    job5(g, V)
    job6(g, V, 65536)
    return V.hi

def job1_main_nowait(g, V, Ff, sRT, sSG, st):
    n0 = len(g.a.items)
    job1_main(g, V, Ff, sRT, sSG, st)
    for i in range(n0, len(g.a.items)):
        it = g.a.items[i]
        if not isinstance(it, str) and it.op == 's_waitcnt' and 'vmcnt(0)' in it.text:
            del g.a.items[i]; break

def k_fft(g, i):
    V = g.V()
    st = fft_pre(g, V)
    fft_wt_load(g, V, st)
    fft_main(g, V, st, XP[2*i], SS[i], XP[2*i+1])
    return V.hi

def k_g4(g, i):
    V = g.V()
    g4_map(g, "L_end_" + g.kname)
    g4_weights(g, V)
    g4_main(g, V, XP[2*i+1], H[i])
    return V.hi

def k_g5(g, final):
    V = g.V()
    g5_map(g)
    g5_weights(g, V, final)
    if not final:
        res = g5_resid_load(g, V, XP[1])
        g5_main(g, V, H[0], False, res, XP[2], SS[1])
    else:
        g7_gpart(g, V, XP[3])
        g5_main(g, V, H[1], True)
    return V.hi

kernels = [("prep", k_prep), ("fft0", lambda g: k_fft(g, 0)), ("g4a", lambda g: k_g4(g, 0)), ("g5", lambda g: k_g5(g, False)),
           ("fft1", lambda g: k_fft(g, 1)), ("g4b", lambda g: k_g4(g, 1)), ("g7", lambda g: k_g5(g, True))]
n = int(sys.argv[1]) if len(sys.argv) > 1 else len(kernels)
kernels = kernels[:n]
hdr = open("cdna_kernels/" + NAME + ".s.ref").read().split("\n")
out = [l for l in hdr if l.startswith("; ") and "@launch" not in l and "Override" not in l and "grid=ceil" not in l][:12]
text = []; kds = []
uid = 0
for name, fn in kernels:
    kn = name + "_kernel"
    out.append(f"; @launch kernel={kn} grid=(256,1,1) block=(256,1,1) lds={LDS_TOTAL if name != 'fft0' and name != 'fft1' else 40960}")
    g = G(pers=False); g.kname = name; g.uid = uid
    g.a("s_cmp_ge_u32 s2, 256")
    g.a(f"s_cbranch_scc1 L_end_{name}")
    g.prologue()
    nv = fn(g)
    g.a.label(f"L_end_{name}")
    g.a("s_endpgm")
    uid = g.uid
    text.append(kernel_text(kn, g.a))
    kds.append(kd_text(kn, 256, 256, 102))
    print(name, "vgprs", nv, file=sys.stderr)
print("\n".join(out))
print('.amdgcn_target "amdgcn-amd-amdhsa--gfx950"\n.text')
print("\n".join(text))
print('.section .rodata,"a"')
print("\n".join(kds))
```

```python
from common import *

M32 = "v_mfma_f32_32x32x16_bf16"
M16 = "v_mfma_f32_16x16x32_bf16"
S_W, S_X, S_L = 20, 21, 22
V_LANE, V_L31, V_HH = 1, 2, 3
VBASE = 4
LDS_TOTAL = 160 * 1024
LDS_PROF = LDS_TOTAL - 1024

class G:
    def __init__(self, pers=False, prof=False):
        self.a = Asm(); self.pers = pers; self.prof = prof
        self.st = " sc1" if pers else ""
        self.ld = " sc1" if pers else ""
        self.uid = 0; self.names = []
        self.vlimit = 252 if prof else 256
    def lab(self, s):
        self.uid += 1; return f"L_{s}_{self.uid}"
    def V(self): return Alloc(VBASE, self.vlimit)
    def stamp(self, name):
        if not self.prof: return
        a = self.a; n = len(self.names); self.names.append(name)
        a("s_memrealtime s[98:99]")
        a("s_waitcnt lgkmcnt(0)")
        a("v_mov_b32 v253, s98")
        a(f"ds_write_b32 v252, v253 offset:{4*n}")
        a("s_waitcnt lgkmcnt(0)")
    def prologue(self):
        a = self.a
        load_ptrs(a)
        a(f"v_lshrrev_b32 v4, 6, v0")
        a(f"v_and_b32 v{V_LANE}, 63, v0")
        a(f"v_readfirstlane_b32 s{S_W}, v4")
        a(f"v_and_b32 v{V_L31}, 31, v0")
        a(f"v_lshrrev_b32 v{V_HH}, 5, v{V_LANE}")
        a(f"s_and_b32 s{S_X}, s2, 7")
        a(f"s_lshr_b32 s{S_L}, s2, 3")
        if self.prof:
            a(f"v_lshlrev_b32 v252, 7, v4")
            a(f"v_add_u32 v252, {LDS_PROF}, v252")
    def prof_dump(self):
        if not self.prof: return
        a = self.a
        a("s_waitcnt vmcnt(0) lgkmcnt(0)")
        a("s_barrier")
        srd(a, 8, P_WS, PROF, 256 * 512)
        a("v_lshlrev_b32 v4, 2, v0")
        a(f"v_add_u32 v5, {LDS_PROF}, v4")
        a("ds_read_b32 v6, v5")
        a("s_lshl_b32 s24, s2, 9")
        a("s_waitcnt lgkmcnt(0)")
        a("v_cmp_gt_u32 vcc, 128, v0")
        a("s_and_saveexec_b64 s[26:27], vcc")
        a("buffer_store_dword v6, v4, s[8:11], s24 offen")
        a("s_mov_b64 exec, s[26:27]")

def reduce_write(g, V, acc, cls, mode_perm, RED=0):
    a = g.a
    ad = V.get(3, 1); t = V.get()
    a(f"v_lshlrev_b32 v{t}, 4, v{V_LANE}")
    for c in range(1, 4):
        a(f"s_xor_b32 s24, s{S_W}, {c}")
        a(f"s_mul_i32 s24, s24, 12288")
        a(f"s_add_u32 s24, s24, {RED + (c-1)*4096}")
        a(f"v_add_u32 v{ad+c-1}, s24, v{t}")
    for c in range(1, 4):
        for k in range(4):
            r = acc(k, c) if mode_perm == 'g' else acc(c, k)
            a(f"ds_write_b128 v{ad+c-1}, {vr(r,4,cls)} offset:{k*1024}")

def reduce_read(g, V, dst, RED=0):
    a = g.a
    ad = V.get()
    a(f"s_mul_i32 s24, s{S_W}, 12288")
    a(f"s_add_u32 s24, s24, {RED}")
    a(f"v_lshlrev_b32 v{ad}, 4, v{V_LANE}")
    a(f"v_add_u32 v{ad}, s24, v{ad}")
    for c in range(3):
        for k in range(4):
            a(f"ds_read_b128 {vr(dst + c*16 + k*4, 4)}, v{ad} offset:{c*4096 + k*1024}")

def sum32(g, regs, tmp):
    a = g.a
    for sh in (8, 4, 2, 1):
        for r in regs:
            a(f"v_add_f32_dpp v{r}, v{r}, v{r} row_ror:{sh} row_mask:0xf bank_mask:0xf")
    for r, t in zip(regs, tmp): a(f"v_mov_b32 v{t}, v{r}")
    for r, t in zip(regs, tmp): a(f"v_permlane16_swap_b32 v{r}, v{t}")
    for r, t in zip(regs, tmp): a(f"v_add_f32 v{r}, v{r}, v{t}")

def epi_out(g, V, val, OT, srd_out, row_voff_fn, stats=None):
    a = g.a
    pk = V.get(8); wad = V.get(); t = V.get()
    for k in range(4):
        for j in range(2):
            a(f"v_cvt_pk_bf16_f32 v{pk+2*k+j}, v{val+4*k+2*j}, v{val+4*k+2*j+1}")
    a(f"v_mul_u32_u24 v{wad}, 144, v{V_L31}")
    a(f"v_lshl_add_u32 v{wad}, v{V_HH}, 3, v{wad}")
    a(f"s_lshl_b32 s24, s{S_W}, 4")
    a(f"s_add_u32 s24, s24, {OT}")
    a(f"v_add_u32 v{wad}, s24, v{wad}")
    for tr in range(2):
        for tc in range(2):
            k = 2 * tr + tc
            a(f"ds_write_b64 v{wad}, {vr(pk+2*k,2)} offset:{tc*32*144 + tr*64}")
    a("s_waitcnt lgkmcnt(0)")
    a("s_barrier")
    rad = V.get(); o = V.get(8)
    a(f"v_lshrrev_b32 v{t}, 3, v0")
    a(f"v_mul_u32_u24 v{rad}, 144, v{t}")
    a(f"v_and_b32 v{t}, 7, v0")
    a(f"v_lshl_add_u32 v{rad}, v{t}, 4, v{rad}")
    a(f"v_add_u32 v{rad}, {OT}, v{rad}")
    a(f"ds_read_b128 {vr(o,4)}, v{rad}")
    a(f"ds_read_b128 {vr(o+4,4)}, v{rad} offset:{32*144}")
    voff, soffs, flags = row_voff_fn()
    a("s_waitcnt lgkmcnt(1)")
    a(f"buffer_store_dwordx4 {vr(o,4)}, v{voff}, s[{srd_out}:{srd_out+3}], {soffs[0]} offen{flags}")
    a("s_waitcnt lgkmcnt(0)")
    a(f"buffer_store_dwordx4 {vr(o+4,4)}, v{voff}, s[{srd_out}:{srd_out+3}], {soffs[1]} offen{flags}")

def stats_out(g, V, val, sSG, s_tok0, SSoff, first_sg_mask):
    a = g.a
    sq = V.get(8); tmp = V.get(8); msk = V.get()
    a(f"v_cmp_eq_u32 vcc, 0, v{V_L31}")
    a(f"s_cmp_eq_u32 s{sSG}, 0")
    a(f"s_cselect_b64 s[26:27], vcc, 0")
    a(f"v_cndmask_b32 v{msk}, 1.0, 0, s[26:27]")
    for tr in range(2):
        for t in range(4):
            x0 = val + (2*tr)*4 + t; x1 = val + (2*tr+1)*4 + t
            a(f"v_mul_f32 v{tmp+4*tr+t}, v{x0}, v{msk}")
            a(f"v_mul_f32 v{sq+4*tr+t}, v{x1}, v{x1}")
            a(f"v_fmac_f32 v{sq+4*tr+t}, v{tmp+4*tr+t}, v{tmp+4*tr+t}")
    sum32(g, [sq+i for i in range(8)], [tmp+i for i in range(8)])
    srd(a, 12, P_WS, SSoff, SS_SZ)
    ad = V.get()
    a(f"v_lshlrev_b32 v{ad}, 4, v{V_HH}")
    a(f"s_lshl_b32 s24, s{sSG}, 13")
    a(f"s_lshl_b32 s25, s{s_tok0}, 2")
    a(f"s_add_u32 s24, s24, s25")
    a(f"s_lshl_b32 s25, s{S_W}, 5")
    a(f"s_add_u32 s24, s24, s25")
    a(f"s_mov_b32 s26, 1")
    a(f"s_mov_b32 s27, 1")
    a(f"s_mov_b64 exec, s[26:27]")
    a(f"buffer_store_dwordx4 {vr(sq,4)}, v{ad}, s[12:15], s24 offen{g.st}")
    a(f"buffer_store_dwordx4 {vr(sq+4,4)}, v{ad}, s[12:15], s24 offen offset:128{g.st}")
    a(f"s_mov_b64 exec, -1")

def gen_F(g, V, Ff, sSG):
    a = g.a
    m = V.mark()
    sl = V.get(); fk = V.get(); ab = V.get(); sg_ = V.get(); t = V.get(); t2 = V.get(); ar = V.get(8); fd = V.get()
    a(f"s_lshl_b32 s24, s{S_W}, 6")
    a(f"v_lshl_add_u32 v{t}, v{V_HH}, 3, s24")
    a(f"v_cvt_f32_u32 v{fd}, v{t}")
    for u in range(2):
        a(f"s_lshl_b32 s24, s{sSG}, 6")
        a(f"s_add_u32 s24, s24, {32*u}")
        a(f"v_add_u32 v{sl}, s24, v{V_L31}")
        a(f"v_lshrrev_b32 v{t}, 1, v{sl}")
        a(f"v_and_b32 v{t2}, 1, v{sl}")
        a(f"v_cmp_eq_u32 vcc, 1, v{sl}")
        a(f"v_mov_b32 v{sg_}, 256")
        a(f"v_cndmask_b32 v{t}, v{t}, v{sg_}, vcc")
        a(f"v_cndmask_b32 v{t2}, v{t2}, 0, vcc") if False else None
        a(f"v_mov_b32 v{sg_}, 0")
        a(f"v_cndmask_b32 v{t2}, v{t2}, v{sg_}, vcc")
        a(f"v_cvt_f32_u32 v{fk}, v{t}")
        a(f"v_mul_f32 v{fk}, {fhex(1/512)}, v{fk}")
        a(f"v_cvt_f32_u32 v{ab}, v{t2}")
        a(f"v_mul_f32 v{ab}, 0.25, v{ab}") if False else a(f"v_mul_f32 v{ab}, {fhex(0.25)}, v{ab}")
        a(f"v_fmac_f32 v{ab}, v{fk}, v{fd}")
        a(f"v_and_b32 v{t}, 1, v{t}")
        a(f"v_mov_b32 v{sg_}, 0x80008000")
        a(f"v_mul_lo_u32 v{sg_}, v{sg_}, v{t}")
        for kq in range(4):
            for j in range(8):
                a(f"v_fmamk_f32 v{ar+j}, v{fk}, {fhex(float(16*kq+j))}, v{ab}")
            for j in range(8): a(f"v_fract_f32 v{ar+j}, v{ar+j}")
            for j in range(8): a(f"v_cos_f32 v{ar+j}, v{ar+j}")
            f = Ff + (u * 8 + kq) * 4
            for j in range(4):
                a(f"v_cvt_pk_bf16_f32 v{f+j}, v{ar+2*j}, v{ar+2*j+1}")
            for j in range(4):
                a(f"v_xor_b32 v{f+16+j}, v{sg_}, v{f+j}")
    V.release(m)

def Ffr(Ff, u, k8): return Ff + (u * 8 + k8) * 4

def job1(g, V, Ff, sRT, sSG):
    a = g.a
    m = V.mark()
    srd(a, 8, P_X, 0, 2048 * 512 * 2)
    A = V.get(64); vo = V.get(); t = V.get()
    a(f"s_lshl_b32 s24, s{S_W}, 3")
    a(f"v_xor_b32 v{t}, s24, v{V_L31}")
    a(f"v_lshlrev_b32 v{vo}, 15, v{t}")
    a(f"v_lshl_add_u32 v{vo}, v{V_HH}, 4, v{vo}")
    a(f"s_lshl_b32 s25, s{sRT}, 10")
    a(f"s_lshl_b32 s24, s{S_W}, 7")
    a(f"s_add_u32 s25, s25, s24")
    for tr in range(2):
        for half in range(2):
            a(f"s_add_u32 s24, s25, {hex(tr*1048576 + half*512)}")
            for kq in range(4):
                a(f"buffer_load_dwordx4 {vr(A + (tr*8 + half*4 + kq)*4, 4)}, v{vo}, s[8:11], s24 offen offset:{kq*32}")
    return dict(A=A, m=m)

def job1_main(g, V, Ff, sRT, sSG, st):
    a = g.a
    A = st['A']
    acc = V.get(64)
    first = True
    for k8 in range(8):
        a(f"s_waitcnt vmcnt({0})") if k8 == 0 else None
        for tr in range(2):
            for tc in range(2):
                d = acc + (2*tr+tc)*16
                c = "0" if k8 == 0 else vr(d, 16)
                a(f"{M32} {vr(d,16)}, {vr(A + (tr*8+k8)*4, 4)}, {vr(Ffr(Ff,tc,k8),4)}, {c}")
    reduce_write(g, V, lambda k, grp: acc + k*16 + grp*4, 'v', 'g')
    a("s_waitcnt lgkmcnt(0)")
    a("s_barrier")
    part = A
    reduce_read(g, V, part)
    val = V.get(16)
    sc = V.get();
    a(f"v_cmp_gt_u32 vcc, 2, v{V_L31}")
    a(f"s_cmp_eq_u32 s{sSG}, 0")
    a(f"s_cselect_b64 s[26:27], vcc, 0")
    a(f"v_mov_b32 v{sc}, {fhex(1/16)}")
    a(f"v_mov_b32 v{val}, {fhex(1/16/math.sqrt(2))}")
    a(f"v_cndmask_b32 v{sc}, v{sc}, v{val}, s[26:27]")
    a("s_waitcnt lgkmcnt(0)")
    for k in range(4):
        for t in range(4):
            v = val + 4*k + t
            a(f"v_add_f32 v{v}, v{acc+k*16+t}, v{part+k*4+t}")
            a(f"v_add_f32 v{part+16+k*4+t}, v{part+16+k*4+t}, v{part+32+k*4+t}")
        for t in range(4):
            v = val + 4*k + t
            a(f"v_add_f32 v{v}, v{v}, v{part+16+k*4+t}")
        for t in range(4):
            v = val + 4*k + t
            if (k & 1) == 0: a(f"v_mul_f32 v{v}, v{v}, v{sc}")
            else: a(f"v_mul_f32 v{v}, {fhex(1/16)}, v{v}")
    a(f"s_lshl_b32 s28, s{sRT}, 6")
    V2 = Alloc(acc, acc + 64)
    stats_out(g, V2, val, sSG, 28, SS[0], None)
    planes_out(g, V2, val, sRT, sSG, XP[0], OT=49152)
    V.release(st['m'])

def planes_out(g, V, val, sRT, sSG, XPoff, OT):
    a = g.a
    srd(a, 8, P_WS, XPoff, XP_SZ)
    def rowfn():
        vo = V.get(); t = V.get()
        a(f"v_lshrrev_b32 v{t}, 3, v0")
        a(f"v_lshlrev_b32 v{vo}, 12, v{t}")
        a(f"v_and_b32 v{t}, 7, v0")
        a(f"v_lshl_add_u32 v{vo}, v{t}, 4, v{vo}")
        a(f"s_lshl_b32 s24, s{sSG}, 18")
        a(f"s_lshl_b32 s25, s{sRT}, 7")
        a(f"s_add_u32 s24, s24, s25")
        a(f"s_add_u32 s25, s24, {32*4096}")
        return vo, ["s24", "s25"], g.st
    epi_out(g, V, val, OT, 8, rowfn)

def job4_issue(g, V):
    a = g.a
    wt = V.get(8); wti = V.get(8); vo = V.get(); t = V.get()
    srd(a, 12, P_WR, 0, 2048 * 257 * 2)
    srd(a, 16, P_WI, 0, 2048 * 257 * 2)
    a(f"s_and_b32 s24, s2, 3")
    a(f"s_lshl_b32 s24, s24, 6")
    a(f"v_add_u32 v{t}, s24, v{V_LANE}")
    a(f"v_cmp_eq_u32 vcc, 0, v{t}")
    a(f"v_mov_b32 v{vo}, 256")
    a(f"v_cndmask_b32 v{vo}, v{t}, v{vo}, vcc")
    a(f"v_lshlrev_b32 v{vo}, 1, v{vo}")
    a(f"s_lshr_b32 s25, s2, 2")
    a(f"s_lshl_b32 s26, s{S_W}, 8")
    a(f"s_add_u32 s25, s25, s26")
    a(f"s_mul_i32 s25, s25, 514")
    for n in range(8):
        td, r = n >> 2, n & 3
        a(f"s_add_u32 s24, s25, {514*64*(16*td + r)}")
        a(f"buffer_load_ushort v{wt+n}, v{vo}, s[12:15], s24 offen")
        a(f"buffer_load_ushort v{wti+n}, v{vo}, s[16:19], s24 offen")
    return dict(wt=wt, wti=wti, k=t)

def job4_store(g, V, st):
    a = g.a
    wt = st['wt']; t = st['k']
    vo = V.get()
    for n in range(8): a(f"v_lshl_or_b32 v{wt+n}, v{st['wti']+n}, 16, v{wt+n}")
    srd(a, 12, P_WS, WT, WT_SZ)
    a(f"v_lshlrev_b32 v{vo}, 13, v{t}")
    a(f"s_lshr_b32 s25, s2, 2")
    a(f"s_lshl_b32 s24, s25, 7")
    a(f"s_lshl_b32 s25, s{S_W}, 5")
    a(f"s_add_u32 s24, s24, s25")
    a(f"buffer_store_dwordx4 {vr(wt,4)}, v{vo}, s[12:15], s24 offen{g.st}")
    a(f"buffer_store_dwordx4 {vr(wt+4,4)}, v{vo}, s[12:15], s24 offen offset:16{g.st}")

def reduce_t(g, V, acc, part):
    a = g.a
    reduce_write(g, V, lambda c, k: acc + c*16 + k*4, 'v', 't')
    a("s_waitcnt lgkmcnt(0)")
    a("s_barrier")
    reduce_read(g, V, part)
    a("s_waitcnt lgkmcnt(0)")
    a("s_barrier")
    for r in range(16):
        a(f"v_add_f32 v{acc+r}, v{acc+r}, v{part+r}")
        a(f"v_add_f32 v{part+16+r}, v{part+16+r}, v{part+32+r}")
    for r in range(16):
        a(f"v_add_f32 v{acc+r}, v{acc+r}, v{part+16+r}")

def swap_F(g, Ff):
    a = g.a
    L = g.lab("noswap")
    a(f"s_cmp_lt_u32 s{S_W}, 2")
    a(f"s_cbranch_scc1 {L}")
    for r in range(32):
        a(f"v_swap_b32 v{Ff+r}, v{Ff+32+r}")
    a.label(L)

STG3 = 65536

def job3_issue(g, V, sKK):
    a = g.a
    vo = V.get(); t = V.get()
    srd(a, 12, P_WG, 0, 512 * 1376 * 2)
    srd(a, 16, P_WU, 0, 512 * 1376 * 2)
    a(f"v_lshrrev_b32 v{t}, 2, v{V_LANE}")
    a(f"v_mul_u32_u24 v{vo}, 2752, v{t}")
    a(f"v_and_b32 v{t}, 3, v{V_LANE}")
    a(f"v_lshl_add_u32 v{vo}, v{t}, 4, v{vo}")
    a(f"s_mul_i32 s25, s{S_W}, {64*2752}")
    a(f"s_lshl_b32 s24, s{sKK}, 6")
    a(f"s_add_u32 s25, s25, s24")
    a(f"s_lshl_b32 s26, s{S_W}, 14")
    a(f"s_add_u32 s26, s26, {STG3}")
    for p in range(2):
        for m in range(8):
            d0 = 16*m if m < 4 else 256 + 16*(m-4)
            a(f"s_add_u32 m0, s26, {p*8192 + m*1024}")
            a(f"s_add_u32 s24, s25, {d0*2752}")
            a(f"buffer_load_dwordx4 v{vo}, s[{12+4*p}:{15+4*p}], s24 offen lds")

def job3_main(g, V, Ff, sKK, sSG):
    a = g.a
    m = V.mark()
    B = V.get(64)
    ad = V.get(); acc = V.get(64); t = V.get()
    a(f"v_and_b32 v{t}, 15, v{V_LANE}")
    a(f"v_lshrrev_b32 v{ad}, 2, v{t}")
    a(f"v_lshl_add_u32 v{ad}, v{V_HH}, 3, v{ad}")
    a(f"v_lshlrev_b32 v{ad}, 6, v{ad}")
    a(f"v_and_b32 v{t}, 3, v{t}")
    a(f"v_lshl_add_u32 v{ad}, v{t}, 3, v{ad}")
    a(f"v_lshrrev_b32 v{t}, 4, v{V_LANE}")
    a(f"v_and_b32 v{t}, 1, v{t}")
    a(f"v_lshl_add_u32 v{ad}, v{t}, 5, v{ad}")
    a(f"s_lshl_b32 s26, s{S_W}, 14")
    a(f"s_add_u32 s26, s26, {STG3}")
    a(f"v_add_u32 v{ad}, s26, v{ad}")
    ad2 = V.get(2, 1)
    a(f"s_and_b32 s24, s{S_W}, 1")
    a(f"s_lshl_b32 s24, s24, 13")
    a(f"v_add_u32 v{ad2}, s24, v{ad}")
    a(f"s_xor_b32 s24, s24, 8192")
    a(f"v_add_u32 v{ad2+1}, s24, v{ad}")
    for uc in range(2):
        for k8 in range(8):
            for rd in range(2):
                a(f"ds_read_b64_tr_b16 {vr(B+(uc*8+k8)*4+2*rd,2)}, v{ad2+uc} offset:{k8*1024 + rd*256}")
        if uc == 0: a("s_waitcnt lgkmcnt(8)") if False else None
    a("s_waitcnt lgkmcnt(0)")
    for k8 in range(8):
        for ur in range(2):
            for uc in range(2):
                d = acc + (2*ur+uc)*16
                c = "0" if k8 == 0 else vr(d, 16)
                a(f"{M32} {vr(d,16)}, {vr(Ffr(Ff,ur,k8),4)}, {vr(B+(uc*8+k8)*4,4)}, {c}")
    reduce_t(g, V, acc, B)
    s0 = V.get(); s1 = V.get()
    a(f"v_mov_b32 v{s0}, {fhex(1/16)}")
    a(f"v_mov_b32 v{s1}, {fhex(1/16)}")
    a(f"v_cmp_eq_u32 vcc, 0, v{V_HH}")
    a(f"s_lshr_b32 s24, s{S_W}, 1")
    a(f"s_or_b32 s24, s24, s{sSG}")
    a(f"s_cmp_eq_u32 s24, 0")
    a(f"s_cselect_b64 s[26:27], vcc, 0")
    a(f"v_mov_b32 v{t}, 0")
    a(f"v_cndmask_b32 v{s0}, v{s0}, v{t}, s[26:27]")
    a(f"v_mov_b32 v{t}, {fhex(1/16/math.sqrt(2))}")
    a(f"v_cndmask_b32 v{s1}, v{s1}, v{t}, s[26:27]")
    a(f"v_mul_f32 v{acc}, v{acc}, v{s0}")
    a(f"v_mul_f32 v{acc+1}, v{acc+1}, v{s1}")
    for r in range(2, 16): a(f"v_mul_f32 v{acc+r}, {fhex(1/16)}, v{acc+r}")
    pk = B
    for j in range(8): a(f"v_cvt_pk_bf16_f32 v{pk+j}, v{acc+2*j}, v{acc+2*j+1}")
    srd(a, 8, P_WS, WGU, WGU_SZ)
    a(f"v_lshlrev_b32 v{t}, 4, v{V_LANE}")
    a(f"s_lshl_b32 s24, s{sKK}, 16")
    a(f"s_and_b32 s25, s{S_W}, 1")
    a(f"s_lshl_b32 s25, s25, 15")
    a(f"s_add_u32 s24, s24, s25")
    a(f"s_lshl_b32 s25, s{sSG}, 12")
    a(f"s_add_u32 s24, s24, s25")
    a(f"s_lshr_b32 s25, s{S_W}, 1")
    a(f"s_lshl_b32 s25, s25, 11")
    a(f"s_add_u32 s24, s24, s25")
    a(f"buffer_store_dwordx4 {vr(pk,4)}, v{t}, s[8:11], s24 offen{g.st}")
    a(f"buffer_store_dwordx4 {vr(pk+4,4)}, v{t}, s[8:11], s24 offen offset:1024{g.st}")
    V.release(m)

def job2_issue(g, V, sFP):
    a = g.a
    srd(a, 8, P_WD, 0, 1376 * 512 * 2)
    A = V.get(64); vo = V.get(); t = V.get()
    a(f"v_lshlrev_b32 v{vo}, 10, v{V_L31}")
    a(f"v_lshl_add_u32 v{vo}, v{V_HH}, 4, v{vo}")
    a(f"s_lshl_b32 s25, s{sFP}, 16")
    a(f"s_lshl_b32 s24, s{S_W}, 7")
    a(f"s_add_u32 s25, s25, s24")
    a(f"s_and_b32 s24, s{S_W}, 1")
    a(f"s_lshl_b32 s26, s24, 15")
    for ur in range(2):
        if ur == 1: a(f"s_xor_b32 s26, s26, 32768")
        for half in range(2):
            a(f"s_add_u32 s24, s25, s26")
            if half: a(f"s_add_u32 s24, s24, 512")
            for kq in range(4):
                a(f"buffer_load_dwordx4 {vr(A + (ur*8 + half*4 + kq)*4, 4)}, v{vo}, s[8:11], s24 offen offset:{kq*32}")
    return dict(A=A)

def job2_main(g, V, Ff, sFP, sSG, st):
    a = g.a
    A = st['A']
    acc = V.get(64); t = V.get(); sc = V.get()
    for k8 in range(8):
        for ur in range(2):
            for uc in range(2):
                d = acc + (ur | (uc << 1))*16
                c = "0" if k8 == 0 else vr(d, 16)
                a(f"{M32} {vr(d,16)}, {vr(A+(ur*8+k8)*4,4)}, {vr(Ffr(Ff,uc,k8),4)}, {c}")
    reduce_t(g, V, acc, A)
    a(f"v_cmp_gt_u32 vcc, 2, v{V_L31}")
    a(f"s_lshr_b32 s24, s{S_W}, 1")
    a(f"s_or_b32 s24, s24, s{sSG}")
    a(f"s_cmp_eq_u32 s24, 0")
    a(f"s_cselect_b64 s[26:27], vcc, 0")
    a(f"v_mov_b32 v{sc}, {fhex(1/16)}")
    a(f"v_mov_b32 v{t}, {fhex(1/16/math.sqrt(2))}")
    a(f"v_cndmask_b32 v{sc}, v{sc}, v{t}, s[26:27]")
    for r in range(16): a(f"v_mul_f32 v{acc+r}, v{acc+r}, v{sc}")
    pk = A
    for j in range(8): a(f"v_cvt_pk_bf16_f32 v{pk+j}, v{acc+2*j}, v{acc+2*j+1}")
    srd(a, 8, P_WS, WDP, WDP_SZ)
    a(f"s_lshl_b32 s24, s{sFP}, 2")
    a(f"s_and_b32 s25, s{S_W}, 1")
    a(f"s_lshl_b32 s25, s25, 1")
    a(f"s_add_u32 s24, s24, s25")
    L = g.lab("j2skip")
    a(f"s_cmp_ge_u32 s24, 86")
    a(f"s_cbranch_scc1 {L}")
    a(f"s_lshl_b32 s25, s{sSG}, 1")
    a(f"s_lshr_b32 s26, s{S_W}, 1")
    a(f"s_add_u32 s25, s25, s26")
    a(f"s_mul_i32 s25, s25, 86")
    a(f"s_add_u32 s24, s24, s25")
    a(f"s_lshl_b32 s24, s24, 10")
    a(f"v_lshlrev_b32 v{t}, 4, v{V_LANE}")
    a(f"buffer_store_dwordx4 {vr(pk,4)}, v{t}, s[8:11], s24 offen{g.st}")
    a(f"buffer_store_dwordx4 {vr(pk+4,4)}, v{t}, s[8:11], s24 offen offset:1024{g.st}")
    a.label(L)

def job5(g, V):
    a = g.a
    m = V.mark()
    L = g.lab("j5skip")
    a(f"s_cmp_ge_u32 s{S_W}, 2")
    a(f"s_cbranch_scc1 {L}")
    d = V.get(); fd = V.get(); ar = V.get(8); sl = V.get(); kf = V.get(); im = V.get(); t = V.get(); sc = V.get(); pk = V.get(4)
    a(f"s_lshl_b32 s24, s2, 1")
    a(f"s_add_u32 s24, s24, s{S_W}")
    a(f"s_lshr_b32 s25, s24, 5")
    a(f"s_and_b32 s26, s24, 31")
    a(f"s_lshl_b32 s27, s25, 5")
    a(f"v_add_u32 v{d}, s27, v{V_L31}")
    a(f"s_lshl_b32 s27, s26, 4")
    for j in range(8):
        a(f"v_lshl_add_u32 v{sl}, v{V_HH}, 2, s27")
        a(f"v_add_u32 v{sl}, {8*(j>>2) + (j&3)}, v{sl}")
        a(f"v_lshrrev_b32 v{kf}, 1, v{sl}")
        a(f"v_and_b32 v{im}, 1, v{sl}")
        a(f"v_cmp_eq_u32 vcc, 1, v{sl}")
        a(f"v_mov_b32 v{t}, 256")
        a(f"v_cndmask_b32 v{kf}, v{kf}, v{t}, vcc")
        a(f"v_mov_b32 v{t}, 0")
        a(f"v_cndmask_b32 v{im}, v{im}, v{t}, vcc")
        a(f"v_mul_lo_u32 v{kf}, v{kf}, v{d}")
        a(f"v_lshl_add_u32 v{kf}, v{im}, 7, v{kf}")
        a(f"v_and_b32 v{kf}, 511, v{kf}")
        a(f"v_cvt_f32_u32 v{kf}, v{kf}")
        a(f"v_mul_f32 v{kf}, {fhex(1/512)}, v{kf}")
        a(f"v_cos_f32 v{ar+j}, v{kf}")
        a(f"v_cmp_gt_u32 vcc, 2, v{sl}")
        a(f"v_mov_b32 v{sc}, {fhex(1/16)}")
        a(f"v_mov_b32 v{t}, {fhex(1/16/math.sqrt(2))}")
        a(f"v_cndmask_b32 v{sc}, v{sc}, v{t}, vcc")
        a(f"v_mul_f32 v{ar+j}, v{ar+j}, v{sc}")
    for j in range(4): a(f"v_cvt_pk_bf16_f32 v{pk+j}, v{ar+2*j}, v{ar+2*j+1}")
    srd(a, 8, P_WS, GF, GF_SZ)
    a(f"s_lshl_b32 s24, s24, 10")
    a(f"v_lshlrev_b32 v{t}, 4, v{V_LANE}")
    a(f"buffer_store_dwordx4 {vr(pk,4)}, v{t}, s[8:11], s24 offen{g.st}")
    a.label(L)
    V.release(m)

def job6(g, V, stg):
    a = g.a
    m = V.mark()
    vo = V.get(); ad = V.get(); t = V.get(); fr = V.get(4)
    srd(a, 12, P_WD, 0, 1376 * 512 * 2)
    srd(a, 8, P_WS, WDF, WDP_SZ)
    a(f"v_lshrrev_b32 v{t}, 2, v{V_LANE}")
    a(f"v_lshlrev_b32 v{vo}, 10, v{t}")
    a(f"v_and_b32 v{t}, 3, v{V_LANE}")
    a(f"v_lshl_add_u32 v{vo}, v{t}, 4, v{vo}")
    a(f"v_and_b32 v{t}, 15, v{V_LANE}")
    a(f"v_lshrrev_b32 v{ad}, 2, v{t}")
    a(f"v_lshl_add_u32 v{ad}, v{V_HH}, 2, v{ad}")
    a(f"v_lshlrev_b32 v{ad}, 6, v{ad}")
    a(f"v_and_b32 v{t}, 3, v{t}")
    a(f"v_lshl_add_u32 v{ad}, v{t}, 3, v{ad}")
    a(f"v_lshrrev_b32 v{t}, 4, v{V_LANE}")
    a(f"v_and_b32 v{t}, 1, v{t}")
    a(f"v_lshl_add_u32 v{ad}, v{t}, 5, v{ad}")
    a(f"s_lshl_b32 s26, s{S_W}, 10")
    a(f"s_add_u32 s26, s26, {stg}")
    a(f"v_add_u32 v{ad}, s26, v{ad}")
    a(f"v_lshlrev_b32 v{t}, 4, v{V_LANE}")
    fr2 = V.get(4)
    frs = [fr, fr2]
    Ls = g.lab("j6one")
    def ids(it):
        a(f"s_lshl_b32 s24, s2, 2")
        a(f"s_add_u32 s24, s24, s{S_W}")
        if it: a(f"s_add_u32 s24, s24, 1024")
    for it in range(2):
        ids(it)
        if it:
            a(f"s_cmp_ge_u32 s24, 1376")
            a(f"s_cbranch_scc1 {Ls}")
        a(f"s_mul_hi_u32 s25, s24, {hex((2**32 + 85)//86)}")
        a(f"s_mul_i32 s27, s25, 86")
        a(f"s_sub_u32 s27, s24, s27")
        a(f"s_lshl_b32 s27, s27, 14")
        a(f"s_lshl_b32 s25, s25, 6")
        a(f"s_add_u32 s27, s27, s25")
        a(f"s_add_u32 m0, s26, {it*4096}")
        a("s_nop 0")
        a(f"buffer_load_dwordx4 v{vo}, s[12:15], s27 offen lds")
    a.label(Ls)
    a("s_waitcnt vmcnt(0)")
    Le = g.lab("j6end")
    for it in range(2):
        ids(it)
        if it:
            a(f"s_cmp_ge_u32 s24, 1376")
            a(f"s_cbranch_scc1 {Le}")
        a(f"ds_read_b64_tr_b16 {vr(frs[it],2)}, v{ad} offset:{it*4096}")
        a(f"ds_read_b64_tr_b16 {vr(frs[it]+2,2)}, v{ad} offset:{it*4096+512}")
        a(f"s_lshl_b32 s24, s24, 10")
        a("s_waitcnt lgkmcnt(0)")
        a(f"buffer_store_dwordx4 {vr(frs[it],4)}, v{t}, s[8:11], s24 offen{g.st}")
    a.label(Le)
    V.release(m)

def fft_pre(g, V):
    a = g.a
    vi = V.get(); vq = V.get(); t1 = V.get(); t2 = V.get()
    a(f"v_and_b32 v{vi}, 15, v{V_LANE}")
    a(f"v_lshrrev_b32 v{vq}, 4, v{V_LANE}")
    C64 = V.get(8); S64 = V.get(8); N64 = V.get(8)
    C32 = V.get(8); S32 = V.get(8); N32 = V.get(8)
    tw1c = V.get(8); tw1s = V.get(8); tw2c = V.get(8); tw2s = V.get(8)
    tmp = V.get(8); tmp2 = V.get(8)
    m = V.mark()
    fn = V.get(); fb = V.get(); fq = V.get(); fi = V.get()
    sT = 24
    a(f"v_cvt_f32_u32 v{fi}, v{vi}")
    a(f"v_cvt_f32_u32 v{fq}, v{vq}")
    a(f"s_lshl_b32 s{sT}, s{S_W}, 4")
    a(f"v_cvt_f32_u32 v{t1}, s{sT}")
    a(f"v_add_f32 v{fn}, v{t1}, v{fi}")
    a(f"v_mul_f32 v{fb}, v{fn}, v{fq}")
    a(f"v_mul_f32 v{fb}, {fhex(0.125)}, v{fb}")
    def cs(C, S, N):
        for e in range(8): a(f"v_cos_f32 v{tmp2+e}, v{tmp+e}")
        for e in range(8): a(f"v_sin_f32 v{tmp+e}, v{tmp+e}")
        for j in range(4): a(f"v_cvt_pk_bf16_f32 v{C+j}, v{tmp2+2*j}, v{tmp2+2*j+1}")
        for j in range(4): a(f"v_cvt_pk_bf16_f32 v{S+j}, v{tmp+2*j}, v{tmp+2*j+1}")
        for j in range(4): a(f"v_xor_b32 v{N+j}, 0x80008000, v{S+j}")
    for ks in range(2):
        for e in range(8):
            a(f"v_fmamk_f32 v{tmp+e}, v{fn}, {fhex((32*ks+e)/64)}, v{fb}")
        cs(C64+4*ks, S64+4*ks, N64+4*ks)
    for t in range(2):
        a(f"v_add_f32 v{t1}, {fhex(16.0*t)}, v{fi}") if t else a(f"v_mov_b32 v{t1}, v{fi}")
        a(f"v_mul_f32 v{fb}, v{t1}, v{fq}")
        a(f"v_mul_f32 v{fb}, {fhex(0.125)}, v{fb}")
        for e in range(8):
            a(f"v_fmamk_f32 v{tmp+e}, v{t1}, {fhex((16*(e>>2)+(e&3))/32)}, v{fb}")
        cs(C32+4*t, S32+4*t, N32+4*t)
    a(f"v_mul_f32 v{fb}, v{fn}, v{fq}")
    a(f"v_mul_f32 v{fb}, {fhex(4/2048)}, v{fb}")
    for tb in range(2):
        for r in range(4):
            a(f"v_fmamk_f32 v{tmp+4*tb+r}, v{fn}, {fhex((16*tb+r)/2048)}, v{fb}")
    for e in range(8): a(f"v_cos_f32 v{tw1c+e}, v{tmp+e}")
    for e in range(8): a(f"v_sin_f32 v{tw1s+e}, v{tmp+e}")
    a(f"s_lshl_b32 s{sT}, s{S_W}, 4")
    a(f"v_cvt_f32_u32 v{t1}, s{sT}")
    a(f"v_fmamk_f32 v{t1}, v{fq}, {fhex(4.0)}, v{t1}")
    for tb in range(2):
        a(f"v_add_f32 v{t2}, {fhex(16.0*tb)}, v{fi}") if tb else a(f"v_mov_b32 v{t2}, v{fi}")
        a(f"v_mul_f32 v{t2}, {fhex(1/2048)}, v{t2}")
        a(f"v_mul_f32 v{fb}, v{t2}, v{t1}")
        for r in range(4):
            if r == 0: a(f"v_mov_b32 v{tmp+4*tb}, v{fb}")
            else: a(f"v_fmamk_f32 v{tmp+4*tb+r}, v{t2}, {fhex(float(r))}, v{fb}")
    for e in range(8): a(f"v_cos_f32 v{tw2c+e}, v{tmp+e}")
    for e in range(8): a(f"v_sin_f32 v{tw2s+e}, v{tmp+e}")
    for e in range(8): a(f"v_mul_f32 v{tw2c+e}, {fhex(1/2048)}, v{tw2c+e}")
    for e in range(8): a(f"v_mul_f32 v{tw2s+e}, {fhex(1/2048)}, v{tw2s+e}")
    V.release(m)
    return dict(vi=vi, vq=vq, t1=t1, t2=t2, C64=C64, S64=S64, N64=N64, C32=C32, S32=S32, N32=N32,
                tw1c=tw1c, tw1s=tw1s, tw2c=tw2c, tw2s=tw2s, tmp=tmp, tmp2=tmp2)

def fft_wt_load(g, V, st):
    a = g.a
    wt = V.get(8); t0 = V.get()
    srd(a, 16, P_WS, WT, WT_SZ)
    a(f"v_lshlrev_b32 v{t0}, 2, v{st['vi']}")
    a(f"v_add_u32 v{t0}, v{t0}, v{st['vq']}")
    a(f"v_lshlrev_b32 v{t0}, 5, v{t0}")
    a(f"s_lshl_b32 s24, s2, 13")
    a(f"s_lshl_b32 s25, s{S_W}, 11")
    a(f"s_add_u32 s24, s24, s25")
    a(f"buffer_load_dwordx4 {vr(wt,4)}, v{t0}, s[16:19], s24 offen{g.ld}")
    a(f"buffer_load_dwordx4 {vr(wt+4,4)}, v{t0}, s[16:19], s24 offen offset:16{g.ld}")
    st['wt'] = wt

def fft_main(g, V, st, XPin, SSin, XPout):
    a = g.a
    vi, vq, t0, t1 = st['vi'], st['vq'], st['t1'], st['t2']
    C64, S64, N64, C32, S32, N32 = (st[k] for k in ('C64', 'S64', 'N64', 'C32', 'S32', 'N32'))
    tw1c, tw1s, tw2c, tw2s, tmp, tmp2, wt = (st[k] for k in ('tw1c', 'tw1s', 'tw2c', 'tw2s', 'tmp', 'tmp2', 'wt'))
    sP, sQ, sT, sFlag = 28, 29, 24, 30
    srd(a, 8, P_WS, XPin, XP_SZ)
    srd(a, 12, P_WS, SSin, SS_SZ)
    a(f"s_lshl_b32 s{sP}, s2, 13")
    a(f"s_add_u32 s{sQ}, s{sP}, 4096")
    a(f"s_mov_b32 s{sFlag}, 1.0")
    a(f"s_cmp_lg_u32 s2, 0")
    a(f"s_cselect_b32 s{sP}, s{sP}, 4096")
    a(f"s_cselect_b32 s{sQ}, s{sQ}, 0")
    a(f"s_cselect_b32 s{sFlag}, s{sFlag}, 0")
    xr = V.get(4); xi = V.get(4); ss = V.get(64)
    off16 = V.get(); off32 = V.get()
    a(f"v_lshlrev_b32 v{off16}, 4, v0")
    a(f"v_lshlrev_b32 v{off32}, 5, v0")
    a(f"buffer_load_dwordx4 {vr(xr,4)}, v{off16}, s[8:11], s{sP} offen{g.ld}")
    a(f"buffer_load_dwordx4 {vr(xi,4)}, v{off16}, s[8:11], s{sQ} offen{g.ld}")
    a(f"s_mov_b32 s{sT}, 0")
    for p in range(8):
        a(f"buffer_load_dwordx4 {vr(ss+8*p,4)}, v{off32}, s[12:15], s{sT} offen{g.ld}")
        a(f"buffer_load_dwordx4 {vr(ss+8*p+4,4)}, v{off32}, s[12:15], s{sT} offen offset:16{g.ld}")
        if p < 7: a(f"s_add_u32 s{sT}, s{sT}, 8192")
    if getattr(g, 'fine', False): g.stamp("fft_iss")
    RS = 144; PS = 32 * RS
    XN, UX, ZX = 0, 2 * PS, 4 * PS
    ZRS = 272; ZPS = 32 * ZRS
    wad = V.get(); rad = V.get(); uad = V.get()
    a(f"v_lshrrev_b32 v{t0}, 3, v0")
    a(f"v_mul_u32_u24 v{wad}, {RS}, v{t0}")
    a(f"v_and_b32 v{t0}, 7, v0")
    a(f"v_lshl_add_u32 v{wad}, v{t0}, 4, v{wad}")
    a(f"v_mul_u32_u24 v{rad}, {RS}, v{vi}")
    a(f"v_lshl_add_u32 v{rad}, v{vq}, 4, v{rad}")
    a(f"v_mul_u32_u24 v{uad}, {RS}, v{vi}")
    a(f"v_lshl_add_u32 v{uad}, v{vq}, 3, v{uad}")
    a(f"s_lshl_b32 s{sT}, s{S_W}, 5")
    a(f"v_add_u32 v{uad}, s{sT}, v{uad}")
    for p in range(1, 8):
        a(f"s_waitcnt vmcnt({2*(7-p)})")
        for j in range(8):
            a(f"v_add_f32 v{ss+j}, v{ss+j}, v{ss+8*p+j}")
    for j in range(8): a(f"v_mul_f32 v{ss+j}, {fhex(1/512)}, v{ss+j}")
    for j in range(8): a(f"v_add_f32 v{ss+j}, {fhex(1e-5)}, v{ss+j}")
    for j in range(8): a(f"v_rsq_f32 v{ss+j}, v{ss+j}")
    for j in range(8): a(f"v_mul_f32 v{ss+8+j}, s{sFlag}, v{ss+j}")
    nx = ss + 16
    for pl, (x, rs) in enumerate(((xr, ss), (xi, ss + 8))):
        for j in range(4):
            a(f"v_lshlrev_b32 v{tmp+2*j}, 16, v{x+j}")
            a(f"v_and_b32 v{tmp+2*j+1}, 0xffff0000, v{x+j}")
        for j in range(8): a(f"v_mul_f32 v{tmp+j}, v{tmp+j}, v{rs+j}")
        for j in range(4): a(f"v_cvt_pk_bf16_f32 v{nx+4*pl+j}, v{tmp+2*j}, v{tmp+2*j+1}")
        a(f"ds_write_b128 v{wad}, {vr(nx+4*pl,4)} offset:{XN+pl*PS}")
    a("s_waitcnt lgkmcnt(0)")
    a("s_barrier")
    if getattr(g, 'fine', False): g.stamp("fft_norm")
    fr = ss + 32
    def frag(pl, tb, ks): return fr + ((pl * 2 + tb) * 2 + ks) * 4
    def read_frags(base):
        for ks in range(2):
            for pl in range(2):
                for tb in range(2):
                    a(f"ds_read_b128 {vr(frag(pl,tb,ks),4)}, v{rad} offset:{base + pl*PS + tb*16*RS + ks*64}")
    read_frags(XN)
    Tr = V.get(8); Ti = V.get(8)
    def mf(d, A, B, first=False): a(f"{M16} {vr(d,4)}, {vr(A,4)}, {vr(B,4)}, {'0' if first else vr(d,4)}")
    for ks in range(2):
        a(f"s_waitcnt lgkmcnt({4 if ks == 0 else 0})")
        for tb in range(2):
            mf(Tr+4*tb, frag(0,tb,ks), C64+4*ks, ks == 0)
            mf(Ti+4*tb, frag(1,tb,ks), C64+4*ks, ks == 0)
        for tb in range(2):
            mf(Tr+4*tb, frag(1,tb,ks), S64+4*ks)
            mf(Ti+4*tb, frag(0,tb,ks), N64+4*ks)
    def cmul_pack(Rr, Ri, cc, ssn, sign, Pr, Pi):
        for e in range(8):
            a(f"v_mul_f32 v{tmp+e}, v{Rr+e}, v{cc+e}")
            a(f"v_mul_f32 v{tmp2+e}, v{Ri+e}, v{cc+e}")
        for e in range(8):
            if sign > 0:
                a(f"v_fma_f32 v{tmp+e}, v{Ri+e}, v{ssn+e}, v{tmp+e}")
                a(f"v_fma_f32 v{tmp2+e}, -v{Rr+e}, v{ssn+e}, v{tmp2+e}")
            else:
                a(f"v_fma_f32 v{tmp+e}, -v{Ri+e}, v{ssn+e}, v{tmp+e}")
                a(f"v_fma_f32 v{tmp2+e}, v{Rr+e}, v{ssn+e}, v{tmp2+e}")
        for j in range(4):
            a(f"v_cvt_pk_bf16_f32 v{Pr+j}, v{tmp+2*j}, v{tmp+2*j+1}")
            a(f"v_cvt_pk_bf16_f32 v{Pi+j}, v{tmp2+2*j}, v{tmp2+2*j+1}")
    Pr = V.get(4); Pi = V.get(4)
    cmul_pack(Tr, Ti, tw1c, tw1s, +1, Pr, Pi)
    Yr = ss; Yi = ss + 8
    for td in range(2):
        mf(Yr+4*td, C32+4*td, Pr, True)
        mf(Yi+4*td, C32+4*td, Pi, True)
    for td in range(2):
        mf(Yr+4*td, S32+4*td, Pi)
        mf(Yi+4*td, N32+4*td, Pr)
    wr = Tr; wi = Ti
    for e in range(8):
        a(f"v_lshlrev_b32 v{wr+e}, 16, v{wt+e}")
        a(f"v_and_b32 v{wi+e}, 0xffff0000, v{wt+e}")
    cmul_pack(Yr, Yi, wr, wi, -1, Pr, Pi)
    Ur = Yr; Ui = Yi
    for tb in range(2):
        mf(Ur+4*tb, Pr, C32+4*tb, True)
        mf(Ui+4*tb, Pi, C32+4*tb, True)
    for tb in range(2):
        mf(Ur+4*tb, Pi, N32+4*tb)
        mf(Ui+4*tb, Pr, S32+4*tb)
    cmul_pack(Ur, Ui, tw2c, tw2s, -1, Pr, Pi)
    for tb in range(2):
        a(f"ds_write_b64 v{uad}, {vr(Pr+2*tb,2)} offset:{UX + tb*16*RS}")
        a(f"ds_write_b64 v{uad}, {vr(Pi+2*tb,2)} offset:{UX + PS + tb*16*RS}")
    a("s_waitcnt lgkmcnt(0)")
    a("s_barrier")
    if getattr(g, 'fine', False): g.stamp("fft_s3")
    read_frags(UX)
    Zr = Tr; Zi = Ti
    for ks in range(2):
        a(f"s_waitcnt lgkmcnt({4 if ks == 0 else 0})")
        for tb in range(2):
            mf(Zr+4*tb, C64+4*ks, frag(0,tb,ks), ks == 0)
            mf(Zi+4*tb, C64+4*ks, frag(1,tb,ks), ks == 0)
        for tb in range(2):
            mf(Zr+4*tb, N64+4*ks, frag(1,tb,ks))
            mf(Zi+4*tb, S64+4*ks, frag(0,tb,ks))
    zad = V.get()
    a(f"v_mul_u32_u24 v{zad}, {ZRS}, v{vi}")
    a(f"v_lshl_add_u32 v{zad}, v{vq}, 4, v{zad}")
    a(f"s_lshl_b32 s{sT}, s{S_W}, 6")
    a(f"v_add_u32 v{zad}, s{sT}, v{zad}")
    for pl, Z in enumerate((Zr, Zi)):
        for tb in range(2):
            a(f"ds_write_b128 v{zad}, {vr(Z+4*tb,4)} offset:{ZX + pl*ZPS + tb*16*ZRS}")
    a("s_waitcnt lgkmcnt(0)")
    a("s_barrier")
    a(f"v_lshrrev_b32 v{t0}, 3, v0")
    a(f"v_mul_u32_u24 v{zad}, {ZRS}, v{t0}")
    a(f"v_and_b32 v{t0}, 7, v0")
    a(f"v_lshl_add_u32 v{zad}, v{t0}, 5, v{zad}")
    zz = ss + 16
    for pl in range(2):
        a(f"ds_read_b128 {vr(zz+8*pl,4)}, v{zad} offset:{ZX + pl*ZPS}")
        a(f"ds_read_b128 {vr(zz+8*pl+4,4)}, v{zad} offset:{ZX + pl*ZPS + 16}")
    srd(a, 8, P_WS, XPout, XP_SZ)
    for pl, x in enumerate((xr, xi)):
        for j in range(4):
            a(f"v_lshlrev_b32 v{tmp+2*j}, 16, v{x+j}")
            a(f"v_and_b32 v{tmp+2*j+1}, 0xffff0000, v{x+j}")
        a(f"s_waitcnt lgkmcnt({2 if pl == 0 else 0})")
        for j in range(8):
            if pl == 0: a(f"v_add_f32 v{tmp+j}, v{tmp+j}, v{zz+j}")
            else: a(f"v_fma_f32 v{tmp+j}, v{zz+8+j}, s{sFlag}, v{tmp+j}")
        o = tmp2 + 4 * pl
        for j in range(4): a(f"v_cvt_pk_bf16_f32 v{o+j}, v{tmp+2*j}, v{tmp+2*j+1}")
        a(f"buffer_store_dwordx4 {vr(o,4)}, v{off16}, s[8:11], s{sP if pl == 0 else sQ} offen{g.st}")

S_RT, S_CG, S_KK = 32, 33, 34
def g4_map(g, skip_label):
    a = g.a
    a(f"s_min_u32 s24, s{S_X}, 2")
    a(f"s_mul_i32 s25, s{S_X}, 30")
    a(f"s_add_u32 s25, s25, s24")
    a(f"s_cmp_lt_u32 s{S_X}, 2")
    a(f"s_cselect_b32 s24, 31, 30")
    a(f"s_cmp_ge_u32 s{S_L}, s24")
    a(f"s_cbranch_scc1 {skip_label}")
    a(f"s_add_u32 s25, s25, s{S_L}")
    a(f"s_cmp_ge_u32 s25, 121")
    a(f"s_cselect_b32 s24, 121, 0")
    a(f"s_cselect_b32 s{S_RT}, 11, 0")
    a(f"s_sub_u32 s25, s25, s24")
    a(f"s_mul_hi_u32 s{S_CG}, s25, 0x1745D175")
    a(f"s_mul_i32 s24, s{S_CG}, 11")
    a(f"s_sub_u32 s25, s25, s24")
    a(f"s_add_u32 s{S_RT}, s{S_RT}, s25")
    a(f"s_lshl_b32 s{S_KK}, s{S_CG}, 2")
    a(f"s_add_u32 s{S_KK}, s{S_KK}, s{S_W}")

def g4_weights(g, V, j0=0, j1=32):
    a = g.a
    m = V.mark()
    l16 = V.get()
    srd(a, 16, P_WS, WGU, WGU_SZ)
    a(f"v_lshlrev_b32 v{l16}, 4, v{V_LANE}")
    n = 0
    for gq in range(j0 // 8, (j1 + 7) // 8):
        a(f"s_add_u32 s24, s{S_W}, {gq}")
        a(f"s_and_b32 s24, s24, 3")
        a(f"s_lshl_b32 s24, s24, 13")
        a(f"s_lshl_b32 s25, s{S_KK}, 16")
        a(f"s_add_u32 s25, s25, s24")
        for jj in range(8):
            j = gq * 8 + jj
            if j < j0 or j >= j1: continue
            for p in range(2):
                a(f"s_add_u32 s24, s25, {p*32768 + (jj>>2)*4096}")
                a(f"buffer_load_dwordx4 {vr((2*j+p)*4,4,'a')}, v{l16}, s[16:19], s24 offen offset:{(jj&3)*1024}{g.ld}")
                n += 1
    V.release(m)
    return n

def g4_main(g, V, XPin, Hout):
    a = g.a
    TOK = 32768; SSL = 98304
    srd(a, 8, P_WS, XPin, XP_SZ)
    srd(a, 12, P_WS, Hout, H_SZ)
    t0 = V.get(); t1 = V.get(); dv = V.get(); l16 = V.get()
    sNT, sXo, sM0 = 35, 36, 37
    a(f"s_cmp_eq_u32 s{S_RT}, 21")
    a(f"s_cselect_b32 s{sNT}, 1, 3")
    a(f"v_lshrrev_b32 v{t0}, 2, v{V_LANE}")
    a(f"v_lshlrev_b32 v{dv}, 12, v{t0}")
    a(f"v_and_b32 v{t0}, 3, v{V_LANE}")
    a(f"v_lshl_add_u32 v{dv}, v{t0}, 4, v{dv}")
    a(f"v_lshlrev_b32 v{l16}, 4, v{V_LANE}")
    a(f"s_mul_i32 s{sXo}, s{S_RT}, 192")
    a(f"s_lshl_b32 s24, s{S_W}, 19")
    a(f"s_add_u32 s{sXo}, s{sXo}, s24")
    a(f"s_lshl_b32 s{sM0}, s{S_W}, 13")
    def dma_tile(t):
        for mm in range(8):
            a(f"s_add_u32 m0, s{sM0}, {t*TOK + mm*1024}")
            a(f"s_add_u32 s24, s{sXo}, {mm*65536 + t*64}")
            a(f"buffer_load_dwordx4 v{dv}, s[8:11], s24 offen{g.ld} lds")
    dma_tile(0)
    Lone = g.lab("g4_one")
    a(f"s_cmp_eq_u32 s{sNT}, 1")
    a(f"s_cbranch_scc1 {Lone}")
    dma_tile(1); dma_tile(2)
    a.label(Lone)
    ad = V.get(4, 1)
    a(f"v_and_b32 v{t0}, 15, v{V_LANE}")
    a(f"v_lshrrev_b32 v{t1}, 2, v{t0}")
    a(f"v_lshl_add_u32 v{t1}, v{V_HH}, 2, v{t1}")
    a(f"v_lshlrev_b32 v{t1}, 6, v{t1}")
    a(f"v_and_b32 v{t0}, 3, v{t0}")
    a(f"v_lshl_add_u32 v{t1}, v{t0}, 3, v{t1}")
    a(f"v_lshrrev_b32 v{t0}, 4, v{V_LANE}")
    a(f"v_and_b32 v{t0}, 1, v{t0}")
    a(f"v_lshl_add_u32 v{t1}, v{t0}, 5, v{t1}")
    for gq in range(4):
        a(f"s_add_u32 s24, s{S_W}, {gq}")
        a(f"s_and_b32 s24, s24, 3")
        a(f"s_lshl_b32 s24, s24, 13")
        a(f"v_add_u32 v{ad+gq}, s24, v{t1}")
    NR = 4
    fr = V.get(4 * NR)
    acc = V.get(64)
    ssa = V.get(2); u = V.get(4); msk = V.get(); sad = V.get(); srd_ = V.get()
    kc = V.get(6); sv = V.get(8); et = V.get(24); hb = V.get(8)
    a(f"v_cmp_eq_u32 vcc, 0, v{V_HH}")
    a(f"s_cmp_eq_u32 s{S_W}, 0")
    a(f"s_cselect_b64 s[26:27], vcc, 0")
    a(f"v_cndmask_b32 v{msk}, 1.0, 0, s[26:27]")
    a(f"v_lshlrev_b32 v{srd_}, 5, v{V_L31}")
    a(f"v_add_u32 v{srd_}, {SSL}, v{srd_}")
    a(f"v_lshl_add_u32 v{sad}, v{V_HH}, 2, v{srd_}")
    a(f"s_lshl_b32 s24, s{S_W}, 3")
    a(f"v_add_u32 v{sad}, s24, v{sad}")
    a(f"s_cmp_ge_u32 s{S_KK}, 43")
    a(f"s_cselect_b32 s38, 0x7f000000, 0")
    c0 = -2.0 * math.sqrt(2.0 / math.pi) * math.log2(math.e); c1 = c0 * 0.044715
    lg = Cnt(a, "lgkmcnt", 15)
    def epi_ops(t):
        ops = []
        A0 = acc + (t & 1) * 32
        ops.append(("ds", f"ds_read_b128 {vr(sv,4)}, v{srd_} offset:{t*1024}"))
        ops.append(("ds", f"ds_read_b128 {vr(sv+4,4)}, v{srd_} offset:{t*1024+16}"))
        ops.append(("waitds", None))
        for j in range(4): ops.append(f"v_add_f32 v{sv+j}, v{sv+j}, v{sv+4+j}")
        ops.append(f"v_add_f32 v{sv}, v{sv}, v{sv+1}")
        ops.append(f"v_add_f32 v{sv+2}, v{sv+2}, v{sv+3}")
        ops.append(f"v_add_f32 v{sv}, v{sv}, v{sv+2}")
        ops.append(f"v_mul_f32 v{sv}, {fhex(1/512)}, v{sv}")
        ops.append(f"v_add_f32 v{kc+4}, {fhex(1e-5)}, v{sv}")
        ops.append(f"v_rsq_f32 v{sv+1}, v{kc+4}")
        ops.append(f"v_mul_f32 v{kc}, {fhex(c0)}, v{sv+1}")
        ops.append(f"v_mul_f32 v{sv+2}, v{sv+1}, v{sv+1}")
        ops.append(f"v_mul_f32 v{sv+2}, v{sv+2}, v{sv+1}")
        ops.append(f"v_mul_f32 v{kc+2}, {fhex(c1)}, v{sv+2}")
        k0 = vr(kc, 2); k1 = vr(kc+2, 2); ir = vr(kc+4, 2)
        for i in range(8):
            gg = vr(A0 + 2*i, 2); uu = vr(A0 + 16 + 2*i, 2)
            tq = et + (i % 4) * 6
            T1 = vr(tq, 2); T2 = vr(tq+2, 2); T3 = vr(tq+4, 2)
            ops += [f"v_pk_mul_f32 {T1}, {gg}, {gg}",
                    f"v_pk_mul_f32 {T3}, {gg}, {uu}",
                    f"v_pk_fma_f32 {T1}, {T1}, {k1}, {k0} op_sel_hi:[1,0,0]",
                    f"v_pk_mul_f32 {T1}, {T1}, {gg}",
                    f"v_exp_f32 v{tq+2}, v{tq}",
                    f"v_exp_f32 v{tq+3}, v{tq+1}",
                    f"v_pk_fma_f32 {T2}, {T2}, {ir}, {ir} op_sel_hi:[1,0,0]",
                    f"v_rcp_f32 v{tq+2}, v{tq+2}",
                    f"v_rcp_f32 v{tq+3}, v{tq+3}",
                    f"v_pk_mul_f32 {T3}, {T3}, {T2}",
                    f"v_cvt_pk_bf16_f32 v{hb+i}, v{tq+4}, v{tq+5}"]
            if i == 3 or i == 7:
                f = i // 4
                ops.append(f"s_mul_i32 s24, s{S_RT}, {3*86*1024}")
                ops.append(f"s_lshl_b32 s25, s{S_KK}, 11")
                ops.append(f"s_add_u32 s24, s24, s25")
                ops.append(f"s_add_u32 s24, s24, s38")
                ops.append(f"s_add_u32 s24, s24, {(t*86 + f)*1024}")
                ops.append(f"buffer_store_dwordx4 {vr(hb+4*f,4)}, v{l16}, s[12:15], s24 offen{g.st}")
        return ops
    def emit_op(o):
        if isinstance(o, tuple):
            if o[0] == "ds": o_t = lg.issue(o[1]); state['dst'] = o_t
            elif o[0] == "waitds": lg.wait(state['dst'])
        else: a(o)
    state = {}
    def reads(t, j):
        gq = j >> 3
        r = []
        for rd in range(2):
            off = t*TOK + (j & 7)*1024 + rd*512
            r.append((fr + (j % NR)*4 + 2*rd, ad + gq, off))
        return r
    Ldone = g.lab("g4_done")
    for t in range(3):
        if t == 2:
            for gq in range(4): a(f"v_add_u32 v{ad+gq}, {TOK}, v{ad+gq}")
        toff = 0 if t < 2 else -TOK
        if t == 0:
            a(f"s_waitcnt vmcnt(16)") if True else None
            Lw = g.lab("g4_w1")
            a(f"s_cmp_eq_u32 s{sNT}, 3")
            a(f"s_cbranch_scc1 {Lw}")
            a("s_waitcnt vmcnt(0)")
            a.label(Lw)
        elif t == 1:
            a(f"s_cmp_eq_u32 s{sNT}, 1")
            a(f"s_cbranch_scc1 {Ldone}_1")
            a("s_waitcnt vmcnt(8)")
        else:
            a("s_waitcnt vmcnt(2)")
        a("s_barrier")
        if getattr(g, 'fine', False): g.stamp(f"g4p{t}")
        lg = Cnt(a, "lgkmcnt", 15)
        tick = {}
        def issue_reads(j):
            for (dst, areg, off) in reads(t, j):
                tick[j] = lg.issue(f"ds_read_b64_tr_b16 {vr(dst,2)}, v{areg} offset:{off+toff}")
        PF = 3
        for j in range(PF): issue_reads(j)
        epi = epi_ops(t - 1) if t > 0 else []
        a(f"v_mov_b32 v{ssa}, 0")
        a(f"v_mov_b32 v{ssa+1}, 0")
        A0 = acc + (t & 1) * 32
        for j in range(32):
            lg.wait(tick[j])
            f = fr + (j % NR) * 4
            st_ops = []
            if j < 8:
                for dw in range(4):
                    lo, hi = (u, u+1) if dw % 2 == 0 else (u+2, u+3)
                    st_ops.append(f"v_lshlrev_b32 v{lo}, 16, v{f+dw}")
                    st_ops.append(f"v_and_b32 v{hi}, 0xffff0000, v{f+dw}")
                    if j == 0 and dw == 0: st_ops.append(f"v_mul_f32 v{lo}, v{lo}, v{msk}")
                    st_ops.append(f"v_fmac_f32 v{ssa}, v{lo}, v{lo}")
                    st_ops.append(f"v_fmac_f32 v{ssa+1}, v{hi}, v{hi}")
            for p in range(2):
                d = A0 + 16*p
                c = "0" if j == 0 else vr(d, 16)
                a(f"{M32} {vr(d,16)}, {vr((2*j+p)*4,4,'a')}, {vr(f,4)}, {c}")
                if p == 0 and j + PF < 32: issue_reads(j + PF)
                if j < 8:
                    for _ in range(8 if p == 0 else 20):
                        if st_ops: a(st_ops.pop(0))
                else:
                    for _ in range(3):
                        if epi: emit_op(epi.pop(0))
            if j == 8:
                a(f"v_add_f32 v{ssa}, v{ssa}, v{ssa+1}")
                lg.issue(f"ds_write_b32 v{sad}, v{ssa} offset:{t*1024}")
        while epi: emit_op(epi.pop(0))
    a("s_waitcnt lgkmcnt(0)")
    a("s_barrier")
    if getattr(g, 'fine', False): g.stamp(f"g4p3")
    lg = Cnt(a, "lgkmcnt", 15)
    for o in epi_ops(2): emit_op(o)
    a(f"s_branch {Ldone}")
    a.label(f"{Ldone}_1")
    a("s_waitcnt lgkmcnt(0)")
    a("s_barrier")
    lg = Cnt(a, "lgkmcnt", 15)
    for o in epi_ops(0): emit_op(o)
    a.label(Ldone)

S_R64, S_SG, S_K0, S_NK = 40, 41, 42, 43
NKMAX = 22
def g5_map(g):
    a = g.a
    a(f"s_lshr_b32 s24, s{S_L}, 3")
    a(f"s_lshl_b32 s{S_R64}, s{S_X}, 2")
    a(f"s_add_u32 s{S_R64}, s{S_R64}, s24")
    a(f"s_and_b32 s{S_SG}, s{S_L}, 7")
    a(f"s_mul_i32 s{S_K0}, s{S_W}, 22")
    a(f"s_cmp_eq_u32 s{S_W}, 3")
    a(f"s_cselect_b32 s24, 1, 0")
    a(f"s_sub_u32 s{S_K0}, s{S_K0}, s24")

ACC5 = 176
def g5_weights(g, V, final):
    a = g.a
    m = V.mark()
    vo = V.get()
    srd(a, 16, P_WS, WDF if final else WDP, WDP_SZ)
    if final:
        a(f"s_lshl_b32 s24, s{S_W}, 3")
        a(f"v_xor_b32 v{vo}, s24, v{V_LANE}")
        a(f"v_lshlrev_b32 v{vo}, 4, v{vo}")
    else:
        a(f"v_lshlrev_b32 v{vo}, 4, v{V_LANE}")
    a(f"s_mul_i32 s25, s{S_SG}, {2*86*1024}")
    a(f"s_lshl_b32 s24, s{S_K0}, 10")
    a(f"s_add_u32 s25, s25, s24")
    def step(i):
        for tile in range(2):
            a(f"s_add_u32 s24, s25, {tile*86*1024 + (i>>2)*4096}")
            a(f"buffer_load_dwordx4 {vr((i*2+tile)*4,4,'a')}, v{vo}, s[16:19], s24 offen offset:{(i&3)*1024}{g.ld}")
    for i in range(21): step(i)
    L = g.lab("g5w")
    a(f"s_cmp_ge_u32 s{S_W}, 2")
    a(f"s_cbranch_scc1 {L}")
    step(21)
    a.label(L)
    V.release(m)

def g5_resid_load(g, V, XPres):
    a = g.a
    res = V.get(8); vo = V.get()
    srd(a, 12, P_WS, XPres, XP_SZ)
    a(f"v_lshlrev_b32 v{vo}, 12, v{V_L31}")
    a(f"v_lshl_add_u32 v{vo}, v{V_HH}, 3, v{vo}")
    a(f"s_lshl_b32 s24, s{S_SG}, 18")
    a(f"s_lshl_b32 s25, s{S_R64}, 7")
    a(f"s_add_u32 s24, s24, s25")
    a(f"s_lshl_b32 s25, s{S_W}, 4")
    a(f"s_add_u32 s24, s24, s25")
    for tr in range(2):
        for tc in range(2):
            a(f"s_add_u32 s25, s24, {tc*32*4096}")
            a(f"buffer_load_dwordx2 {vr(res+(2*tr+tc)*2,2)}, v{vo}, s[12:15], s25 offen offset:{tr*64}{g.ld}")
    return res

STG7 = 65536
def g7_gpart(g, V, XPin):
    a = g.a
    m = V.mark()
    GA = V.get(64); B = V.get(64); vo = V.get(); dv = V.get(); ad = V.get(); t = V.get()
    srd(a, 8, P_WS, XPin, XP_SZ)
    srd(a, 12, P_WS, GF, GF_SZ)
    a(f"v_lshrrev_b32 v{t}, 2, v{V_LANE}")
    a(f"v_lshlrev_b32 v{dv}, 12, v{t}")
    a(f"v_and_b32 v{t}, 3, v{V_LANE}")
    a(f"v_lshl_add_u32 v{dv}, v{t}, 4, v{dv}")
    a(f"s_lshl_b32 s25, s{S_W}, 19")
    a(f"s_lshl_b32 s24, s{S_R64}, 7")
    a(f"s_add_u32 s25, s25, s24")
    a(f"s_lshl_b32 s26, s{S_W}, 14")
    a(f"s_add_u32 s26, s26, {STG7}")
    for tc in range(2):
        for mm in range(8):
            a(f"s_add_u32 m0, s26, {tc*8192 + mm*1024}")
            a(f"s_add_u32 s24, s25, {mm*65536 + tc*64}")
            a(f"buffer_load_dwordx4 v{dv}, s[8:11], s24 offen{g.ld} lds")
    a(f"s_lshl_b32 s24, s{S_W}, 3")
    a(f"v_xor_b32 v{vo}, s24, v{V_LANE}")
    a(f"v_lshlrev_b32 v{vo}, 4, v{vo}")
    a(f"s_lshl_b32 s25, s{S_SG}, 16")
    a(f"s_lshl_b32 s24, s{S_W}, 13")
    a(f"s_add_u32 s25, s25, s24")
    for tr in range(2):
        for i in range(8):
            a(f"s_add_u32 s24, s25, {tr*32768 + (i>>2)*4096}")
            a(f"buffer_load_dwordx4 {vr(GA+(tr*8+i)*4,4)}, v{vo}, s[12:15], s24 offen offset:{(i&3)*1024}{g.ld}")
    a(f"v_and_b32 v{t}, 15, v{V_LANE}")
    a(f"v_lshrrev_b32 v{ad}, 2, v{t}")
    a(f"v_lshl_add_u32 v{ad}, v{V_HH}, 2, v{ad}")
    a(f"v_lshlrev_b32 v{ad}, 6, v{ad}")
    a(f"v_and_b32 v{t}, 3, v{t}")
    a(f"v_lshl_add_u32 v{ad}, v{t}, 3, v{ad}")
    a(f"v_lshrrev_b32 v{t}, 4, v{V_LANE}")
    a(f"v_and_b32 v{t}, 1, v{t}")
    a(f"v_lshl_add_u32 v{ad}, v{t}, 5, v{ad}")
    a(f"v_add_u32 v{ad}, s26, v{ad}")
    a("s_waitcnt vmcnt(16)")
    for tc in range(2):
        for i in range(8):
            for rd in range(2):
                a(f"ds_read_b64_tr_b16 {vr(B+(tc*8+i)*4+2*rd,2)}, v{ad} offset:{tc*8192 + i*1024 + rd*512}")
    a("s_waitcnt vmcnt(0) lgkmcnt(0)")
    for i in range(8):
        for tr in range(2):
            for tc in range(2):
                d = ACC5 + (2*tr+tc)*16
                c = "0" if i == 0 else vr(d, 16, 'a')
                a(f"{M32} {vr(d,16,'a')}, {vr(GA+(tr*8+i)*4,4)}, {vr(B+(tc*8+i)*4,4)}, {c}")
    V.release(m)

def g5_main(g, V, Hin, final, res=None, XPout=None, SSout=None):
    a = g.a
    srd(a, 8, P_WS, Hin, H_SZ)
    Hf = V.get(176); vo = V.get()
    if final:
        a(f"v_lshlrev_b32 v{vo}, 4, v{V_LANE}")
    else:
        a(f"s_lshl_b32 s24, s{S_W}, 3")
        a(f"v_xor_b32 v{vo}, s24, v{V_LANE}")
        a(f"v_lshlrev_b32 v{vo}, 4, v{vo}")
    a(f"s_mul_i32 s25, s{S_R64}, {2*86*1024}")
    a(f"s_lshl_b32 s24, s{S_K0}, 10")
    a(f"s_add_u32 s25, s25, s24")
    vm = Cnt(a, "vmcnt", 63)
    tk = {}
    def ld(i):
        for tile in range(2):
            a(f"s_add_u32 s24, s25, {tile*86*1024 + (i>>2)*4096}")
            tk[i] = vm.issue(f"buffer_load_dwordx4 {vr(Hf+(i*2+tile)*4,4)}, v{vo}, s[8:11], s24 offen offset:{(i&3)*1024}{g.ld}")
    def mm(i):
        for tr in range(2):
            for tc in range(2):
                d = ACC5 + (2*tr+tc)*16
                c = "0" if (i == 0 and not final) else vr(d, 16, 'a')
                if final: A = vr((i*2+tr)*4, 4, 'a'); B = vr(Hf+(i*2+tc)*4, 4)
                else: A = vr(Hf+(i*2+tr)*4, 4); B = vr((i*2+tc)*4, 4, 'a')
                a(f"{M32} {vr(d,16,'a')}, {A}, {B}, {c}")
    for i in range(21): ld(i)
    L = g.lab("g5l")
    a(f"s_cmp_ge_u32 s{S_W}, 2")
    a(f"s_cbranch_scc1 {L}")
    for tile in range(2):
        a(f"s_add_u32 s24, s25, {tile*86*1024 + (21>>2)*4096}")
        a(f"buffer_load_dwordx4 {vr(Hf+(21*2+tile)*4,4)}, v{vo}, s[8:11], s24 offen offset:{(21&3)*1024}{g.ld}")
    a.label(L)
    if getattr(g, 'fine', False): g.stamp("g5_iss")
    for i in range(21):
        out = vm.n - tk[i]
        a(f"s_waitcnt vmcnt({min(out,63)})")
        mm(i)
    if getattr(g, 'fine', False): g.stamp("g5_mm")
    L2 = g.lab("g5m")
    a(f"s_cmp_ge_u32 s{S_W}, 2")
    a(f"s_cbranch_scc1 {L2}")
    a("s_waitcnt vmcnt(0)")
    mm(21)
    a.label(L2)
    Hm = Hf
    reduce_write(g, V, lambda k, grp: ACC5 + k*16 + grp*4, 'a', 'g')
    a("s_waitcnt lgkmcnt(0)")
    a("s_barrier")
    part = Hf; val = Hf + 48; own = Hf + 64
    if getattr(g, 'fine', False): g.stamp("g5_rw")
    reduce_read(g, V, part)
    for k in range(4):
        for t in range(4):
            a(f"v_accvgpr_read_b32 v{own+4*k+t}, a{ACC5+k*16+t}")
    if not final:
        rx = Hf + 80
        for k in range(4):
            for j in range(2):
                a(f"v_lshlrev_b32 v{rx+4*k+2*j}, 16, v{res+2*k+j}")
                a(f"v_and_b32 v{rx+4*k+2*j+1}, 0xffff0000, v{res+2*k+j}")
        for r in range(16): a(f"v_add_f32 v{own+r}, v{own+r}, v{rx+r}")
    a("s_waitcnt lgkmcnt(0)")
    for r in range(16):
        a(f"v_add_f32 v{val+r}, v{own+r}, v{part+r}")
        a(f"v_add_f32 v{part+16+r}, v{part+16+r}, v{part+32+r}")
    for r in range(16): a(f"v_add_f32 v{val+r}, v{val+r}, v{part+16+r}")
    V2 = Alloc(Hf + 96, Hf + 176)
    if not final:
        a(f"s_lshl_b32 s28, s{S_R64}, 6")
        stats_out(g, V2, val, S_SG, 28, SSout, None)
        planes_out(g, V2, val, S_R64, S_SG, XPout, OT=49152)
    else:
        srd(a, 8, P_OUT, 0, 2048 * 512 * 2)
        def rowfn():
            vo2 = V2.get(); t = V2.get()
            a(f"v_lshrrev_b32 v{t}, 3, v0")
            a(f"v_lshlrev_b32 v{vo2}, 15, v{t}")
            a(f"v_and_b32 v{t}, 7, v0")
            a(f"v_lshl_add_u32 v{vo2}, v{t}, 4, v{vo2}")
            a(f"s_lshl_b32 s24, s{S_R64}, 10")
            a(f"s_lshl_b32 s25, s{S_SG}, 7")
            a(f"s_add_u32 s24, s24, s25")
            a(f"s_add_u32 s25, s24, {32*32768}")
            return vo2, ["s24", "s25"], ""
        epi_out(g, V2, val, 49152, 8, rowfn)

NINIT = 20
RF = SYNC + 16384
SYNC_SZ = NINIT * 1024
SPIN_MAX = 1 << 20
def sync_init(g):
    a = g.a
    L = g.lab("noinit")
    a(f"s_cmp_ge_u32 s2, {NINIT}")
    a(f"s_cbranch_scc1 {L}")
    a(f"s_cmp_lg_u32 s{S_W}, 0")
    a(f"s_cbranch_scc1 {L}")
    srd(a, 8, P_WS, SYNC, SYNC_SZ)
    for i in range(4): a(f"v_mov_b32 v{8+i}, 0")
    a(f"v_lshlrev_b32 v4, 4, v{V_LANE}")
    a(f"s_lshl_b32 s24, s2, 10")
    a(f"buffer_store_dwordx4 v[8:11], v4, s[8:11], s24 offen sc0 sc1")
    a("s_waitcnt vmcnt(0)")
    srd(a, 8, P_DBG, 0, 256)
    a("v_mov_b32 v8, 1")
    a("v_mov_b32 v4, 0")
    a("s_mov_b64 exec, 1")
    a("buffer_atomic_add v8, v4, s[8:11], 0 offen sc1")
    a("s_mov_b64 exec, -1")
    a.label(L)

def poll(g, srdreg, vaddr, vdata, nlanes, target, soff="0"):
    a = g.a
    Lp = g.lab("poll"); Ld = g.lab("polld")
    a(f"s_mov_b64 exec, {hex((1 << nlanes) - 1)}")
    a(f"s_mov_b32 s31, 0")
    a.label(Lp)
    a(f"buffer_load_dword v{vdata}, v{vaddr}, s[{srdreg}:{srdreg+3}], {soff} offen sc0 sc1")
    a(f"s_add_u32 s31, s31, 1")
    a("s_waitcnt vmcnt(0)")
    a(f"v_cmp_le_u32 vcc, {target}, v{vdata}")
    a(f"s_cmp_eq_u64 vcc, exec")
    a(f"s_cbranch_scc1 {Ld}")
    a(f"s_cmp_lt_u32 s31, {SPIN_MAX}")
    a(f"s_cbranch_scc1 {Lp}")
    a.label(Ld)
    a("s_mov_b64 exec, -1")

def arrive(g, b, vt, first=False):
    a = g.a
    L = g.lab("arr")
    a("s_waitcnt vmcnt(0) lgkmcnt(0)")
    a("s_barrier")
    a(f"s_cmp_lg_u32 s{S_W}, 0")
    a(f"s_cbranch_scc1 {L}")
    if first:
        srd(a, 4, P_DBG, 0, 256)
        a(f"v_mov_b32 v{vt}, 0")
        poll(g, 4, vt, vt + 1, 1, NINIT)
    srd(a, 4, P_WS, SYNC, SYNC_SZ)
    a(f"v_lshlrev_b32 v{vt}, 3, v{V_LANE}")
    a(f"v_add_u32 v{vt}, s{S_X}, v{vt}")
    a(f"v_lshlrev_b32 v{vt}, 7, v{vt}")
    a(f"v_mov_b32 v{vt+1}, 1")
    a(f"s_mov_b64 exec, 0xffff")
    a(f"buffer_atomic_add v{vt+1}, v{vt}, s[4:7], 0 offen offset:{4*b} sc1")
    a(f"s_mov_b64 exec, -1")
    a.label(L)

def wait(g, b, vt):
    a = g.a
    L = g.lab("wt")
    a(f"s_cmp_lg_u32 s{S_W}, 0")
    a(f"s_cbranch_scc1 {L}")
    srd(a, 4, P_WS, SYNC + 4 * b, SYNC_SZ - 4 * b)
    a(f"s_and_b32 s24, s{S_L}, 15")
    a(f"s_lshl_b32 s24, s24, 3")
    a(f"v_add_u32 v{vt}, s24, v{V_LANE}")
    a(f"v_lshlrev_b32 v{vt}, 7, v{vt}")
    poll(g, 4, vt, vt + 1, 8, 32)
    a.label(L)
    a("s_barrier")

def arrive_row(g, ph, vt):
    a = g.a
    L = g.lab("arr")
    a("s_waitcnt vmcnt(0) lgkmcnt(0)")
    a("s_barrier")
    a(f"s_cmp_lg_u32 s{S_W}, 0")
    a(f"s_cbranch_scc1 {L}")
    srd(a, 4, P_WS, RF, 4096)
    a(f"s_lshl_b32 s24, s{S_RT}, 7")
    a(f"v_mov_b32 v{vt}, 0")
    a(f"v_mov_b32 v{vt+1}, 1")
    a(f"s_mov_b64 exec, 1")
    a(f"buffer_atomic_add v{vt+1}, v{vt}, s[4:7], s24 offen offset:{4*ph} sc1")
    a(f"s_mov_b64 exec, -1")
    a.label(L)

def wait_row(g, ph, vt):
    a = g.a
    L = g.lab("wt")
    a(f"s_cmp_lg_u32 s{S_W}, 0")
    a(f"s_cbranch_scc1 {L}")
    srd(a, 4, P_WS, RF + 4 * ph, 4096 - 4 * ph)
    a(f"s_lshl_b32 s24, s{S_R64}, 1")
    a(f"v_add_u32 v{vt}, s24, v{V_LANE}")
    a(f"v_mul_u32_u24 v{vt}, 43691, v{vt}")
    a(f"v_lshrrev_b32 v{vt}, 17, v{vt}")
    a(f"v_lshlrev_b32 v{vt}, 7, v{vt}")
    poll(g, 4, vt, vt + 1, 2, 11)
    a.label(L)
    a("s_barrier")
```

```python
import sys
from mega import *
prof = "prof" in sys.argv
upto = 99
for x in sys.argv[1:]:
    if x.startswith("upto="): upto = int(x[5:])

g = G(pers=True, prof=prof)
g.fine = "fine" in sys.argv
a = g.a
name = NAME + "_kernel"
a("s_cmp_ge_u32 s2, 256")
a("s_cbranch_scc1 L_end")
g.prologue()
g.stamp("start")
sync_init(g)
VT = 250 if not prof else 250
g.vlimit = 250
hi = 0
def done(V):
    global hi
    hi = max(hi, V.hi)

V = g.V()
sRT, sSG, sKK = 44, 45, 46
a(f"s_lshr_b32 s24, s{S_L}, 3")
a(f"s_lshl_b32 s{sRT}, s{S_X}, 2")
a(f"s_add_u32 s{sRT}, s{sRT}, s24")
a(f"s_and_b32 s{sSG}, s{S_L}, 7")
Ff = V.get(64)
m0 = V.mark()
j4 = job4_issue(g, V)
j1 = job1(g, V, Ff, sRT, sSG)
a(f"s_mov_b32 s{sKK}, s{sRT}")
job3_issue(g, V, sKK)
gen_F(g, V, Ff, sSG)
a("s_waitcnt vmcnt(32)")
job4_store(g, V, j4)
a("s_waitcnt vmcnt(18)")
n0 = len(a.items)
job1_main(g, V, Ff, sRT, sSG, j1)
for i in range(n0, len(a.items)):
    it = a.items[i]
    if not isinstance(it, str) and it.op == 's_waitcnt' and 'vmcnt(0)' in it.text:
        del a.items[i]; break
V.release(m0)
g.stamp("job1")
arrive(g, 0, VT, first=True)
swap_F(g, Ff)
job3_main(g, V, Ff, sKK, sSG)
L = g.lab("no3b")
a(f"s_add_u32 s{sKK}, s{sRT}, 32")
a(f"s_cmp_ge_u32 s{sKK}, 43")
a(f"s_cbranch_scc1 {L}")
job3_issue(g, V, sKK)
a("s_waitcnt vmcnt(0)")
job3_main(g, V, Ff, sKK, sSG)
a.label(L)
L = g.lab("no2")
a(f"s_cmp_ge_u32 s{sRT}, 22")
a(f"s_cbranch_scc1 {L}")
m = V.mark()
j2 = job2_issue(g, V, sRT)
a("s_waitcnt vmcnt(0)")
job2_main(g, V, Ff, sRT, sSG, j2)
V.release(m)
a.label(L)
job5(g, V)
job6(g, V, 65536)
g.stamp("jobs")
arrive(g, 1, VT)
done(V)
def fft_phase(i, bwait, barr):
    V = g.V()
    st = fft_pre(g, V)
    if i == 1: fft_wt_load(g, V, st)
    g.stamp(f"fftpre{i}")
    wait(g, bwait, VT)
    g.stamp(f"w_fft{i}")
    if i == 0: fft_wt_load(g, V, st)
    fft_main(g, V, st, XP[2*i], SS[i], XP[2*i+1])
    g.stamp(f"fft{i}")
    arrive(g, barr, VT)
    done(V)
def g4_phase(i, bwait):
    V = g.V()
    Lskip = g.lab("g4skip")
    g4_map(g, Lskip)
    if i == 0: wait(g, 1, VT)
    g4_weights(g, V)
    g.stamp(f"g4w{i}")
    wait(g, bwait, VT)
    g.stamp(f"w_g4{i}")
    g4_main(g, V, XP[2*i+1], H[i])
    g.stamp(f"g4_{i}")
    arrive_row(g, i, VT)
    a.label(Lskip)
    done(V)
def g5_phase(i):
    V = g.V()
    g5_map(g)
    final = i == 1
    if i == 0:
        wait(g, 1, VT); wait(g, 2, VT)
    else:
        wait(g, 4, VT)
    g5_weights(g, V, final)
    if not final:
        res = g5_resid_load(g, V, XP[1])
    else:
        g7_gpart(g, V, XP[3])
    g.stamp(f"g5w{i}")
    wait_row(g, i, VT)
    g.stamp(f"w_g5{i}")
    if not final:
        g5_main(g, V, H[0], False, res, XP[2], SS[1])
        g.stamp("g5")
        arrive(g, 3, VT)
    else:
        g5_main(g, V, H[1], True)
        g.stamp("g7")
    done(V)
if upto >= 2: fft_phase(0, 0, 2)
if upto >= 3: g4_phase(0, 2)
if upto >= 4: g5_phase(0)
if upto >= 5: fft_phase(1, 3, 4)
if upto >= 6: g4_phase(1, 4)
if upto >= 7: g5_phase(1)
g.prof_dump()
a.label("L_end")
a("s_endpgm")
hdr = open("cdna_kernels/" + NAME + ".s.ref").read().split("\n")
out = [l for l in hdr if l.startswith("; ") and "@launch" not in l and "Override" not in l and "grid=ceil" not in l][:12]
out.append(f"; @launch grid=(256,1,1) block=(256,1,1) lds={LDS_TOTAL}")
print("\n".join(out))
print('.amdgcn_target "amdgcn-amd-amdhsa--gfx950"\n.text')
print(kernel_text(name, a))
print('.section .rodata,"a"')
print(kd_text(name, 256, 256, 102))
print("vgprs", hi, "stamps", g.names, file=sys.stderr)
```

```python
from common import *

M32 = "v_mfma_f32_32x32x16_bf16"
M16 = "v_mfma_f32_16x16x32_bf16"
S_W, S_X, S_L = 20, 21, 22
V_LANE, V_L31, V_HH = 1, 2, 3
VBASE = 4
LDS_TOTAL = 160 * 1024
LDS_PROF = LDS_TOTAL - 1024

class G:
    def __init__(self, pers=False, prof=False):
        self.a = Asm(); self.pers = pers; self.prof = prof
        self.st = " sc1" if pers else ""
        self.ld = " sc1" if pers else ""
        self.uid = 0; self.names = []
        self.vlimit = 252 if prof else 256
    def lab(self, s):
        self.uid += 1; return f"L_{s}_{self.uid}"
    def V(self): return Alloc(VBASE, self.vlimit)
    def stamp(self, name):
        if not self.prof: return
        a = self.a; n = len(self.names); self.names.append(name)
        a("s_memtime s[98:99]" if getattr(self, 'cyc', False) else "s_memrealtime s[98:99]")
        a("s_waitcnt lgkmcnt(0)")
        a("v_mov_b32 v253, s98")
        a(f"ds_write_b32 v252, v253 offset:{4*n}")
        a("s_waitcnt lgkmcnt(0)")
    def qstamp(self, idx):
        return Ins(f"s_memrealtime s[{84+2*idx}:{85+2*idx}]")
    def qflush(self, names):
        a = self.a
        a("s_waitcnt lgkmcnt(0)")
        for i, n in enumerate(names):
            k = len(self.names); self.names.append(n)
            a(f"v_mov_b32 v253, s{84+2*i}")
            a(f"ds_write_b32 v252, v253 offset:{4*k}")
        a("s_waitcnt lgkmcnt(0)")
    def prologue(self):
        a = self.a
        load_ptrs(a)
        a(f"v_lshrrev_b32 v4, 6, v0")
        a(f"v_and_b32 v{V_LANE}, 63, v0")
        a(f"v_readfirstlane_b32 s{S_W}, v4")
        a(f"v_and_b32 v{V_L31}, 31, v0")
        a(f"v_lshrrev_b32 v{V_HH}, 5, v{V_LANE}")
        a(f"s_and_b32 s{S_X}, s2, 7")
        a(f"s_lshr_b32 s{S_L}, s2, 3")
        if self.prof:
            a(f"v_lshlrev_b32 v252, 7, v4")
            a(f"v_add_u32 v252, {LDS_PROF}, v252")
    def prof_dump(self):
        if not self.prof: return
        a = self.a
        a("s_waitcnt vmcnt(0) lgkmcnt(0)")
        a("s_barrier")
        srd(a, 8, P_WS, PROF, 256 * 512)
        a("v_lshlrev_b32 v4, 2, v0")
        a(f"v_add_u32 v5, {LDS_PROF}, v4")
        a("ds_read_b32 v6, v5")
        a("s_lshl_b32 s24, s2, 9")
        a("s_waitcnt lgkmcnt(0)")
        a("v_cmp_gt_u32 vcc, 128, v0")
        a("s_and_saveexec_b64 s[26:27], vcc")
        a("buffer_store_dword v6, v4, s[8:11], s24 offen")
        a("s_mov_b64 exec, s[26:27]")

def bump_vm(items, k):
    for i, it in enumerate(items):
        if not isinstance(it, str) and it.op == 's_waitcnt' and 'vmcnt' in it.text:
            n = int(it.text.split('vmcnt(')[1].split(')')[0])
            items[i] = Ins(f"s_waitcnt vmcnt({n+k})")

def capture(g, fn):
    old = g.a; tmp = Asm(); g.a = tmp
    r = fn()
    g.a = old
    return tmp.items, r

def merge(g, main, groups, start=0, every=None):
    n = len(main); k = len(groups)
    if every is None: every = max(1, (n - start) // (k + 1))
    gi = 0
    for i, it in enumerate(main):
        g.a.items.append(it)
        if i >= start and (i - start) % every == every - 1 and gi < k:
            g.a.items.extend(groups[gi]); gi += 1
    while gi < k:
        g.a.items.extend(groups[gi]); gi += 1

def split_groups(items, is_last):
    out = []; cur = []
    for it in items:
        cur.append(it)
        if not isinstance(it, str) and is_last(it):
            out.append(cur); cur = []
    if cur:
        if out: out[-1].extend(cur)
        else: out.append(cur)
    return out
def is_vmem(it): return it.kind == 'vmem'

def reduce_write(g, V, acc, cls, mode_perm, RED=0):
    a = g.a
    ad = V.get(3, 1); t = V.get()
    a(f"v_lshlrev_b32 v{t}, 4, v{V_LANE}")
    for c in range(1, 4):
        a(f"s_xor_b32 s24, s{S_W}, {c}")
        a(f"s_mul_i32 s24, s24, 12288")
        a(f"s_add_u32 s24, s24, {RED + (c-1)*4096}")
        a(f"v_add_u32 v{ad+c-1}, s24, v{t}")
    for c in range(1, 4):
        for k in range(4):
            r = acc(k, c) if mode_perm == 'g' else acc(c, k)
            a(f"ds_write_b128 v{ad+c-1}, {vr(r,4,cls)} offset:{k*1024}")

def reduce_read(g, V, dst, RED=0):
    a = g.a
    ad = V.get()
    a(f"s_mul_i32 s24, s{S_W}, 12288")
    a(f"s_add_u32 s24, s24, {RED}")
    a(f"v_lshlrev_b32 v{ad}, 4, v{V_LANE}")
    a(f"v_add_u32 v{ad}, s24, v{ad}")
    for c in range(3):
        for k in range(4):
            a(f"ds_read_b128 {vr(dst + c*16 + k*4, 4)}, v{ad} offset:{c*4096 + k*1024}")

def sum32(g, regs, tmp):
    a = g.a
    for sh in (8, 4, 2, 1):
        for r in regs:
            a(f"v_add_f32_dpp v{r}, v{r}, v{r} row_ror:{sh} row_mask:0xf bank_mask:0xf")
    for r, t in zip(regs, tmp): a(f"v_mov_b32 v{t}, v{r}")
    for r, t in zip(regs, tmp): a(f"v_permlane16_swap_b32 v{r}, v{t}")
    for r, t in zip(regs, tmp): a(f"v_add_f32 v{r}, v{r}, v{t}")

def epi_out(g, V, val, OT, srd_out, row_voff_fn, planes=False):
    a = g.a
    pk = V.get(8); wad = V.get(); t = V.get()
    for k in range(4):
        for j in range(2):
            a(f"v_cvt_pk_bf16_f32 v{pk+2*k+j}, v{val+4*k+2*j}, v{val+4*k+2*j+1}")
    a(f"v_mul_u32_u24 v{wad}, 144, v{V_L31}")
    a(f"v_lshl_add_u32 v{wad}, v{V_HH}, 3, v{wad}")
    a(f"s_lshl_b32 s24, s{S_W}, 4")
    a(f"s_add_u32 s24, s24, {OT}")
    a(f"v_add_u32 v{wad}, s24, v{wad}")
    for tr in range(2):
        for tc in range(2):
            k = 2 * tr + tc
            a(f"ds_write_b64 v{wad}, {vr(pk+2*k,2)} offset:{tc*32*144 + tr*64}")
    a("s_waitcnt lgkmcnt(0)")
    a("s_barrier")
    rad = V.get(); o = V.get(8)
    if planes:
        a(f"v_lshrrev_b32 v{t}, 2, v0")
        a(f"v_mul_u32_u24 v{rad}, 144, v{t}")
        a(f"v_and_b32 v{t}, 3, v0")
        a(f"v_lshl_add_u32 v{rad}, v{t}, 4, v{rad}")
        a(f"v_add_u32 v{rad}, {OT}, v{rad}")
        a(f"ds_read_b128 {vr(o,4)}, v{rad}")
        a(f"ds_read_b128 {vr(o+4,4)}, v{rad} offset:64")
    else:
        a(f"v_lshrrev_b32 v{t}, 3, v0")
        a(f"v_mul_u32_u24 v{rad}, 144, v{t}")
        a(f"v_and_b32 v{t}, 7, v0")
        a(f"v_lshl_add_u32 v{rad}, v{t}, 4, v{rad}")
        a(f"v_add_u32 v{rad}, {OT}, v{rad}")
        a(f"ds_read_b128 {vr(o,4)}, v{rad}")
        a(f"ds_read_b128 {vr(o+4,4)}, v{rad} offset:{32*144}")
    voff, soffs, flags = row_voff_fn()
    a("s_waitcnt lgkmcnt(1)")
    a(f"buffer_store_dwordx4 {vr(o,4)}, v{voff}, s[{srd_out}:{srd_out+3}], {soffs[0]} offen{flags}")
    a("s_waitcnt lgkmcnt(0)")
    a(f"buffer_store_dwordx4 {vr(o+4,4)}, v{voff}, s[{srd_out}:{srd_out+3}], {soffs[1]} offen{flags}")

def stats_out(g, V, val, sSG, s_tok0, SSoff, first_sg_mask):
    a = g.a
    sq = V.get(8); tmp = V.get(8); msk = V.get()
    a(f"v_cmp_eq_u32 vcc, 0, v{V_L31}")
    a(f"s_cmp_eq_u32 s{sSG}, 0")
    a(f"s_cselect_b64 s[26:27], vcc, 0")
    a(f"v_cndmask_b32 v{msk}, 1.0, 0, s[26:27]")
    for tr in range(2):
        for t in range(4):
            x0 = val + (2*tr)*4 + t; x1 = val + (2*tr+1)*4 + t
            a(f"v_mul_f32 v{tmp+4*tr+t}, v{x0}, v{msk}")
            a(f"v_mul_f32 v{sq+4*tr+t}, v{x1}, v{x1}")
            a(f"v_fmac_f32 v{sq+4*tr+t}, v{tmp+4*tr+t}, v{tmp+4*tr+t}")
    sum32(g, [sq+i for i in range(8)], [tmp+i for i in range(8)])
    srd(a, 12, P_WS, SSoff, SS_SZ)
    ad = V.get()
    a(f"v_lshlrev_b32 v{ad}, 4, v{V_HH}")
    a(f"s_lshl_b32 s24, s{sSG}, 13")
    a(f"s_lshl_b32 s25, s{s_tok0}, 2")
    a(f"s_add_u32 s24, s24, s25")
    a(f"s_lshl_b32 s25, s{S_W}, 5")
    a(f"s_add_u32 s24, s24, s25")
    a(f"s_mov_b32 s26, 1")
    a(f"s_mov_b32 s27, 1")
    a(f"s_mov_b64 exec, s[26:27]")
    a(f"buffer_store_dwordx4 {vr(sq,4)}, v{ad}, s[12:15], s24 offen{g.st}")
    a(f"buffer_store_dwordx4 {vr(sq+4,4)}, v{ad}, s[12:15], s24 offen offset:128{g.st}")
    a(f"s_mov_b64 exec, -1")

def gen_F(g, V, Ff, sSG):
    a = g.a
    m = V.mark()
    sl = V.get(); fk = V.get(); ab = V.get(); sg_ = V.get(); t = V.get(); t2 = V.get(); ar = V.get(8); fd = V.get()
    a(f"s_lshl_b32 s24, s{S_W}, 6")
    a(f"v_lshl_add_u32 v{t}, v{V_HH}, 3, s24")
    a(f"v_cvt_f32_u32 v{fd}, v{t}")
    for u in range(2):
        a(f"s_lshl_b32 s24, s{sSG}, 6")
        a(f"s_add_u32 s24, s24, {32*u}")
        a(f"v_add_u32 v{sl}, s24, v{V_L31}")
        a(f"v_lshrrev_b32 v{t}, 1, v{sl}")
        a(f"v_and_b32 v{t2}, 1, v{sl}")
        a(f"v_cmp_eq_u32 vcc, 1, v{sl}")
        a(f"v_mov_b32 v{sg_}, 256")
        a(f"v_cndmask_b32 v{t}, v{t}, v{sg_}, vcc")
        a(f"v_cndmask_b32 v{t2}, v{t2}, 0, vcc") if False else None
        a(f"v_mov_b32 v{sg_}, 0")
        a(f"v_cndmask_b32 v{t2}, v{t2}, v{sg_}, vcc")
        a(f"v_cvt_f32_u32 v{fk}, v{t}")
        a(f"v_mul_f32 v{fk}, {fhex(1/512)}, v{fk}")
        a(f"v_cvt_f32_u32 v{ab}, v{t2}")
        a(f"v_mul_f32 v{ab}, 0.25, v{ab}") if False else a(f"v_mul_f32 v{ab}, {fhex(0.25)}, v{ab}")
        a(f"v_fmac_f32 v{ab}, v{fk}, v{fd}")
        a(f"v_and_b32 v{t}, 1, v{t}")
        a(f"v_mov_b32 v{sg_}, 0x80008000")
        a(f"v_mul_lo_u32 v{sg_}, v{sg_}, v{t}")
        for kq in range(4):
            for j in range(8):
                a(f"v_fmamk_f32 v{ar+j}, v{fk}, {fhex(float(16*kq+j))}, v{ab}")
            for j in range(8): a(f"v_fract_f32 v{ar+j}, v{ar+j}")
            for j in range(8): a(f"v_cos_f32 v{ar+j}, v{ar+j}")
            f = Ff + (u * 8 + kq) * 4
            for j in range(4):
                a(f"v_cvt_pk_bf16_f32 v{f+j}, v{ar+2*j}, v{ar+2*j+1}")
            for j in range(4):
                a(f"v_xor_b32 v{f+16+j}, v{sg_}, v{f+j}")
    V.release(m)

def Ffr(Ff, u, k8): return Ff + (u * 8 + k8) * 4

def job1(g, V, Ff, sRT, sSG):
    a = g.a
    m = V.mark()
    srd(a, 8, P_X, 0, 2048 * 512 * 2)
    A = V.get(64); vo = V.get(); t = V.get()
    a(f"s_lshl_b32 s47, s{S_W}, 3")
    a(f"v_xor_b32 v{t}, s47, v{V_L31}")
    a(f"v_lshlrev_b32 v{vo}, 15, v{t}")
    a(f"v_lshl_add_u32 v{vo}, v{V_HH}, 4, v{vo}")
    a(f"s_lshl_b32 s48, s{sRT}, 10")
    a(f"s_lshl_b32 s47, s{S_W}, 7")
    a(f"s_add_u32 s48, s48, s47")
    for half in range(2):
        for tr in range(2):
            for kq in range(4):
                if kq == 0: a(f"s_add_u32 s47, s48, {hex(tr*1048576 + half*512)}")
                a(f"buffer_load_dwordx4 {vr(A + (tr*8 + half*4 + kq)*4, 4)}, v{vo}, s[8:11], s47 offen offset:{kq*32}")
    return dict(A=A, m=m)

def job1_main(g, V, Ff, sRT, sSG, st, RED=0, side0=(), side1=()):
    a = g.a
    A = st['A']
    acc = V.get(64)
    side0 = list(side0); side1 = list(side1)
    n0 = len(side0)
    for k8 in range(8):
        if k8 == 0:
            a(f"s_waitcnt vmcnt(8)")
            if getattr(g, 'fine', False): g.stamp("x0h0")
        if k8 == 4:
            a(f"s_waitcnt vmcnt({min(63, n0)})")
            if getattr(g, 'fine', False): g.stamp("x0h1")
        side = side0 if k8 < 4 else side1
        for tr in range(2):
            for tc in range(2):
                d = acc + (2*tr+tc)*16
                c = "0" if k8 == 0 else vr(d, 16)
                a(f"{M32} {vr(d,16)}, {vr(A + (tr*8+k8)*4, 4)}, {vr(Ffr(Ff,tc,k8),4)}, {c}")
                if side: a.items.extend(side.pop(0))
    for grp in side0 + side1: a.items.extend(grp)
    if getattr(g, 'fine', False): g.stamp("j1mm")
    if st.get('hook'): st['hook']()
    if getattr(g, 'fine', False): g.stamp("j1hk")
    reduce_write(g, V, lambda k, grp: acc + k*16 + grp*4, 'v', 'g', RED)
    a("s_waitcnt lgkmcnt(0)")
    a("s_barrier")
    part = A
    if getattr(g, 'fine', False): g.stamp("j1rw")
    reduce_read(g, V, part, RED)
    val = V.get(16)
    sc = V.get();
    a(f"v_cmp_gt_u32 vcc, 2, v{V_L31}")
    a(f"s_cmp_eq_u32 s{sSG}, 0")
    a(f"s_cselect_b64 s[26:27], vcc, 0")
    a(f"v_mov_b32 v{sc}, {fhex(1/16)}")
    a(f"v_mov_b32 v{val}, {fhex(1/16/math.sqrt(2))}")
    a(f"v_cndmask_b32 v{sc}, v{sc}, v{val}, s[26:27]")
    a("s_waitcnt lgkmcnt(0)")
    for k in range(4):
        for t in range(4):
            v = val + 4*k + t
            a(f"v_add_f32 v{v}, v{acc+k*16+t}, v{part+k*4+t}")
            a(f"v_add_f32 v{part+16+k*4+t}, v{part+16+k*4+t}, v{part+32+k*4+t}")
        for t in range(4):
            v = val + 4*k + t
            a(f"v_add_f32 v{v}, v{v}, v{part+16+k*4+t}")
        for t in range(4):
            v = val + 4*k + t
            if (k & 1) == 0: a(f"v_mul_f32 v{v}, v{v}, v{sc}")
            else: a(f"v_mul_f32 v{v}, {fhex(1/16)}, v{v}")
    a(f"s_lshl_b32 s28, s{sRT}, 6")
    V2 = Alloc(acc, acc + 64)
    if getattr(g, 'fine', False): g.stamp("j1val")
    stats_out(g, V2, val, sSG, 28, SS[0], None)
    if getattr(g, 'fine', False): g.stamp("j1st")
    planes_out(g, V2, val, sRT, sSG, XP[0], OT=RED+49152)
    V.release(st['m'])

def planes_out(g, V, val, sRT, sSG, XPoff, OT):
    a = g.a
    srd(a, 8, P_WS, XPoff, XP_SZ)
    def rowfn():
        vo = V.get()
        a(f"v_lshlrev_b32 v{vo}, 4, v0")
        a(f"s_lshl_b32 s24, s{sSG}, 12")
        a(f"s_lshl_b32 s25, s{sRT}, 16")
        a(f"s_add_u32 s24, s24, s25")
        a(f"s_add_u32 s25, s24, 32768")
        return vo, ["s24", "s25"], g.st
    epi_out(g, V, val, OT, 8, rowfn, planes=True)

def job4_issue(g, V):
    a = g.a
    wt = V.get(8); wti = V.get(8); vo = V.get(); t = V.get()
    srd(a, 52, P_WR, 0, 2048 * 257 * 2)
    srd(a, 56, P_WI, 0, 2048 * 257 * 2)
    a(f"s_and_b32 s49, s2, 3")
    a(f"s_lshl_b32 s49, s49, 6")
    a(f"v_add_u32 v{t}, s49, v{V_LANE}")
    a(f"v_cmp_eq_u32 s[60:61], 0, v{t}")
    a(f"v_mov_b32 v{vo}, 256")
    a(f"v_cndmask_b32 v{vo}, v{t}, v{vo}, s[60:61]")
    a(f"v_lshlrev_b32 v{vo}, 1, v{vo}")
    a(f"s_lshr_b32 s50, s2, 2")
    a(f"s_lshl_b32 s51, s{S_W}, 8")
    a(f"s_add_u32 s50, s50, s51")
    a(f"s_mul_i32 s50, s50, 514")
    for n in range(8):
        td, r = n >> 2, n & 3
        a(f"s_add_u32 s49, s50, {514*64*(16*td + r)}")
        a(f"buffer_load_ushort v{wt+n}, v{vo}, s[52:55], s49 offen")
        a(f"buffer_load_ushort v{wti+n}, v{vo}, s[56:59], s49 offen")
    return dict(wt=wt, wti=wti, k=t)

def job4_store(g, V, st):
    a = g.a
    wt = st['wt']; t = st['k']
    vo = V.get()
    for n in range(8): a(f"v_lshl_or_b32 v{wt+n}, v{st['wti']+n}, 16, v{wt+n}")
    srd(a, 12, P_WS, WT, WT_SZ)
    a(f"v_lshlrev_b32 v{vo}, 13, v{t}")
    a(f"s_lshr_b32 s25, s2, 2")
    a(f"s_lshl_b32 s24, s25, 7")
    a(f"s_lshl_b32 s25, s{S_W}, 5")
    a(f"s_add_u32 s24, s24, s25")
    a(f"buffer_store_dwordx4 {vr(wt,4)}, v{vo}, s[12:15], s24 offen{g.st}")
    a(f"buffer_store_dwordx4 {vr(wt+4,4)}, v{vo}, s[12:15], s24 offen offset:16{g.st}")

def reduce_t(g, V, acc, part):
    a = g.a
    reduce_write(g, V, lambda c, k: acc + c*16 + k*4, 'v', 't')
    a("s_waitcnt lgkmcnt(0)")
    a("s_barrier")
    reduce_read(g, V, part)
    a("s_waitcnt lgkmcnt(0)")
    a("s_barrier")
    for r in range(16):
        a(f"v_add_f32 v{acc+r}, v{acc+r}, v{part+r}")
        a(f"v_add_f32 v{part+16+r}, v{part+16+r}, v{part+32+r}")
    for r in range(16):
        a(f"v_add_f32 v{acc+r}, v{acc+r}, v{part+16+r}")

def swap_F(g, Ff):
    a = g.a
    L = g.lab("noswap")
    a(f"s_cmp_lt_u32 s{S_W}, 2")
    a(f"s_cbranch_scc1 {L}")
    for r in range(32):
        a(f"v_swap_b32 v{Ff+r}, v{Ff+32+r}")
    a.label(L)

STG3 = 65536

def job3_issue(g, V, sKK, stg):
    a = g.a
    vo = V.get(); t = V.get()
    srd(a, 52, P_WG, 0, 512 * 1376 * 2)
    srd(a, 56, P_WU, 0, 512 * 1376 * 2)
    a(f"v_lshrrev_b32 v{t}, 2, v{V_LANE}")
    a(f"v_mul_u32_u24 v{vo}, 2752, v{t}")
    a(f"v_and_b32 v{t}, 3, v{V_LANE}")
    a(f"v_lshl_add_u32 v{vo}, v{t}, 4, v{vo}")
    a(f"s_mul_i32 s50, s{S_W}, {64*2752}")
    a(f"s_lshl_b32 s49, s{sKK}, 6")
    a(f"s_add_u32 s50, s50, s49")
    a(f"s_lshl_b32 s51, s{S_W}, 14")
    a(f"s_add_u32 s51, s51, {stg}")
    for p in range(2):
        for m in range(8):
            d0 = 16*m if m < 4 else 256 + 16*(m-4)
            a(f"s_add_u32 m0, s51, {p*8192 + m*1024}")
            a(f"s_add_u32 s49, s50, {d0*2752}")
            a(f"buffer_load_dwordx4 v{vo}, s[{52+4*p}:{55+4*p}], s49 offen lds")

def job3_main(g, V, Ff, sKK, sSG, stg, side=()):
    a = g.a
    side = list(side)
    m = V.mark()
    B = V.get(64)
    ad = V.get(); acc = V.get(64); t = V.get()
    a(f"v_and_b32 v{t}, 15, v{V_LANE}")
    a(f"v_lshrrev_b32 v{ad}, 2, v{t}")
    a(f"v_lshl_add_u32 v{ad}, v{V_HH}, 3, v{ad}")
    a(f"v_lshlrev_b32 v{ad}, 6, v{ad}")
    a(f"v_and_b32 v{t}, 3, v{t}")
    a(f"v_lshl_add_u32 v{ad}, v{t}, 3, v{ad}")
    a(f"v_lshrrev_b32 v{t}, 4, v{V_LANE}")
    a(f"v_and_b32 v{t}, 1, v{t}")
    a(f"v_lshl_add_u32 v{ad}, v{t}, 5, v{ad}")
    a(f"s_lshl_b32 s26, s{S_W}, 14")
    a(f"s_add_u32 s26, s26, {stg}")
    a(f"v_add_u32 v{ad}, s26, v{ad}")
    ad2 = V.get(2, 1)
    a(f"s_and_b32 s24, s{S_W}, 1")
    a(f"s_lshl_b32 s24, s24, 13")
    a(f"v_add_u32 v{ad2}, s24, v{ad}")
    a(f"s_xor_b32 s24, s24, 8192")
    a(f"v_add_u32 v{ad2+1}, s24, v{ad}")
    for uc in range(2):
        for k8 in range(8):
            for rd in range(2):
                a(f"ds_read_b64_tr_b16 {vr(B+(uc*8+k8)*4+2*rd,2)}, v{ad2+uc} offset:{k8*1024 + rd*256}")
        if uc == 0: a("s_waitcnt lgkmcnt(8)") if False else None
    a("s_waitcnt lgkmcnt(0)")
    if getattr(g, 'fine3', False): g.stamp("j3rd")
    for k8 in range(8):
        for ur in range(2):
            for uc in range(2):
                d = acc + (2*ur+uc)*16
                c = "0" if k8 == 0 else vr(d, 16)
                a(f"{M32} {vr(d,16)}, {vr(Ffr(Ff,ur,k8),4)}, {vr(B+(uc*8+k8)*4,4)}, {c}")
                if side: a.items.extend(side.pop(0))
    for grp in side: a.items.extend(grp)
    if getattr(g, 'fine3', False): g.stamp("j3mm"); g.fine3 = False
    a("s_barrier")
    reduce_t(g, V, acc, B)
    s0 = V.get(); s1 = V.get()
    a(f"v_mov_b32 v{s0}, {fhex(1/16)}")
    a(f"v_mov_b32 v{s1}, {fhex(1/16)}")
    a(f"v_cmp_eq_u32 vcc, 0, v{V_HH}")
    a(f"s_lshr_b32 s24, s{S_W}, 1")
    a(f"s_or_b32 s24, s24, s{sSG}")
    a(f"s_cmp_eq_u32 s24, 0")
    a(f"s_cselect_b64 s[26:27], vcc, 0")
    a(f"v_mov_b32 v{t}, 0")
    a(f"v_cndmask_b32 v{s0}, v{s0}, v{t}, s[26:27]")
    a(f"v_mov_b32 v{t}, {fhex(1/16/math.sqrt(2))}")
    a(f"v_cndmask_b32 v{s1}, v{s1}, v{t}, s[26:27]")
    a(f"v_mul_f32 v{acc}, v{acc}, v{s0}")
    a(f"v_mul_f32 v{acc+1}, v{acc+1}, v{s1}")
    for r in range(2, 16): a(f"v_mul_f32 v{acc+r}, {fhex(1/16)}, v{acc+r}")
    pk = B
    for j in range(8): a(f"v_cvt_pk_bf16_f32 v{pk+j}, v{acc+2*j}, v{acc+2*j+1}")
    srd(a, 8, P_WS, WGU, WGU_SZ)
    a(f"v_lshlrev_b32 v{t}, 4, v{V_LANE}")
    a(f"s_lshl_b32 s24, s{sKK}, 16")
    a(f"s_and_b32 s25, s{S_W}, 1")
    a(f"s_lshl_b32 s25, s25, 15")
    a(f"s_add_u32 s24, s24, s25")
    a(f"s_lshl_b32 s25, s{sSG}, 12")
    a(f"s_add_u32 s24, s24, s25")
    a(f"s_lshr_b32 s25, s{S_W}, 1")
    a(f"s_lshl_b32 s25, s25, 11")
    a(f"s_add_u32 s24, s24, s25")
    a(f"buffer_store_dwordx4 {vr(pk,4)}, v{t}, s[8:11], s24 offen{g.st}")
    a(f"buffer_store_dwordx4 {vr(pk+4,4)}, v{t}, s[8:11], s24 offen offset:1024{g.st}")
    V.release(m)

def job2_issue(g, V, sFP):
    a = g.a
    srd(a, 52, P_WD, 0, 1376 * 512 * 2)
    A = 0; vo = V.get(); t = V.get()
    a(f"v_lshlrev_b32 v{vo}, 10, v{V_L31}")
    a(f"v_lshl_add_u32 v{vo}, v{V_HH}, 4, v{vo}")
    a(f"s_lshl_b32 s50, s{sFP}, 16")
    a(f"s_lshl_b32 s49, s{S_W}, 7")
    a(f"s_add_u32 s50, s50, s49")
    a(f"s_and_b32 s49, s{S_W}, 1")
    a(f"s_lshl_b32 s51, s49, 15")
    for ur in range(2):
        if ur == 1: a(f"s_xor_b32 s51, s51, 32768")
        for half in range(2):
            a(f"s_add_u32 s49, s50, s51")
            if half: a(f"s_add_u32 s49, s49, 512")
            for kq in range(4):
                a(f"buffer_load_dwordx4 {vr(A + (ur*8 + half*4 + kq)*4, 4, 'a')}, v{vo}, s[52:55], s49 offen offset:{kq*32}")
    return dict(A=A)

def job2_main(g, V, Ff, sFP, sSG, st):
    a = g.a
    A = st['A']
    acc = V.get(64); t = V.get(); sc = V.get(); part = V.get(48)
    for k8 in range(8):
        for ur in range(2):
            for uc in range(2):
                d = acc + (ur | (uc << 1))*16
                c = "0" if k8 == 0 else vr(d, 16)
                a(f"{M32} {vr(d,16)}, {vr(A+(ur*8+k8)*4,4,'a')}, {vr(Ffr(Ff,uc,k8),4)}, {c}")
    reduce_t(g, V, acc, part)
    a(f"v_cmp_gt_u32 vcc, 2, v{V_L31}")
    a(f"s_lshr_b32 s24, s{S_W}, 1")
    a(f"s_or_b32 s24, s24, s{sSG}")
    a(f"s_cmp_eq_u32 s24, 0")
    a(f"s_cselect_b64 s[26:27], vcc, 0")
    a(f"v_mov_b32 v{sc}, {fhex(1/16)}")
    a(f"v_mov_b32 v{t}, {fhex(1/16/math.sqrt(2))}")
    a(f"v_cndmask_b32 v{sc}, v{sc}, v{t}, s[26:27]")
    for r in range(16): a(f"v_mul_f32 v{acc+r}, v{acc+r}, v{sc}")
    pk = part
    for j in range(8): a(f"v_cvt_pk_bf16_f32 v{pk+j}, v{acc+2*j}, v{acc+2*j+1}")
    srd(a, 8, P_WS, WDP, WDP_SZ)
    a(f"s_lshl_b32 s24, s{sFP}, 2")
    a(f"s_and_b32 s25, s{S_W}, 1")
    a(f"s_lshl_b32 s25, s25, 1")
    a(f"s_add_u32 s24, s24, s25")
    L = g.lab("j2skip")
    a(f"s_cmp_ge_u32 s24, 86")
    a(f"s_cbranch_scc1 {L}")
    a(f"s_lshl_b32 s25, s{sSG}, 1")
    a(f"s_lshr_b32 s26, s{S_W}, 1")
    a(f"s_add_u32 s25, s25, s26")
    a(f"s_mul_i32 s25, s25, 86")
    a(f"s_add_u32 s24, s24, s25")
    a(f"s_lshl_b32 s24, s24, 10")
    a(f"v_lshlrev_b32 v{t}, 4, v{V_LANE}")
    a(f"buffer_store_dwordx4 {vr(pk,4)}, v{t}, s[8:11], s24 offen{g.st}")
    a(f"buffer_store_dwordx4 {vr(pk+4,4)}, v{t}, s[8:11], s24 offen offset:1024{g.st}")
    a.label(L)

def job5(g, V):
    a = g.a
    m = V.mark()
    L = g.lab("j5skip")
    a(f"s_cmp_ge_u32 s{S_W}, 2")
    a(f"s_cbranch_scc1 {L}")
    d = V.get(); fd = V.get(); ar = V.get(8); sl = V.get(); kf = V.get(); im = V.get(); t = V.get(); sc = V.get(); pk = V.get(4)
    a(f"s_lshl_b32 s24, s2, 1")
    a(f"s_add_u32 s24, s24, s{S_W}")
    a(f"s_lshr_b32 s25, s24, 5")
    a(f"s_and_b32 s26, s24, 31")
    a(f"s_lshl_b32 s27, s25, 5")
    a(f"v_add_u32 v{d}, s27, v{V_L31}")
    a(f"s_lshl_b32 s27, s26, 4")
    for j in range(8):
        a(f"v_lshl_add_u32 v{sl}, v{V_HH}, 2, s27")
        a(f"v_add_u32 v{sl}, {8*(j>>2) + (j&3)}, v{sl}")
        a(f"v_lshrrev_b32 v{kf}, 1, v{sl}")
        a(f"v_and_b32 v{im}, 1, v{sl}")
        a(f"v_cmp_eq_u32 vcc, 1, v{sl}")
        a(f"v_mov_b32 v{t}, 256")
        a(f"v_cndmask_b32 v{kf}, v{kf}, v{t}, vcc")
        a(f"v_mov_b32 v{t}, 0")
        a(f"v_cndmask_b32 v{im}, v{im}, v{t}, vcc")
        a(f"v_mul_lo_u32 v{kf}, v{kf}, v{d}")
        a(f"v_lshl_add_u32 v{kf}, v{im}, 7, v{kf}")
        a(f"v_and_b32 v{kf}, 511, v{kf}")
        a(f"v_cvt_f32_u32 v{kf}, v{kf}")
        a(f"v_mul_f32 v{kf}, {fhex(1/512)}, v{kf}")
        a(f"v_cos_f32 v{ar+j}, v{kf}")
        a(f"v_cmp_gt_u32 vcc, 2, v{sl}")
        a(f"v_mov_b32 v{sc}, {fhex(1/16)}")
        a(f"v_mov_b32 v{t}, {fhex(1/16/math.sqrt(2))}")
        a(f"v_cndmask_b32 v{sc}, v{sc}, v{t}, vcc")
        a(f"v_mul_f32 v{ar+j}, v{ar+j}, v{sc}")
    for j in range(4): a(f"v_cvt_pk_bf16_f32 v{pk+j}, v{ar+2*j}, v{ar+2*j+1}")
    srd(a, 8, P_WS, GF, GF_SZ)
    a(f"s_lshl_b32 s24, s24, 10")
    a(f"v_lshlrev_b32 v{t}, 4, v{V_LANE}")
    a(f"buffer_store_dwordx4 {vr(pk,4)}, v{t}, s[8:11], s24 offen{g.st}")
    a.label(L)
    V.release(m)

def job6(g, V, stg):
    a = g.a
    m = V.mark()
    vo = V.get(); ad = V.get(); t = V.get(); fr = V.get(4)
    srd(a, 12, P_WD, 0, 1376 * 512 * 2)
    srd(a, 8, P_WS, WDF, WDP_SZ)
    a(f"v_lshrrev_b32 v{t}, 2, v{V_LANE}")
    a(f"v_lshlrev_b32 v{vo}, 10, v{t}")
    a(f"v_and_b32 v{t}, 3, v{V_LANE}")
    a(f"v_lshl_add_u32 v{vo}, v{t}, 4, v{vo}")
    a(f"v_and_b32 v{t}, 15, v{V_LANE}")
    a(f"v_lshrrev_b32 v{ad}, 2, v{t}")
    a(f"v_lshl_add_u32 v{ad}, v{V_HH}, 2, v{ad}")
    a(f"v_lshlrev_b32 v{ad}, 6, v{ad}")
    a(f"v_and_b32 v{t}, 3, v{t}")
    a(f"v_lshl_add_u32 v{ad}, v{t}, 3, v{ad}")
    a(f"v_lshrrev_b32 v{t}, 4, v{V_LANE}")
    a(f"v_and_b32 v{t}, 1, v{t}")
    a(f"v_lshl_add_u32 v{ad}, v{t}, 5, v{ad}")
    a(f"s_lshl_b32 s26, s{S_W}, 10")
    a(f"s_add_u32 s26, s26, {stg}")
    a(f"v_add_u32 v{ad}, s26, v{ad}")
    a(f"v_lshlrev_b32 v{t}, 4, v{V_LANE}")
    fr2 = V.get(4)
    frs = [fr, fr2]
    Ls = g.lab("j6one")
    def ids(it):
        a(f"s_lshl_b32 s24, s2, 2")
        a(f"s_add_u32 s24, s24, s{S_W}")
        if it: a(f"s_add_u32 s24, s24, 1024")
    for it in range(2):
        ids(it)
        if it:
            a(f"s_cmp_ge_u32 s24, 1376")
            a(f"s_cbranch_scc1 {Ls}")
        a(f"s_mul_hi_u32 s25, s24, {hex((2**32 + 85)//86)}")
        a(f"s_mul_i32 s27, s25, 86")
        a(f"s_sub_u32 s27, s24, s27")
        a(f"s_lshl_b32 s27, s27, 14")
        a(f"s_lshl_b32 s25, s25, 6")
        a(f"s_add_u32 s27, s27, s25")
        a(f"s_add_u32 m0, s26, {it*4096}")
        a("s_nop 0")
        a(f"buffer_load_dwordx4 v{vo}, s[12:15], s27 offen lds")
    a.label(Ls)
    a("s_waitcnt vmcnt(0)")
    Le = g.lab("j6end")
    for it in range(2):
        ids(it)
        if it:
            a(f"s_cmp_ge_u32 s24, 1376")
            a(f"s_cbranch_scc1 {Le}")
        a(f"ds_read_b64_tr_b16 {vr(frs[it],2)}, v{ad} offset:{it*4096}")
        a(f"ds_read_b64_tr_b16 {vr(frs[it]+2,2)}, v{ad} offset:{it*4096+512}")
        a(f"s_lshl_b32 s24, s24, 10")
        a("s_waitcnt lgkmcnt(0)")
        a(f"buffer_store_dwordx4 {vr(frs[it],4)}, v{t}, s[8:11], s24 offen{g.st}")
    a.label(Le)
    V.release(m)

def fft_pre(g, V):
    a = g.a
    vi = V.get(); vq = V.get(); t1 = V.get(); t2 = V.get()
    a(f"v_and_b32 v{vi}, 15, v{V_LANE}")
    a(f"v_lshrrev_b32 v{vq}, 4, v{V_LANE}")
    C64 = V.get(8); S64 = V.get(8); N64 = V.get(8)
    C32 = V.get(8); S32 = V.get(8); N32 = V.get(8)
    tw1c = V.get(8); tw1s = V.get(8); tw2c = V.get(8); tw2s = V.get(8)
    tmp = V.get(8); tmp2 = V.get(8)
    m = V.mark()
    fn = V.get(); fb = V.get(); fq = V.get(); fi = V.get()
    sT = 24
    a(f"v_cvt_f32_u32 v{fi}, v{vi}")
    a(f"v_cvt_f32_u32 v{fq}, v{vq}")
    a(f"s_lshl_b32 s{sT}, s{S_W}, 4")
    a(f"v_cvt_f32_u32 v{t1}, s{sT}")
    a(f"v_add_f32 v{fn}, v{t1}, v{fi}")
    a(f"v_mul_f32 v{fb}, v{fn}, v{fq}")
    a(f"v_mul_f32 v{fb}, {fhex(0.125)}, v{fb}")
    def cs(C, S, N):
        for e in range(8): a(f"v_cos_f32 v{tmp2+e}, v{tmp+e}")
        for e in range(8): a(f"v_sin_f32 v{tmp+e}, v{tmp+e}")
        for j in range(4): a(f"v_cvt_pk_bf16_f32 v{C+j}, v{tmp2+2*j}, v{tmp2+2*j+1}")
        for j in range(4): a(f"v_cvt_pk_bf16_f32 v{S+j}, v{tmp+2*j}, v{tmp+2*j+1}")
        for j in range(4): a(f"v_xor_b32 v{N+j}, 0x80008000, v{S+j}")
    for ks in range(2):
        for e in range(8):
            a(f"v_fmamk_f32 v{tmp+e}, v{fn}, {fhex((32*ks+e)/64)}, v{fb}")
        cs(C64+4*ks, S64+4*ks, N64+4*ks)
    for t in range(2):
        a(f"v_add_f32 v{t1}, {fhex(16.0*t)}, v{fi}") if t else a(f"v_mov_b32 v{t1}, v{fi}")
        a(f"v_mul_f32 v{fb}, v{t1}, v{fq}")
        a(f"v_mul_f32 v{fb}, {fhex(0.125)}, v{fb}")
        for e in range(8):
            a(f"v_fmamk_f32 v{tmp+e}, v{t1}, {fhex((16*(e>>2)+(e&3))/32)}, v{fb}")
        cs(C32+4*t, S32+4*t, N32+4*t)
    a(f"v_mul_f32 v{fb}, v{fn}, v{fq}")
    a(f"v_mul_f32 v{fb}, {fhex(4/2048)}, v{fb}")
    for tb in range(2):
        for r in range(4):
            a(f"v_fmamk_f32 v{tmp+4*tb+r}, v{fn}, {fhex((16*tb+r)/2048)}, v{fb}")
    for e in range(8): a(f"v_cos_f32 v{tw1c+e}, v{tmp+e}")
    for e in range(8): a(f"v_sin_f32 v{tw1s+e}, v{tmp+e}")
    a(f"s_lshl_b32 s{sT}, s{S_W}, 4")
    a(f"v_cvt_f32_u32 v{t1}, s{sT}")
    a(f"v_fmamk_f32 v{t1}, v{fq}, {fhex(4.0)}, v{t1}")
    for tb in range(2):
        a(f"v_add_f32 v{t2}, {fhex(16.0*tb)}, v{fi}") if tb else a(f"v_mov_b32 v{t2}, v{fi}")
        a(f"v_mul_f32 v{t2}, {fhex(1/2048)}, v{t2}")
        a(f"v_mul_f32 v{fb}, v{t2}, v{t1}")
        for r in range(4):
            if r == 0: a(f"v_mov_b32 v{tmp+4*tb}, v{fb}")
            else: a(f"v_fmamk_f32 v{tmp+4*tb+r}, v{t2}, {fhex(float(r))}, v{fb}")
    for e in range(8): a(f"v_cos_f32 v{tw2c+e}, v{tmp+e}")
    for e in range(8): a(f"v_sin_f32 v{tw2s+e}, v{tmp+e}")
    for e in range(8): a(f"v_mul_f32 v{tw2c+e}, {fhex(1/2048)}, v{tw2c+e}")
    for e in range(8): a(f"v_mul_f32 v{tw2s+e}, {fhex(1/2048)}, v{tw2s+e}")
    V.release(m)
    return dict(vi=vi, vq=vq, t1=t1, t2=t2, C64=C64, S64=S64, N64=N64, C32=C32, S32=S32, N32=N32,
                tw1c=tw1c, tw1s=tw1s, tw2c=tw2c, tw2s=tw2s, tmp=tmp, tmp2=tmp2)

def fft_wt_load(g, V, st):
    a = g.a
    wt = V.get(8); t0 = V.get()
    srd(a, 16, P_WS, WT, WT_SZ)
    a(f"v_lshlrev_b32 v{t0}, 2, v{st['vi']}")
    a(f"v_add_u32 v{t0}, v{t0}, v{st['vq']}")
    a(f"v_lshlrev_b32 v{t0}, 5, v{t0}")
    a(f"s_lshl_b32 s24, s2, 13")
    a(f"s_lshl_b32 s25, s{S_W}, 11")
    a(f"s_add_u32 s24, s24, s25")
    a(f"buffer_load_dwordx4 {vr(wt,4)}, v{t0}, s[16:19], s24 offen{g.ld}")
    a(f"buffer_load_dwordx4 {vr(wt+4,4)}, v{t0}, s[16:19], s24 offen offset:16{g.ld}")
    st['wt'] = wt

def fft_main(g, V, st, XPin, SSin, XPout):
    a = g.a
    vi, vq, t0, t1 = st['vi'], st['vq'], st['t1'], st['t2']
    C64, S64, N64, C32, S32, N32 = (st[k] for k in ('C64', 'S64', 'N64', 'C32', 'S32', 'N32'))
    tw1c, tw1s, tw2c, tw2s, tmp, tmp2, wt = (st[k] for k in ('tw1c', 'tw1s', 'tw2c', 'tw2s', 'tmp', 'tmp2', 'wt'))
    sP, sQ, sT, sFlag, sK = 28, 29, 24, 30, 23
    srd(a, 8, P_WS, XPin, XP_SZ)
    srd(a, 12, P_WS, SSin, SS_SZ)
    a(f"s_lshl_b32 s{sP}, s2, 7")
    a(f"s_add_u32 s{sQ}, s{sP}, 64")
    a(f"s_lshl_b32 s{sK}, s2, 7")
    a(f"s_mov_b32 s{sFlag}, 1.0")
    a(f"s_cmp_lg_u32 s2, 0")
    a(f"s_cselect_b32 s{sP}, s{sP}, 64")
    a(f"s_cselect_b32 s{sQ}, s{sQ}, 0")
    a(f"s_cselect_b32 s{sFlag}, s{sFlag}, 0")
    xr = V.get(4); xi = V.get(4); ss = V.get(64); rawb = V.get(8)
    off16 = V.get(); off32 = V.get(); offb = V.get(); fl = V.get(2)
    a(f"v_lshrrev_b32 v{t0}, 2, v0")
    a(f"v_lshlrev_b32 v{off16}, 15, v{t0}")
    a(f"v_and_b32 v{t0}, 3, v0")
    a(f"v_lshl_add_u32 v{off16}, v{t0}, 4, v{off16}")
    a(f"v_lshlrev_b32 v{off32}, 5, v0")
    a(f"buffer_load_dwordx4 {vr(xr,4)}, v{off16}, s[8:11], s{sP} offen")
    a(f"buffer_load_dwordx4 {vr(xi,4)}, v{off16}, s[8:11], s{sQ} offen")
    a(f"v_lshrrev_b32 v{t0}, 3, v{V_LANE}")
    a(f"s_lshl_b32 s{sT}, s{S_W}, 4")
    a(f"v_add_u32 v{t0}, s{sT}, v{t0}")
    a(f"v_lshlrev_b32 v{offb}, 15, v{t0}")
    a(f"v_and_b32 v{t0}, 7, v{V_LANE}")
    a(f"v_lshl_add_u32 v{offb}, v{t0}, 4, v{offb}")
    a(f"buffer_load_dwordx4 {vr(rawb,4)}, v{offb}, s[8:11], s{sK} offen")
    a(f"s_add_u32 s{sT}, s{sK}, {8*32768}")
    a(f"buffer_load_dwordx4 {vr(rawb+4,4)}, v{offb}, s[8:11], s{sT} offen")
    a(f"s_mov_b32 s{sT}, 0")
    for p in range(8):
        a(f"buffer_load_dwordx4 {vr(ss+8*p,4)}, v{off32}, s[12:15], s{sT} offen{g.ld}")
        a(f"buffer_load_dwordx4 {vr(ss+8*p+4,4)}, v{off32}, s[12:15], s{sT} offen offset:16{g.ld}")
        if p < 7: a(f"s_add_u32 s{sT}, s{sT}, 8192")
    if getattr(g, 'fine', False): g.stamp("fft_iss")
    RS = 144; PS = 32 * RS
    XN, UX, ZX = 0, 2 * PS, 4 * PS
    ZRS = 272; ZPS = 32 * ZRS
    wad = V.get(); rad = V.get(); uad = V.get()
    a(f"v_lshrrev_b32 v{t0}, 3, v0")
    a(f"v_mul_u32_u24 v{wad}, {RS}, v{t0}")
    a(f"v_and_b32 v{t0}, 7, v0")
    a(f"v_lshl_add_u32 v{wad}, v{t0}, 4, v{wad}")
    a(f"v_mul_u32_u24 v{rad}, {RS}, v{vi}")
    a(f"v_lshl_add_u32 v{rad}, v{vq}, 4, v{rad}")
    a(f"v_mul_u32_u24 v{uad}, {RS}, v{vi}")
    a(f"v_lshl_add_u32 v{uad}, v{vq}, 3, v{uad}")
    a(f"s_lshl_b32 s{sT}, s{S_W}, 5")
    a(f"v_add_u32 v{uad}, s{sT}, v{uad}")
    for p in range(1, 8):
        a(f"s_waitcnt vmcnt({2*(7-p)})")
        for j in range(8):
            a(f"v_add_f32 v{ss+j}, v{ss+j}, v{ss+8*p+j}")
    for j in range(8): a(f"v_mul_f32 v{ss+j}, {fhex(1/512)}, v{ss+j}")
    for j in range(8): a(f"v_add_f32 v{ss+j}, {fhex(1e-5)}, v{ss+j}")
    for j in range(8): a(f"v_rsq_f32 v{ss+j}, v{ss+j}")
    for j in range(8): a(f"v_mul_f32 v{ss+8+j}, s{sFlag}, v{ss+j}")
    nx = ss + 16
    for pl, (x, rs) in enumerate(((xr, ss), (xi, ss + 8))):
        for j in range(4):
            a(f"v_lshlrev_b32 v{tmp+2*j}, 16, v{x+j}")
            a(f"v_and_b32 v{tmp+2*j+1}, 0xffff0000, v{x+j}")
        for j in range(8): a(f"v_mul_f32 v{tmp+j}, v{tmp+j}, v{rs+j}")
        for j in range(4): a(f"v_cvt_pk_bf16_f32 v{nx+4*pl+j}, v{tmp+2*j}, v{tmp+2*j+1}")
        a(f"ds_write_b128 v{wad}, {vr(nx+4*pl,4)} offset:{XN+pl*PS}")
    a("s_waitcnt lgkmcnt(0)")
    a("s_barrier")
    if getattr(g, 'fine', False): g.stamp("fft_norm")
    fr = ss + 32
    def frag(pl, tb, ks): return fr + ((pl * 2 + tb) * 2 + ks) * 4
    def read_frags(base):
        for ks in range(2):
            for pl in range(2):
                for tb in range(2):
                    a(f"ds_read_b128 {vr(frag(pl,tb,ks),4)}, v{rad} offset:{base + pl*PS + tb*16*RS + ks*64}")
    read_frags(XN)
    Tr = V.get(8); Ti = V.get(8)
    def mf(d, A, B, first=False): a(f"{M16} {vr(d,4)}, {vr(A,4)}, {vr(B,4)}, {'0' if first else vr(d,4)}")
    for ks in range(2):
        a(f"s_waitcnt lgkmcnt({4 if ks == 0 else 0})")
        for tb in range(2):
            mf(Tr+4*tb, frag(0,tb,ks), C64+4*ks, ks == 0)
            mf(Ti+4*tb, frag(1,tb,ks), C64+4*ks, ks == 0)
        for tb in range(2):
            mf(Tr+4*tb, frag(1,tb,ks), S64+4*ks)
            mf(Ti+4*tb, frag(0,tb,ks), N64+4*ks)
    def cmul_pack(Rr, Ri, cc, ssn, sign, Pr, Pi):
        for e in range(8):
            a(f"v_mul_f32 v{tmp+e}, v{Rr+e}, v{cc+e}")
            a(f"v_mul_f32 v{tmp2+e}, v{Ri+e}, v{cc+e}")
        for e in range(8):
            if sign > 0:
                a(f"v_fma_f32 v{tmp+e}, v{Ri+e}, v{ssn+e}, v{tmp+e}")
                a(f"v_fma_f32 v{tmp2+e}, -v{Rr+e}, v{ssn+e}, v{tmp2+e}")
            else:
                a(f"v_fma_f32 v{tmp+e}, -v{Ri+e}, v{ssn+e}, v{tmp+e}")
                a(f"v_fma_f32 v{tmp2+e}, v{Rr+e}, v{ssn+e}, v{tmp2+e}")
        for j in range(4):
            a(f"v_cvt_pk_bf16_f32 v{Pr+j}, v{tmp+2*j}, v{tmp+2*j+1}")
            a(f"v_cvt_pk_bf16_f32 v{Pi+j}, v{tmp2+2*j}, v{tmp2+2*j+1}")
    Pr = V.get(4); Pi = V.get(4)
    cmul_pack(Tr, Ti, tw1c, tw1s, +1, Pr, Pi)
    Yr = ss; Yi = ss + 8
    for td in range(2):
        mf(Yr+4*td, C32+4*td, Pr, True)
        mf(Yi+4*td, C32+4*td, Pi, True)
    for td in range(2):
        mf(Yr+4*td, S32+4*td, Pi)
        mf(Yi+4*td, N32+4*td, Pr)
    wr = Tr; wi = Ti
    for e in range(8):
        a(f"v_lshlrev_b32 v{wr+e}, 16, v{wt+e}")
        a(f"v_and_b32 v{wi+e}, 0xffff0000, v{wt+e}")
    cmul_pack(Yr, Yi, wr, wi, -1, Pr, Pi)
    Ur = Yr; Ui = Yi
    for tb in range(2):
        mf(Ur+4*tb, Pr, C32+4*tb, True)
        mf(Ui+4*tb, Pi, C32+4*tb, True)
    for tb in range(2):
        mf(Ur+4*tb, Pi, N32+4*tb)
        mf(Ui+4*tb, Pr, S32+4*tb)
    cmul_pack(Ur, Ui, tw2c, tw2s, -1, Pr, Pi)
    for tb in range(2):
        a(f"ds_write_b64 v{uad}, {vr(Pr+2*tb,2)} offset:{UX + tb*16*RS}")
        a(f"ds_write_b64 v{uad}, {vr(Pi+2*tb,2)} offset:{UX + PS + tb*16*RS}")
    a("s_waitcnt lgkmcnt(0)")
    a("s_barrier")
    if getattr(g, 'fine', False): g.stamp("fft_s3")
    read_frags(UX)
    Zr = Tr; Zi = Ti
    for ks in range(2):
        a(f"s_waitcnt lgkmcnt({4 if ks == 0 else 0})")
        for tb in range(2):
            mf(Zr+4*tb, C64+4*ks, frag(0,tb,ks), ks == 0)
            mf(Zi+4*tb, C64+4*ks, frag(1,tb,ks), ks == 0)
        for tb in range(2):
            mf(Zr+4*tb, N64+4*ks, frag(1,tb,ks))
            mf(Zi+4*tb, S64+4*ks, frag(0,tb,ks))
    zad = V.get()
    a(f"v_mul_u32_u24 v{zad}, {ZRS}, v{vi}")
    a(f"v_lshl_add_u32 v{zad}, v{vq}, 4, v{zad}")
    a(f"s_lshl_b32 s{sT}, s{S_W}, 6")
    a(f"v_add_u32 v{zad}, s{sT}, v{zad}")
    for pl, Z in enumerate((Zr, Zi)):
        for tb in range(2):
            a(f"ds_write_b128 v{zad}, {vr(Z+4*tb,4)} offset:{ZX + pl*ZPS + tb*16*ZRS}")
    a("s_waitcnt lgkmcnt(0)")
    a("s_barrier")
    zpl = V.get(); zf = V.get()
    a(f"v_lshrrev_b32 v{t0}, 2, v{V_LANE}")
    a(f"v_and_b32 v{t0}, 1, v{t0}")
    a(f"s_cmp_eq_u32 s2, 0")
    a(f"s_cselect_b32 s{sT}, 1, 0")
    a(f"v_xor_b32 v{zpl}, s{sT}, v{t0}")
    a(f"v_cmp_eq_u32 vcc, 0, v{zpl}")
    a(f"v_mov_b32 v{zf}, s{sFlag}")
    a(f"v_cndmask_b32 v{zf}, v{zf}, 1.0, vcc")
    a(f"v_mul_u32_u24 v{zad}, {ZPS}, v{zpl}")
    a(f"v_lshrrev_b32 v{t0}, 4, v{V_LANE}")
    a(f"s_lshl_b32 s{sT}, s{S_W}, 3")
    a(f"v_add_u32 v{t0}, s{sT}, v{t0}")
    a(f"v_mul_u32_u24 v{t0}, {ZRS}, v{t0}")
    a(f"v_add_u32 v{zad}, v{zad}, v{t0}")
    a(f"v_lshrrev_b32 v{t0}, 3, v{V_LANE}")
    a(f"v_and_b32 v{t0}, 1, v{t0}")
    a(f"v_lshl_add_u32 v{zad}, v{t0}, 7, v{zad}")
    a(f"v_and_b32 v{t0}, 3, v{V_LANE}")
    a(f"v_lshl_add_u32 v{zad}, v{t0}, 5, v{zad}")
    zz = ss + 16
    for n in range(2):
        a(f"ds_read_b128 {vr(zz+8*n,4)}, v{zad} offset:{ZX + n*4*ZRS}")
        a(f"ds_read_b128 {vr(zz+8*n+4,4)}, v{zad} offset:{ZX + n*4*ZRS + 16}")
    srd(a, 8, P_WS, XPout, XP_SZ)
    for n in range(2):
        x = rawb + 4*n
        for j in range(4):
            a(f"v_lshlrev_b32 v{tmp+2*j}, 16, v{x+j}")
            a(f"v_and_b32 v{tmp+2*j+1}, 0xffff0000, v{x+j}")
        a(f"s_waitcnt lgkmcnt({2 if n == 0 else 0})")
        for j in range(8): a(f"v_fma_f32 v{tmp+j}, v{zz+8*n+j}, v{zf}, v{tmp+j}")
        o = tmp2 + 4 * n
        for j in range(4): a(f"v_cvt_pk_bf16_f32 v{o+j}, v{tmp+2*j}, v{tmp+2*j+1}")
        if n == 0: a(f"buffer_store_dwordx4 {vr(o,4)}, v{offb}, s[8:11], s{sK} offen{g.st}")
        else:
            a(f"s_add_u32 s{sT}, s{sK}, {8*32768}")
            a(f"buffer_store_dwordx4 {vr(o,4)}, v{offb}, s[8:11], s{sT} offen{g.st}")

S_RT, S_CG, S_KK = 32, 33, 34
def g4_map(g, skip_label):
    a = g.a
    a(f"s_min_u32 s24, s{S_X}, 2")
    a(f"s_mul_i32 s25, s{S_X}, 30")
    a(f"s_add_u32 s25, s25, s24")
    a(f"s_cmp_lt_u32 s{S_X}, 2")
    a(f"s_cselect_b32 s24, 31, 30")
    a(f"s_cmp_ge_u32 s{S_L}, s24")
    a(f"s_cbranch_scc1 {skip_label}")
    a(f"s_add_u32 s25, s25, s{S_L}")
    a(f"s_cmp_ge_u32 s25, 121")
    a(f"s_cselect_b32 s24, 121, 0")
    a(f"s_cselect_b32 s{S_RT}, 11, 0")
    a(f"s_sub_u32 s25, s25, s24")
    a(f"s_mul_hi_u32 s{S_CG}, s25, 0x1745D175")
    a(f"s_mul_i32 s24, s{S_CG}, 11")
    a(f"s_sub_u32 s25, s25, s24")
    a(f"s_add_u32 s{S_RT}, s{S_RT}, s25")
    a(f"s_lshl_b32 s{S_KK}, s{S_CG}, 2")
    a(f"s_add_u32 s{S_KK}, s{S_KK}, s{S_W}")

def g4_weights(g, V, j0=0, j1=32):
    a = g.a
    m = V.mark()
    l16 = V.get()
    srd(a, 16, P_WS, WGU, WGU_SZ)
    a(f"v_lshlrev_b32 v{l16}, 4, v{V_LANE}")
    n = 0
    for gq in range(j0 // 8, (j1 + 7) // 8):
        a(f"s_add_u32 s24, s{S_W}, {gq}")
        a(f"s_and_b32 s24, s24, 3")
        a(f"s_lshl_b32 s24, s24, 13")
        a(f"s_lshl_b32 s25, s{S_KK}, 16")
        a(f"s_add_u32 s25, s25, s24")
        for jj in range(8):
            j = gq * 8 + jj
            if j < j0 or j >= j1: continue
            for p in range(2):
                a(f"s_add_u32 s24, s25, {p*32768 + (jj>>2)*4096}")
                a(f"buffer_load_dwordx4 {vr((2*j+p)*4,4,'a')}, v{l16}, s[16:19], s24 offen offset:{(jj&3)*1024}{g.ld}")
                n += 1
    V.release(m)
    return n

def g4_pre(g, V):
    a = g.a
    TOK = 32768; SSL = 98304
    st = {}
    t0 = V.get(); t1 = V.get(); dv = V.get(); l16 = V.get()
    sNT, sXo, sM0 = 35, 36, 37
    a(f"s_cmp_eq_u32 s{S_RT}, 21")
    a(f"s_cselect_b32 s{sNT}, 1, 3")
    a(f"v_lshlrev_b32 v{l16}, 4, v{V_LANE}")
    a(f"v_mov_b32 v{dv}, v{l16}")
    a(f"s_mul_i32 s{sXo}, s{S_RT}, {3*32768}")
    a(f"s_lshl_b32 s24, s{S_W}, 13")
    a(f"s_add_u32 s{sXo}, s{sXo}, s24")
    a(f"s_lshl_b32 s{sM0}, s{S_W}, 13")
    ad = V.get(4, 1)
    a(f"v_and_b32 v{t0}, 15, v{V_LANE}")
    a(f"v_lshrrev_b32 v{t1}, 2, v{t0}")
    a(f"v_lshl_add_u32 v{t1}, v{V_HH}, 2, v{t1}")
    a(f"v_lshlrev_b32 v{t1}, 6, v{t1}")
    a(f"v_and_b32 v{t0}, 3, v{t0}")
    a(f"v_lshl_add_u32 v{t1}, v{t0}, 3, v{t1}")
    a(f"v_lshrrev_b32 v{t0}, 4, v{V_LANE}")
    a(f"v_and_b32 v{t0}, 1, v{t0}")
    a(f"v_lshl_add_u32 v{t1}, v{t0}, 5, v{t1}")
    for gq in range(4):
        a(f"s_add_u32 s24, s{S_W}, {gq}")
        a(f"s_and_b32 s24, s24, 3")
        a(f"s_lshl_b32 s24, s24, 13")
        a(f"v_add_u32 v{ad+gq}, s24, v{t1}")
    msk = V.get(); sad = V.get(); srd_ = V.get(); Mk = V.get(16)
    a(f"v_cmp_eq_u32 vcc, 0, v{V_HH}")
    a(f"s_cmp_eq_u32 s{S_W}, 0")
    a(f"s_cselect_b64 s[26:27], vcc, 0")
    a(f"v_mov_b32 v{t0}, 0xffff0000")
    a(f"v_cndmask_b32 v{msk}, -1, v{t0}, s[26:27]")
    a(f"v_lshlrev_b32 v{t0}, 2, v{V_HH}")
    a(f"v_sub_u32 v{t0}, v{V_L31}, v{t0}")
    for r in range(16):
        a(f"v_cmp_eq_u32 vcc, {8*(r>>2) + (r&3)}, v{t0}")
        a(f"v_cndmask_b32 v{Mk+r}, 0, 1.0, vcc")
    a(f"v_lshlrev_b32 v{srd_}, 5, v{V_L31}")
    a(f"v_add_u32 v{srd_}, {SSL}, v{srd_}")
    a(f"v_lshl_add_u32 v{sad}, v{V_HH}, 2, v{srd_}")
    a(f"s_lshl_b32 s24, s{S_W}, 3")
    a(f"v_add_u32 v{sad}, s24, v{sad}")
    a(f"s_mul_i32 s38, s{S_RT}, {3*86*1024}")
    a(f"s_lshl_b32 s25, s{S_KK}, 11")
    a(f"s_add_u32 s38, s38, s25")
    a(f"s_cmp_ge_u32 s{S_KK}, 43")
    a(f"s_cselect_b32 s25, 0x7f000000, 0")
    a(f"s_add_u32 s38, s38, s25")
    st.update(dv=dv, l16=l16, ad=ad, msk=msk, sad=sad, srd_=srd_, Mk=Mk, sNT=sNT, sXo=sXo, sM0=sM0)
    return st

def g4_main(g, V, st, XPin, Hout, side2=None, side2_all=None):
    a = g.a
    TOK = 32768
    dv, l16, ad, msk, sad, srd_, Mk, sNT, sXo, sM0 = (st[k] for k in ('dv', 'l16', 'ad', 'msk', 'sad', 'srd_', 'Mk', 'sNT', 'sXo', 'sM0'))
    srd(a, 8, P_WS, XPin, XP_SZ)
    srd(a, 12, P_WS, Hout, H_SZ)
    def dma_groups(t):
        out = []
        for mm in range(8):
            out.append([Ins(f"s_add_u32 m0, s{sM0}, {t*TOK + mm*1024}"),
                        Ins(f"s_add_u32 s39, s{sXo}, {mm*1024 + t*32768}"),
                        Ins(f"buffer_load_dwordx4 v{dv}, s[8:11], s39 offen{g.ld} lds")])
        return out
    vm = Cnt(a, "vmcnt", 63); st['vm'] = vm
    st['dtk'] = []
    for grp in dma_groups(0):
        a.items.extend(grp[:-1]); st['dtk'].append(vm.issue(grp[-1].text))
    NR = 6
    fr = V.get(4 * NR)
    acc = V.get(64)
    Dg = V.get(16); fz = V.get(4)
    dg2 = V.get(2)
    kc = V.get(6); sv = V.get(8); et = V.get(24); hb = V.get(8)
    c0 = -2.0 * math.sqrt(2.0 / math.pi) * math.log2(math.e); c1 = c0 * 0.044715
    state = {}
    def mk_epi(t, pk):
        ops = []
        A0 = acc + (t & 1) * 32
        ops.append(("ds", f"ds_read_b128 {vr(sv,4)}, v{srd_} offset:{t*1024}"))
        ops.append(("ds", f"ds_read_b128 {vr(sv+4,4)}, v{srd_} offset:{t*1024+16}"))
        for _ in range(0 if pk else 9): ops.append(None)
        ops.append(("waitds", None))
        for j in range(4): ops.append(f"v_add_f32 v{sv+j}, v{sv+j}, v{sv+4+j}")
        ops.append(f"v_add_f32 v{sv}, v{sv}, v{sv+1}")
        ops.append(f"v_add_f32 v{sv+2}, v{sv+2}, v{sv+3}")
        ops.append(f"v_add_f32 v{sv}, v{sv}, v{sv+2}")
        ops.append(f"v_mul_f32 v{sv}, {fhex(1/512)}, v{sv}")
        ops.append(f"v_add_f32 v{kc+4}, {fhex(1e-5)}, v{sv}")
        ops.append(f"v_rsq_f32 v{sv+1}, v{kc+4}")
        ops.append(f"s_nop 0")
        ops.append(f"v_mul_f32 v{kc}, {fhex(c0)}, v{sv+1}")
        ops.append(f"v_mul_f32 v{sv+2}, v{sv+1}, v{sv+1}")
        ops.append(f"v_mul_f32 v{sv+2}, v{sv+2}, v{sv+1}")
        ops.append(f"v_mul_f32 v{kc+2}, {fhex(c1)}, v{sv+2}")
        k0 = vr(kc, 2); k1 = vr(kc+2, 2); ir = vr(kc+4, 2)
        for f in range(2):
            chains = []
            for ii in range(4):
                i = 4*f + ii
                gg = vr(A0 + 2*i, 2); uu = vr(A0 + 16 + 2*i, 2)
                tq = et + ii * 6
                T1 = vr(tq, 2); T2 = vr(tq+2, 2); T3 = vr(tq+4, 2)
                if pk:
                    chains.append([f"v_pk_mul_f32 {T1}, {gg}, {gg}",
                        f"v_pk_mul_f32 {T3}, {gg}, {uu}",
                        f"v_pk_fma_f32 {T1}, {T1}, {k1}, {k0} op_sel_hi:[1,0,0]",
                        f"v_pk_mul_f32 {T1}, {T1}, {gg}",
                        f"v_exp_f32 v{tq+2}, v{tq}",
                        f"v_exp_f32 v{tq+3}, v{tq+1}",
                        f"v_pk_fma_f32 {T2}, {T2}, {ir}, {ir} op_sel_hi:[1,0,0]",
                        f"v_rcp_f32 v{tq+2}, v{tq+2}",
                        f"v_rcp_f32 v{tq+3}, v{tq+3}",
                        f"v_pk_mul_f32 {T3}, {T3}, {T2}",
                        f"v_cvt_pk_bf16_f32 v{hb+i}, v{tq+4}, v{tq+5}"])
                else:
                    g0 = A0 + 2*i; u0 = A0 + 16 + 2*i
                    chains.append([f"v_mul_f32 v{tq}, v{g0}, v{g0}", f"v_mul_f32 v{tq+1}, v{g0+1}, v{g0+1}",
                        f"v_mul_f32 v{tq+4}, v{g0}, v{u0}", f"v_mul_f32 v{tq+5}, v{g0+1}, v{u0+1}",
                        f"v_fma_f32 v{tq}, v{tq}, v{kc+2}, v{kc}", f"v_fma_f32 v{tq+1}, v{tq+1}, v{kc+2}, v{kc}",
                        f"v_mul_f32 v{tq}, v{tq}, v{g0}", f"v_mul_f32 v{tq+1}, v{tq+1}, v{g0+1}",
                        f"v_exp_f32 v{tq+2}, v{tq}", f"v_exp_f32 v{tq+3}, v{tq+1}",
                        f"v_fma_f32 v{tq+2}, v{tq+2}, v{kc+4}, v{kc+4}", f"v_fma_f32 v{tq+3}, v{tq+3}, v{kc+4}, v{kc+4}",
                        f"v_rcp_f32 v{tq+2}, v{tq+2}", f"v_rcp_f32 v{tq+3}, v{tq+3}",
                        f"v_mul_f32 v{tq+4}, v{tq+4}, v{tq+2}", f"v_mul_f32 v{tq+5}, v{tq+5}, v{tq+3}",
                        f"v_cvt_pk_bf16_f32 v{hb+i}, v{tq+4}, v{tq+5}"])
            for k in range(len(chains[0])):
                for ii in range(4): ops.append(chains[ii][k])
            ops.append(f"s_add_u32 s24, s38, {(t*86 + f)*1024}")
            ops.append(("vm", f"buffer_store_dwordx4 {vr(hb+4*f,4)}, v{l16}, s[12:15], s24 offen{g.st}"))
        return ops
    Ldone = g.lab("g4_done")
    lg = Cnt(a, "lgkmcnt", 15)
    vm = st['vm']
    def emit_op(o):
        if o is None: return
        if isinstance(o, tuple):
            if o[0] == "ds": state['dst'] = lg.issue(o[1])
            elif o[0] == "waitds": lg.wait(state['dst'])
            elif o[0] == "vm": vm.issue(o[1])
        else: a(o)
    def emit_dma(grp):
        a.items.extend(grp[:-1]); return vm.issue(grp[-1].text)
    tick = {}
    adcur = [0]
    def issue_reads(J):
        t, j = divmod(J, 32)
        gq = j >> 3
        if t == 2 and j % 8 == 0:
            a(f"v_add_u32 v{ad+gq}, {TOK}, v{ad+gq}")
        toff = 0 if t < 2 else -TOK
        for rd in range(2):
            off = t*TOK + (j & 7)*1024 + rd*512 + toff
            tick[J] = lg.issue(f"ds_read_b64_tr_b16 {vr(fr + (J % NR)*4 + 2*rd,2)}, v{ad+gq} offset:{off}")
    PF = 4
    dtk = st['dtk']
    dm = dma_groups(1) + dma_groups(2)
    dmt = []
    vm.wait(dtk[PF - 1])
    for J in range(PF): issue_reads(J)
    epi = []
    for J in range(96):
        t, j = divmod(J, 32)
        if j == 0 and t == 1:
            a(f"s_cmp_eq_u32 s{sNT}, 1")
            a(f"s_cbranch_scc1 {Ldone}_1")
        if j == 0:
            if getattr(g, 'fineg4', False): g.stamp(f"g4p{t}")
            epi = mk_epi(t - 1, False) if t > 0 else []
        if j % 2 == 0: lg.wait(tick[min(J + 1, 95)])
        f = fr + (J % NR) * 4
        A0 = acc + (t & 1) * 32
        for p in range(2):
            d = A0 + 16*p
            c = "0" if j == 0 else vr(d, 16)
            a(f"{M32} {vr(d,16)}, {vr((2*j+p)*4,4,'a')}, {vr(f,4)}, {c}")
            if p == 0 and J + PF < 96:
                Jn = J + PF
                if Jn < 8: vm.wait(dtk[Jn])
                if Jn == 8: a("s_barrier")
                issue_reads(Jn)
            if p == 1 and dm and t == 0 and j >= 4 and j % 1 == 0 and len(dmt) < 16:
                dmt.append(emit_dma(dm.pop(0)))
            if p == 1 and t == 2 and side2 and j < len(side2):
                for x in side2[j]:
                    if x.startswith("buffer"): vm.issue(x)
                    else: a(x)
            if j >= 2:
                for _ in range(3):
                    if epi: emit_op(epi.pop(0))
        if j < 8:
            if j == 0:
                a(f"v_and_b32 v{fz}, v{msk}, v{f}")
                for q in range(1, 4): a(f"v_mov_b32 v{fz+q}, v{f+q}")
                a(f"{M32} {vr(Dg,16)}, {vr(fz,4)}, {vr(fz,4)}, 0")
            else:
                a(f"{M32} {vr(Dg,16)}, {vr(f,4)}, {vr(f,4)}, {vr(Dg,16)}")
        if j == 10:
            a(f"v_mul_f32 v{dg2}, v{Dg}, v{Mk}")
            a(f"v_mul_f32 v{dg2+1}, v{Dg+1}, v{Mk+1}")
            for r in range(2, 16): a(f"v_fmac_f32 v{dg2+(r&1)}, v{Dg+r}, v{Mk+r}")
            a(f"v_add_f32 v{dg2}, v{dg2}, v{dg2+1}")
            state['stw'] = lg.issue(f"ds_write_b32 v{sad}, v{dg2} offset:{t*1024}")
        if j == 27:
            if t < 2: vm.wait(dmt[8*t + 7])
            a("s_barrier")
        if j == 31:
            while epi: emit_op(epi.pop(0))
    if getattr(g, 'fineg4', False): g.stamp("g4p3")
    for o in mk_epi(2, True): emit_op(o)
    a(f"s_branch {Ldone}")
    a.label(f"{Ldone}_1")
    lg = Cnt(a, "lgkmcnt", 15)
    a("s_waitcnt lgkmcnt(0)")
    for o in mk_epi(0, True): emit_op(o)
    if side2:
        for grp in side2:
            for x in grp: a(x)
    a.label(Ldone)

S_R64, S_SG, S_K0, S_NK = 40, 41, 42, 43
NKMAX = 22
def g5_map(g):
    a = g.a
    a(f"s_lshr_b32 s24, s{S_L}, 3")
    a(f"s_lshl_b32 s{S_R64}, s{S_X}, 2")
    a(f"s_add_u32 s{S_R64}, s{S_R64}, s24")
    a(f"s_and_b32 s{S_SG}, s{S_L}, 7")
    a(f"s_mul_i32 s{S_K0}, s{S_W}, 22")
    a(f"s_cmp_eq_u32 s{S_W}, 3")
    a(f"s_cselect_b32 s24, 1, 0")
    a(f"s_sub_u32 s{S_K0}, s{S_K0}, s24")

ACC5 = 176
def g5w_setup(g, vo, final):
    a = g.a
    srd(a, 16, P_WS, WDF if final else WDP, WDP_SZ)
    if final:
        a(f"s_lshl_b32 s24, s{S_W}, 3")
        a(f"v_xor_b32 v{vo}, s24, v{V_LANE}")
        a(f"v_lshlrev_b32 v{vo}, 4, v{vo}")
    else:
        a(f"v_lshlrev_b32 v{vo}, 4, v{V_LANE}")
    a(f"s_mul_i32 s47, s{S_SG}, {2*86*1024}")
    a(f"s_lshl_b32 s24, s{S_K0}, 10")
    a(f"s_add_u32 s47, s47, s24")
    a(f"s_cmp_ge_u32 s{S_W}, 2")
    a(f"s_cselect_b32 s48, 0x7f000000, 0")
    a(f"s_add_u32 s48, s48, s47")
    groups = []
    for i in range(22):
        grp = []
        for tile in range(2):
            base = 47 if i < 21 else 48
            grp.append(f"s_add_u32 s63, s{base}, {tile*86*1024 + (i>>2)*4096}")
            grp.append(f"buffer_load_dwordx4 {vr((i*2+tile)*4,4,'a')}, v{vo}, s[16:19], s63 offen offset:{(i&3)*1024}{g.ld}")
        groups.append(grp)
    return groups

def g5_resid_load(g, V, XPres):
    a = g.a
    res = V.get(8); vo = V.get()
    srd(a, 12, P_WS, XPres, XP_SZ)
    a(f"v_lshlrev_b32 v{vo}, 6, v{V_L31}")
    a(f"v_lshl_add_u32 v{vo}, v{V_HH}, 3, v{vo}")
    a(f"s_lshl_b32 s24, s{S_SG}, 12")
    a(f"s_lshl_b32 s25, s{S_R64}, 16")
    a(f"s_add_u32 s24, s24, s25")
    a(f"s_lshl_b32 s25, s{S_W}, 4")
    a(f"s_add_u32 s24, s24, s25")
    for tr in range(2):
        for tc in range(2):
            a(f"s_add_u32 s25, s24, {tr*32768 + tc*2048}")
            a(f"buffer_load_dwordx2 {vr(res+(2*tr+tc)*2,2)}, v{vo}, s[12:15], s25 offen{g.ld}")
    return res

STG7 = 65536
def g7_gpart(g, V, XPin):
    a = g.a
    m = V.mark()
    GA = V.get(64); B = V.get(64); vo = V.get(); dv = V.get(); ad = V.get(); t = V.get()
    srd(a, 8, P_WS, XPin, XP_SZ)
    srd(a, 12, P_WS, GF, GF_SZ)
    a(f"v_lshlrev_b32 v{dv}, 4, v{V_LANE}")
    a(f"s_lshl_b32 s25, s{S_W}, 13")
    a(f"s_lshl_b32 s24, s{S_R64}, 16")
    a(f"s_add_u32 s25, s25, s24")
    a(f"s_lshl_b32 s26, s{S_W}, 14")
    a(f"s_add_u32 s26, s26, {STG7}")
    for tc in range(2):
        for mm in range(8):
            a(f"s_add_u32 m0, s26, {tc*8192 + mm*1024}")
            a(f"s_add_u32 s24, s25, {mm*1024 + tc*32768}")
            a(f"buffer_load_dwordx4 v{dv}, s[8:11], s24 offen{g.ld} lds")
    a(f"s_lshl_b32 s24, s{S_W}, 3")
    a(f"v_xor_b32 v{vo}, s24, v{V_LANE}")
    a(f"v_lshlrev_b32 v{vo}, 4, v{vo}")
    a(f"s_lshl_b32 s25, s{S_SG}, 16")
    a(f"s_lshl_b32 s24, s{S_W}, 13")
    a(f"s_add_u32 s25, s25, s24")
    for tr in range(2):
        for i in range(8):
            a(f"s_add_u32 s24, s25, {tr*32768 + (i>>2)*4096}")
            a(f"buffer_load_dwordx4 {vr(GA+(tr*8+i)*4,4)}, v{vo}, s[12:15], s24 offen offset:{(i&3)*1024}{g.ld}")
    a(f"v_and_b32 v{t}, 15, v{V_LANE}")
    a(f"v_lshrrev_b32 v{ad}, 2, v{t}")
    a(f"v_lshl_add_u32 v{ad}, v{V_HH}, 2, v{ad}")
    a(f"v_lshlrev_b32 v{ad}, 6, v{ad}")
    a(f"v_and_b32 v{t}, 3, v{t}")
    a(f"v_lshl_add_u32 v{ad}, v{t}, 3, v{ad}")
    a(f"v_lshrrev_b32 v{t}, 4, v{V_LANE}")
    a(f"v_and_b32 v{t}, 1, v{t}")
    a(f"v_lshl_add_u32 v{ad}, v{t}, 5, v{ad}")
    a(f"v_add_u32 v{ad}, s26, v{ad}")
    a("s_waitcnt vmcnt(16)")
    for tc in range(2):
        for i in range(8):
            for rd in range(2):
                a(f"ds_read_b64_tr_b16 {vr(B+(tc*8+i)*4+2*rd,2)}, v{ad} offset:{tc*8192 + i*1024 + rd*512}")
    a("s_waitcnt vmcnt(0) lgkmcnt(0)")
    for i in range(8):
        for tr in range(2):
            for tc in range(2):
                d = ACC5 + (2*tr+tc)*16
                c = "0" if i == 0 else vr(d, 16, 'a')
                a(f"{M32} {vr(d,16,'a')}, {vr(GA+(tr*8+i)*4,4)}, {vr(B+(tc*8+i)*4,4)}, {c}")
    V.release(m)

def g5_main(g, V, Hin, final, res=None, XPout=None, SSout=None):
    a = g.a
    srd(a, 8, P_WS, Hin, H_SZ)
    Hf = V.get(176); vo = V.get()
    if final:
        a(f"v_lshlrev_b32 v{vo}, 4, v{V_LANE}")
    else:
        a(f"s_lshl_b32 s24, s{S_W}, 3")
        a(f"v_xor_b32 v{vo}, s24, v{V_LANE}")
        a(f"v_lshlrev_b32 v{vo}, 4, v{vo}")
    a(f"s_mul_i32 s25, s{S_R64}, {2*86*1024}")
    a(f"s_lshl_b32 s24, s{S_K0}, 10")
    a(f"s_add_u32 s25, s25, s24")
    vm = Cnt(a, "vmcnt", 63)
    tk = {}
    def ld(i):
        for tile in range(2):
            a(f"s_add_u32 s24, s25, {tile*86*1024 + (i>>2)*4096}")
            tk[i] = vm.issue(f"buffer_load_dwordx4 {vr(Hf+(i*2+tile)*4,4)}, v{vo}, s[8:11], s24 offen offset:{(i&3)*1024}{g.ld}")
    def mm(i, mid=None):
        for tr in range(2):
            if tr == 1 and mid: mid()
            for tc in range(2):
                d = ACC5 + (2*tr+tc)*16
                c = "0" if (i == 0 and not final) else vr(d, 16, 'a')
                if final: A = vr((i*2+tr)*4, 4, 'a'); B = vr(Hf+(i*2+tc)*4, 4)
                else: A = vr(Hf+(i*2+tr)*4, 4); B = vr((i*2+tc)*4, 4, 'a')
                a(f"{M32} {vr(d,16,'a')}, {A}, {B}, {c}")
    AH = 6
    L = g.lab("g5l")
    a(f"s_cmp_ge_u32 s{S_W}, 2")
    a(f"s_cbranch_scc1 {L}")
    for tile in range(2):
        a(f"s_add_u32 s24, s25, {tile*86*1024 + (21>>2)*4096}")
        a(f"buffer_load_dwordx4 {vr(Hf+(21*2+tile)*4,4)}, v{vo}, s[8:11], s24 offen offset:{(21&3)*1024}{g.ld}")
    a.label(L)
    for i in range(AH): ld(i)
    if getattr(g, 'fine', False): g.stamp("g5_iss")
    for i in range(21):
        vm.wait(tk[i])
        mm(i, (lambda: ld(i + AH)) if i + AH < 21 else None)
    if getattr(g, 'fine', False): g.stamp("g5_mm")
    L2 = g.lab("g5m")
    a(f"s_cmp_ge_u32 s{S_W}, 2")
    a(f"s_cbranch_scc1 {L2}")
    mm(21)
    a.label(L2)
    Hm = Hf
    reduce_write(g, V, lambda k, grp: ACC5 + k*16 + grp*4, 'a', 'g')
    a("s_waitcnt lgkmcnt(0)")
    a("s_barrier")
    part = Hf; val = Hf + 48; own = Hf + 64
    if getattr(g, 'fine', False): g.stamp("g5_rw")
    reduce_read(g, V, part)
    for k in range(4):
        for t in range(4):
            a(f"v_accvgpr_read_b32 v{own+4*k+t}, a{ACC5+k*16+t}")
    if not final:
        rx = Hf + 80
        for k in range(4):
            for j in range(2):
                a(f"v_lshlrev_b32 v{rx+4*k+2*j}, 16, v{res+2*k+j}")
                a(f"v_and_b32 v{rx+4*k+2*j+1}, 0xffff0000, v{res+2*k+j}")
        for r in range(16): a(f"v_add_f32 v{own+r}, v{own+r}, v{rx+r}")
    a("s_waitcnt lgkmcnt(0)")
    for r in range(16):
        a(f"v_add_f32 v{val+r}, v{own+r}, v{part+r}")
        a(f"v_add_f32 v{part+16+r}, v{part+16+r}, v{part+32+r}")
    for r in range(16): a(f"v_add_f32 v{val+r}, v{val+r}, v{part+16+r}")
    V2 = Alloc(Hf + 96, Hf + 176)
    if not final:
        a(f"s_lshl_b32 s28, s{S_R64}, 6")
        stats_out(g, V2, val, S_SG, 28, SSout, None)
        planes_out(g, V2, val, S_R64, S_SG, XPout, OT=49152)
    else:
        srd(a, 8, P_OUT, 0, 2048 * 512 * 2)
        def rowfn():
            vo2 = V2.get(); t = V2.get()
            a(f"v_lshrrev_b32 v{t}, 3, v0")
            a(f"v_lshlrev_b32 v{vo2}, 15, v{t}")
            a(f"v_and_b32 v{t}, 7, v0")
            a(f"v_lshl_add_u32 v{vo2}, v{t}, 4, v{vo2}")
            a(f"s_lshl_b32 s24, s{S_R64}, 10")
            a(f"s_lshl_b32 s25, s{S_SG}, 7")
            a(f"s_add_u32 s24, s24, s25")
            a(f"s_add_u32 s25, s24, {32*32768}")
            return vo2, ["s24", "s25"], ""
        epi_out(g, V2, val, 49152, 8, rowfn)

NINIT = 20
RF = SYNC + 16384
SYNC_SZ = NINIT * 1024
SPIN_MAX = 1 << 20
def sync_init(g):
    a = g.a
    L = g.lab("noinit")
    a(f"s_cmp_ge_u32 s2, {NINIT}")
    a(f"s_cbranch_scc1 {L}")
    a(f"s_cmp_lg_u32 s{S_W}, 0")
    a(f"s_cbranch_scc1 {L}")
    srd(a, 8, P_WS, SYNC, SYNC_SZ)
    for i in range(4): a(f"v_mov_b32 v{8+i}, 0")
    a(f"v_lshlrev_b32 v4, 4, v{V_LANE}")
    a(f"s_lshl_b32 s24, s2, 10")
    a(f"buffer_store_dwordx4 v[8:11], v4, s[8:11], s24 offen sc0 sc1")
    a("s_waitcnt vmcnt(0)")
    srd(a, 8, P_DBG, 0, 256)
    a("v_mov_b32 v8, 1")
    a("v_mov_b32 v4, 0")
    a("s_mov_b64 exec, 1")
    a("buffer_atomic_add v8, v4, s[8:11], 0 offen sc1")
    a("s_mov_b64 exec, -1")
    a.label(L)

def poll(g, srdreg, vaddr, vdata, nlanes, target, soff="0"):
    a = g.a
    Lp = g.lab("poll"); Ld = g.lab("polld")
    a(f"s_mov_b64 exec, {hex((1 << nlanes) - 1)}")
    a(f"s_mov_b32 s31, 0")
    a.label(Lp)
    a(f"buffer_load_dword v{vdata}, v{vaddr}, s[{srdreg}:{srdreg+3}], {soff} offen sc0 sc1")
    a(f"s_add_u32 s31, s31, 1")
    a("s_waitcnt vmcnt(0)")
    a(f"v_cmp_le_u32 vcc, {hex(target)}, v{vdata}")
    a(f"s_cmp_eq_u64 vcc, exec")
    a(f"s_cbranch_scc1 {Ld}")
    a(f"s_cmp_lt_u32 s31, {SPIN_MAX}")
    a(f"s_cbranch_scc1 {Lp}")
    a.label(Ld)
    a("s_mov_b64 exec, -1")

def arrive(g, b, vt, first=False, younger=0):
    a = g.a
    L = g.lab("arr")
    a(f"s_waitcnt vmcnt({younger}) lgkmcnt(0)")
    a("s_barrier")
    a(f"s_cmp_lg_u32 s{S_W}, 0")
    a(f"s_cbranch_scc1 {L}")
    if first:
        Lok = g.lab("dbgok")
        a(f"v_readfirstlane_b32 s24, v{first}")
        a(f"s_cmp_ge_u32 s24, {NINIT}")
        a(f"s_cbranch_scc1 {Lok}")
        srd(a, 4, P_DBG, 0, 256)
        a(f"v_mov_b32 v{vt}, 0")
        poll(g, 4, vt, vt + 1, 1, NINIT)
        a.label(Lok)
    srd(a, 4, P_WS, SYNC, SYNC_SZ)
    a(f"v_lshlrev_b32 v{vt}, 3, v{V_LANE}")
    a(f"v_add_u32 v{vt}, s{S_X}, v{vt}")
    a(f"v_lshlrev_b32 v{vt}, 7, v{vt}")
    a(f"v_mov_b32 v{vt+1}, 1")
    a(f"s_mov_b64 exec, 0xffff")
    a(f"buffer_atomic_add v{vt+1}, v{vt}, s[4:7], 0 offen offset:{4*b} sc1")
    a(f"s_mov_b64 exec, -1")
    a.label(L)

def wait(g, b, vt, target=32):
    a = g.a
    L = g.lab("wt")
    a(f"s_cmp_lg_u32 s{S_W}, 0")
    a(f"s_cbranch_scc1 {L}")
    srd(a, 4, P_WS, SYNC + 4 * b, SYNC_SZ - 4 * b)
    a(f"s_and_b32 s24, s{S_L}, 15")
    a(f"s_lshl_b32 s24, s24, 3")
    a(f"v_add_u32 v{vt}, s24, v{V_LANE}")
    a(f"v_lshlrev_b32 v{vt}, 7, v{vt}")
    poll(g, 4, vt, vt + 1, 8, target)
    a.label(L)
    a("s_barrier")

def arrive_row(g, ph, vt, younger=0):
    a = g.a
    L = g.lab("arr")
    a(f"s_waitcnt vmcnt({younger}) lgkmcnt(0)")
    a("s_barrier")
    a(f"s_cmp_lg_u32 s{S_W}, 0")
    a(f"s_cbranch_scc1 {L}")
    srd(a, 4, P_WS, RF, 4096)
    a(f"s_lshl_b32 s24, s{S_RT}, 7")
    a(f"v_mov_b32 v{vt}, 0")
    a(f"v_mov_b32 v{vt+1}, 1")
    a(f"s_mov_b64 exec, 1")
    a(f"buffer_atomic_add v{vt+1}, v{vt}, s[4:7], s24 offen offset:{4*ph} sc1")
    a(f"s_mov_b64 exec, -1")
    a.label(L)

def wait_row(g, ph, vt):
    a = g.a
    L = g.lab("wt")
    a(f"s_cmp_lg_u32 s{S_W}, 0")
    a(f"s_cbranch_scc1 {L}")
    srd(a, 4, P_WS, RF + 4 * ph, 4096 - 4 * ph)
    a(f"s_lshl_b32 s24, s{S_R64}, 1")
    a(f"v_add_u32 v{vt}, s24, v{V_LANE}")
    a(f"v_mul_u32_u24 v{vt}, 43691, v{vt}")
    a(f"v_lshrrev_b32 v{vt}, 17, v{vt}")
    a(f"v_lshlrev_b32 v{vt}, 7, v{vt}")
    poll(g, 4, vt, vt + 1, 2, 11)
    a.label(L)
    a("s_barrier")


def code_prefetch(g, start_label, end_label):
    a = g.a
    L = g.lab("pc")
    a("s_getpc_b64 s[26:27]")
    a.label(L)
    a(f"s_sub_u32 s26, s26, {L}-{start_label}")
    a("s_subb_u32 s27, s27, 0")
    a(f"s_lshl_b32 s24, s{S_L}, 12")
    a("v_lshlrev_b32 v4, 4, v0")
    a("v_add_u32 v4, s24, v4")
    a(f"s_mov_b32 s24, {end_label}-{start_label}-16")
    a("v_cmp_gt_u32 vcc, s24, v4")
    a("s_and_saveexec_b64 s[28:29], vcc")
    a(f"s_cbranch_execz {L}_skip")
    a("global_load_dwordx4 v[244:247], v4, s[26:27]")
    a.label(f"{L}_skip")
    a("s_mov_b64 exec, s[28:29]")


def dbg_load(g, vdst, vz):
    a = g.a
    srd(a, 4, P_DBG, 0, 256)
    a(f"v_mov_b32 v{vz}, 0")
    a(f"buffer_load_dword v{vdst}, v{vz}, s[4:7], 0 offen sc0 sc1")


def p1_touch(g, sRT, sSG):
    a = g.a
    L1 = g.lab("t1"); L2 = g.lab("t2"); L3 = g.lab("t3"); Le = g.lab("te"); Lb = g.lab("tb")
    a(f"s_cmp_eq_u32 s{S_W}, 0"); a(f"s_cbranch_scc1 {L1}")
    a(f"s_cmp_eq_u32 s{S_W}, 3"); a(f"s_cbranch_scc1 {L3}")
    a.label(L2)
    a(f"s_cmp_eq_u32 s{S_W}, 1")
    a(f"s_cselect_b32 s28, s{P_WG}, s{P_WU}")
    a(f"s_cselect_b32 s29, s{P_WG+1}, s{P_WU+1}")
    a(f"s_lshl_b32 s24, s{sSG}, 6")
    a(f"v_add_u32 v4, s24, v{V_LANE}")
    a(f"v_mul_u32_u24 v4, 2752, v4")
    a(f"s_lshl_b32 s24, s{sRT}, 6")
    a(f"v_add_u32 v4, s24, v4")
    a(f"global_load_dword a240, v4, s[28:29]")
    a(f"s_cmp_ge_u32 s{sRT}, 11"); a(f"s_cbranch_scc1 {Le}")
    a(f"v_add_u32 v4, {32*64}, v4")
    a(f"global_load_dword a241, v4, s[28:29]")
    a(f"s_branch {Le}")
    a.label(L1)
    a(f"v_lshrrev_b32 v4, 3, v{V_LANE}")
    a(f"s_lshl_b32 s24, s{sSG}, 3")
    a(f"v_add_u32 v4, s24, v4")
    a(f"v_lshlrev_b32 v4, 15, v4")
    a(f"v_and_b32 v5, 7, v{V_LANE}")
    a(f"v_lshl_add_u32 v4, v5, 7, v4")
    a(f"s_lshl_b32 s24, s{sRT}, 10")
    a(f"v_add_u32 v4, s24, v4")
    a(f"global_load_dword a240, v4, s[{P_X}:{P_X+1}]")
    a(f"s_branch {Le}")
    a.label(L3)
    a(f"s_sub_u32 s25, s{sRT}, 11")
    a(f"s_cmp_eq_u32 s{sRT}, 0")
    a(f"s_cselect_b32 s25, 21, s25")
    a(f"s_cmp_gt_u32 s25, 21"); a(f"s_cbranch_scc1 {Le}")
    a(f"s_lshl_b32 s25, s25, 6")
    a(f"s_lshl_b32 s24, s{sSG}, 3")
    a(f"s_add_u32 s24, s24, s25")
    a(f"v_lshrrev_b32 v4, 3, v{V_LANE}")
    a(f"v_add_u32 v4, s24, v4")
    a(f"v_min_u32 v4, 1375, v4")
    a(f"v_lshlrev_b32 v4, 10, v4")
    a(f"v_and_b32 v5, 7, v{V_LANE}")
    a(f"v_lshl_add_u32 v4, v5, 7, v4")
    a(f"global_load_dword a240, v4, s[{P_WD}:{P_WD+1}]")
    a.label(Le)

FS = 0
P1_STG = {2: 32768, 3: 65536, 0: 0, 1: 98304}
P1_OT = 131072
AF = 0
AA = 128
def aF(u, ks): return AF + (u * 16 + ks) * 4

def p1_genF(g, V, sSG):
    a = g.a
    m = V.mark()
    sl = V.get(); fk = V.get(); ab = V.get(); c_ = V.get(); t = V.get(); t2 = V.get(); ar = V.get(16); fd = V.get(); pk = V.get(8); wad = V.get()
    a(f"v_lshlrev_b32 v{t}, 3, v{V_HH}")
    a(f"v_cvt_f32_u32 v{fd}, v{t}")
    a(f"v_lshlrev_b32 v{wad}, 4, v{V_LANE}")
    a(f"s_sub_u32 s25, s{S_W}, 2")
    a(f"s_lshl_b32 s24, s25, 14")
    a(f"v_add_u32 v{wad}, s24, v{wad}")
    a(f"s_lshl_b32 s24, s{sSG}, 6")
    a(f"s_lshl_b32 s25, s25, 5")
    a(f"s_add_u32 s24, s24, s25")
    a(f"v_add_u32 v{sl}, s24, v{V_L31}")
    a(f"v_lshrrev_b32 v{t}, 1, v{sl}")
    a(f"v_and_b32 v{t2}, 1, v{sl}")
    a(f"v_cmp_eq_u32 vcc, 1, v{sl}")
    a(f"v_mov_b32 v{c_}, 256")
    a(f"v_cndmask_b32 v{t}, v{t}, v{c_}, vcc")
    a(f"v_mov_b32 v{c_}, 0")
    a(f"v_cndmask_b32 v{t2}, v{t2}, v{c_}, vcc")
    a(f"v_cvt_f32_u32 v{fk}, v{t}")
    a(f"v_mul_f32 v{fk}, {fhex(1/512)}, v{fk}")
    a(f"v_cvt_f32_u32 v{ab}, v{t2}")
    a(f"v_mul_f32 v{ab}, {fhex(0.25)}, v{ab}")
    a(f"v_fmac_f32 v{ab}, v{fk}, v{fd}")
    for ks in range(16):
        r = ar + 8*(ks & 1); p = pk + 4*(ks & 1)
        for j in range(8): a(f"v_fmamk_f32 v{r+j}, v{fk}, {fhex(float(16*ks+j))}, v{ab}")
        for j in range(8): a(f"v_fract_f32 v{r+j}, v{r+j}")
        for j in range(8): a(f"v_cos_f32 v{r+j}, v{r+j}")
        for j in range(4): a(f"v_cvt_pk_bf16_f32 v{p+j}, v{r+2*j}, v{r+2*j+1}")
        a(f"ds_write_b128 v{wad}, {vr(p,4)} offset:{FS + ks*1024}")
    V.release(m)

def p1_readF(g, V):
    a = g.a
    m = V.mark(); rad = V.get()
    a(f"v_lshlrev_b32 v{rad}, 4, v{V_LANE}")
    for u in range(2):
        for ks in range(16):
            a(f"ds_read_b128 {vr(aF(u,ks),4,'a')}, v{rad} offset:{FS + u*16384 + ks*1024}")
            if (u*16 + ks) % 12 == 11: a("s_waitcnt lgkmcnt(4)")
    a("s_waitcnt lgkmcnt(0)")
    V.release(m)

def rows_issue(g, V, base_ptr, nbytes, s_rowbase, row_shift, part=None, vo=None):
    a = g.a
    order = list(range(0, 4)) + list(range(16, 20)) + list(range(4, 8)) + list(range(20, 24)) + list(range(8, 12)) + list(range(24, 28)) + list(range(12, 16)) + list(range(28, 32))
    if True:
        if vo is None: vo = V.get()
        srd(a, 52, base_ptr, 0, nbytes)
        a(f"v_lshlrev_b32 v{vo}, {row_shift}, v{V_L31}")
        a(f"v_lshl_add_u32 v{vo}, v{V_HH}, 4, v{vo}")
    sel = order if part is None else (order[:16] if part == 0 else order[16:])
    for ks in sel:
        a(f"buffer_load_dwordx4 {vr(AA + ks*4, 4, 'a')}, v{vo}, s[52:55], s{s_rowbase} offen offset:{ks*32}")
    return vo

def unit_rows_main(g, V, acc):
    a = g.a
    order = [(0, 28), (4, 20), (8, 12), (12, 4)]
    for q in range(4):
        a(f"s_waitcnt vmcnt({24 - 8*q})")
        for ks in range(4*q, 4*q + 4):
            for hf in range(2):
                for u in range(2):
                    d = acc + (hf*2 + u)*16
                    c = "0" if ks == 0 else vr(d, 16)
                    a(f"{M32} {vr(d,16)}, {vr(AA + (ks + 16*hf)*4, 4, 'a')}, {vr(aF(u,ks),4,'a')}, {c}")

def lane_sign_scale(g, V, sSG):
    a = g.a
    sg_ = V.get(); sc0 = V.get(); t = V.get()
    a(f"v_lshlrev_b32 v{t}, 30, v{V_L31}")
    a(f"v_and_b32 v{t}, 0x80000000, v{t}")
    a(f"v_or_b32 v{sg_}, 0x3f800000, v{t}")
    a(f"v_cmp_gt_u32 vcc, 2, v{V_L31}")
    a(f"s_cmp_eq_u32 s{sSG}, 0")
    a(f"s_cselect_b64 s[26:27], vcc, 0")
    a(f"v_mov_b32 v{sc0}, {fhex(1/16)}")
    a(f"v_mov_b32 v{t}, {fhex(1/16/math.sqrt(2))}")
    a(f"v_cndmask_b32 v{sc0}, v{sc0}, v{t}, s[26:27]")
    return sg_, sc0

def unit_rows_combine(g, V, acc, sSG):
    a = g.a
    sg_, sc0 = lane_sign_scale(g, V, sSG)
    for u in range(2):
        for r in range(16):
            a(f"v_fma_f32 v{acc+u*16+r}, v{acc+32+u*16+r}, v{sg_}, v{acc+u*16+r}")
        for r in range(16):
            if u == 0: a(f"v_mul_f32 v{acc+r}, v{acc+r}, v{sc0}")
            else: a(f"v_mul_f32 v{acc+16+r}, {fhex(1/16)}, v{acc+16+r}")

def unitX_epi(g, V, acc, sRT, sSG):
    a = g.a
    unit_rows_combine(g, V, acc, sSG)
    val = acc
    if getattr(g, 'finex', False): g.stamp("x_comb")
    sq = acc + 32; tmp = acc + 48
    msk = V.get(); pk = V.get(16); wad = V.get(); rad = V.get(); o = V.get(16); t = V.get()
    a(f"v_cmp_eq_u32 vcc, 0, v{V_L31}")
    a(f"s_cmp_eq_u32 s{sSG}, 0")
    a(f"s_cselect_b64 s[26:27], vcc, 0")
    a(f"v_cndmask_b32 v{msk}, 1.0, 0, s[26:27]")
    for u in range(2):
        for j in range(8): a(f"v_cvt_pk_bf16_f32 v{pk+u*8+j}, v{val+u*16+2*j}, v{val+u*16+2*j+1}")
    a(f"s_mul_i32 s25, s{S_W}, 6144")
    a(f"s_add_u32 s25, s25, {P1_OT}")
    a(f"v_mul_u32_u24 v{wad}, 80, v{V_L31}")
    a(f"v_lshl_add_u32 v{wad}, v{V_HH}, 3, v{wad}")
    a(f"v_add_u32 v{wad}, s25, v{wad}")
    for u in range(2):
        for gq in range(4):
            a(f"ds_write_b64 v{wad}, {vr(pk+u*8+2*gq,2)} offset:{u*32*80 + gq*16}")
    a(f"v_lshrrev_b32 v{t}, 2, v{V_LANE}")
    a(f"v_mul_u32_u24 v{rad}, 80, v{t}")
    a(f"v_and_b32 v{t}, 3, v{V_LANE}")
    a(f"v_lshl_add_u32 v{rad}, v{t}, 4, v{rad}")
    a(f"v_add_u32 v{rad}, s25, v{rad}")
    for r in range(16):
        a(f"v_mul_f32 v{tmp+r}, v{val+r}, v{msk}")
        a(f"v_mul_f32 v{sq+r}, v{val+16+r}, v{val+16+r}")
    for r in range(16): a(f"v_fmac_f32 v{sq+r}, v{tmp+r}, v{tmp+r}")
    if getattr(g, 'finex', False): g.stamp("x_sq")
    a("s_waitcnt lgkmcnt(0)")
    for n in range(4): a(f"ds_read_b128 {vr(o+4*n,4)}, v{rad} offset:{n*16*80}")
    srd(a, 8, P_WS, XP[0], XP_SZ)
    a(f"v_lshlrev_b32 v{t}, 4, v{V_LANE}")
    a(f"s_lshl_b32 s24, s{sRT}, 16")
    a(f"s_lshl_b32 s26, s{S_W}, 15")
    a(f"s_add_u32 s24, s24, s26")
    a(f"s_lshl_b32 s26, s{sSG}, 12")
    a(f"s_add_u32 s24, s24, s26")
    for n in range(4):
        a(f"s_waitcnt lgkmcnt({3-n})")
        a(f"buffer_store_dwordx4 {vr(o+4*n,4)}, v{t}, s[8:11], s24 offen offset:{n*1024}{g.st}")
    if getattr(g, 'finex', False): g.stamp("x_st")
    sum32(g, [sq+i for i in range(16)], [tmp+i for i in range(16)])
    if getattr(g, 'finex', False): g.stamp("x_sum")
    a(f"v_lshlrev_b32 v{wad}, 4, v{V_HH}")
    a(f"s_add_u32 s25, s25, 5376")
    a(f"v_add_u32 v{wad}, s25, v{wad}")
    a(f"s_mov_b32 s26, 1"); a(f"s_mov_b32 s27, 1")
    a(f"s_mov_b64 exec, s[26:27]")
    for gq in range(4): a(f"ds_write_b128 v{wad}, {vr(sq+4*gq,4)} offset:{gq*32}")
    a(f"s_mov_b64 exec, -1")
    a(f"v_lshlrev_b32 v{t}, 4, v{V_LANE}")
    a(f"v_add_u32 v{rad}, s25, v{t}")
    a("s_waitcnt lgkmcnt(0)")
    a(f"s_mov_b64 exec, 0xff")
    a(f"ds_read_b128 {vr(o,4)}, v{rad}")
    srd(a, 12, P_WS, SS[0], SS_SZ)
    a(f"s_lshl_b32 s24, s{sSG}, 13")
    a(f"s_lshl_b32 s26, s{sRT}, 8")
    a(f"s_add_u32 s24, s24, s26")
    a(f"s_lshl_b32 s26, s{S_W}, 7")
    a(f"s_add_u32 s24, s24, s26")
    a("s_waitcnt lgkmcnt(0)")
    a(f"buffer_store_dwordx4 {vr(o,4)}, v{t}, s[12:15], s24 offen{g.st}")
    a(f"s_mov_b64 exec, -1")

def unitD_epi(g, V, acc, sFU, sSG):
    a = g.a
    unit_rows_combine(g, V, acc, sSG)
    pk = acc + 32; t = V.get()
    for u in range(2):
        for j in range(8): a(f"v_cvt_pk_bf16_f32 v{pk+u*8+j}, v{acc+u*16+2*j}, v{acc+u*16+2*j+1}")
    srd(a, 8, P_WS, WDP, WDP_SZ)
    a(f"v_lshlrev_b32 v{t}, 4, v{V_LANE}")
    a(f"s_mul_i32 s24, s{sSG}, {2*86*1024}")
    a(f"s_lshl_b32 s25, s{sFU}, 11")
    a(f"s_add_u32 s24, s24, s25")
    for u in range(2):
        a(f"s_add_u32 s25, s24, {u*86*1024}")
        for f in range(2):
            a(f"buffer_store_dwordx4 {vr(pk+u*8+4*f,4)}, v{t}, s[8:11], s25 offen offset:{f*1024}{g.st}")

def unitW_issue(g, V, sNT, s_stg):
    a = g.a
    vo = V.get(); t = V.get()
    a(f"s_and_b32 s49, s{sNT}, 1")
    a(f"s_cmp_eq_u32 s49, 0")
    a(f"s_cselect_b32 s56, s{P_WG}, s{P_WU}")
    a(f"s_cselect_b32 s57, s{P_WG+1}, s{P_WU+1}")
    a(f"s_mov_b32 s58, {hex(512*1376*2)}")
    a(f"s_mov_b32 s59, 0x00020000")
    a(f"v_lshrrev_b32 v{t}, 2, v{V_LANE}")
    a(f"v_mul_u32_u24 v{vo}, 2752, v{t}")
    a(f"v_and_b32 v{t}, 3, v{V_LANE}")
    a(f"v_lshl_add_u32 v{vo}, v{t}, 4, v{vo}")
    a(f"s_lshr_b32 s50, s{sNT}, 1")
    a(f"s_lshl_b32 s50, s50, 6")
    order = list(range(0, 4)) + list(range(16, 20)) + list(range(4, 8)) + list(range(20, 24)) + list(range(8, 12)) + list(range(24, 28)) + list(range(12, 16)) + list(range(28, 32))
    for m in order:
        a(f"s_add_u32 m0, s{s_stg}, {m*1024}")
        a(f"s_add_u32 s49, s50, {m*16*2752}")
        a(f"buffer_load_dwordx4 v{vo}, s[56:59], s49 offen lds")

def unitW_main(g, V, acc, s_stg):
    a = g.a
    m = V.mark()
    NR = 8
    fr = V.get(4*NR); ad = V.get(); t = V.get()
    a(f"v_and_b32 v{t}, 15, v{V_LANE}")
    a(f"v_lshrrev_b32 v{ad}, 2, v{t}")
    a(f"v_lshl_add_u32 v{ad}, v{V_HH}, 3, v{ad}")
    a(f"v_lshlrev_b32 v{ad}, 6, v{ad}")
    a(f"v_and_b32 v{t}, 3, v{t}")
    a(f"v_lshl_add_u32 v{ad}, v{t}, 3, v{ad}")
    a(f"v_lshrrev_b32 v{t}, 4, v{V_LANE}")
    a(f"v_and_b32 v{t}, 1, v{t}")
    a(f"v_lshl_add_u32 v{ad}, v{t}, 5, v{ad}")
    a(f"v_add_u32 v{ad}, s{s_stg}, v{ad}")
    for q in range(4):
        a(f"s_waitcnt vmcnt({24 - 8*q})")
        seq = [(ks, hf) for ks in range(4*q, 4*q+4) for hf in range(2)]
        for i, (ks, hf) in enumerate(seq):
            for rd in range(2):
                a(f"ds_read_b64_tr_b16 {vr(fr + i*4 + 2*rd, 2)}, v{ad} offset:{(ks + 16*hf)*1024 + rd*256}")
        for i, (ks, hf) in enumerate(seq):
            a(f"s_waitcnt lgkmcnt({2*(7-i)})")
            for u in range(2):
                d = acc + (hf*2 + u)*16
                c = "0" if ks == 0 else vr(d, 16)
                a(f"{M32} {vr(d,16)}, {vr(aF(u,ks),4,'a')}, {vr(fr + i*4, 4)}, {c}")
    V.release(m)

def unitW_epi(g, V, acc, sNT, sSG):
    a = g.a
    s0 = V.get(); s1 = V.get(); t = V.get()
    for u in range(2):
        for r in range(16):
            hi = acc + 32 + u*16 + r
            if (r >> 1) & 1: a(f"v_sub_f32 v{acc+u*16+r}, v{acc+u*16+r}, v{hi}")
            else: a(f"v_add_f32 v{acc+u*16+r}, v{acc+u*16+r}, v{hi}")
    a(f"v_mov_b32 v{s0}, {fhex(1/16)}")
    a(f"v_mov_b32 v{s1}, {fhex(1/16)}")
    a(f"v_cmp_eq_u32 vcc, 0, v{V_HH}")
    a(f"s_cmp_eq_u32 s{sSG}, 0")
    a(f"s_cselect_b64 s[26:27], vcc, 0")
    a(f"v_mov_b32 v{t}, 0")
    a(f"v_cndmask_b32 v{s0}, v{s0}, v{t}, s[26:27]")
    a(f"v_mov_b32 v{t}, {fhex(1/16/math.sqrt(2))}")
    a(f"v_cndmask_b32 v{s1}, v{s1}, v{t}, s[26:27]")
    a(f"v_mul_f32 v{acc}, v{acc}, v{s0}")
    a(f"v_mul_f32 v{acc+1}, v{acc+1}, v{s1}")
    for r in range(2, 32): a(f"v_mul_f32 v{acc+r}, {fhex(1/16)}, v{acc+r}")
    pk = acc + 32
    for j in range(16): a(f"v_cvt_pk_bf16_f32 v{pk+j}, v{acc+2*j}, v{acc+2*j+1}")
    srd(a, 8, P_WS, WGU, WGU_SZ)
    a(f"v_lshlrev_b32 v{t}, 4, v{V_LANE}")
    a(f"s_lshl_b32 s24, s{sNT}, 15")
    a(f"s_lshl_b32 s25, s{sSG}, 12")
    a(f"s_add_u32 s24, s24, s25")
    for n in range(4):
        a(f"buffer_store_dwordx4 {vr(pk+4*n,4)}, v{t}, s[8:11], s24 offen offset:{n*1024}{g.st}")

def arrive_wave(g, b, vt, younger=0):
    a = g.a
    a(f"s_waitcnt vmcnt({younger})")
    srd(a, 4, P_WS, SYNC, SYNC_SZ)
    a(f"v_lshlrev_b32 v{vt}, 3, v{V_LANE}")
    a(f"v_add_u32 v{vt}, s{S_X}, v{vt}")
    a(f"v_lshlrev_b32 v{vt}, 7, v{vt}")
    a(f"v_mov_b32 v{vt+1}, 1")
    a(f"s_mov_b64 exec, 0xffff")
    a(f"buffer_atomic_add v{vt+1}, v{vt}, s[4:7], 0 offen offset:{4*b} sc1")
    a(f"s_mov_b64 exec, -1")

def dbg_ready(g, vd, vt):
    a = g.a
    Lok = g.lab("dbgok")
    a(f"v_readfirstlane_b32 s24, v{vd}")
    a(f"s_cmp_ge_u32 s24, {NINIT}")
    a(f"s_cbranch_scc1 {Lok}")
    srd(a, 4, P_DBG, 0, 256)
    a(f"v_mov_b32 v{vt}, 0")
    poll(g, 4, vt, vt + 1, 1, NINIT)
    a.label(Lok)

def job4w_issue(g, V, q):
    a = g.a
    wt = V.get(8); wti = V.get(8)
    for n in range(8):
        td, r = n >> 2, n & 3
        a(f"s_add_u32 s49, s50, {514*64*(16*td + r + 4*q)}")
        a(f"buffer_load_ushort v{wt+n}, v{g.j4vo}, s[52:55], s49 offen")
        a(f"buffer_load_ushort v{wti+n}, v{g.j4vo}, s[56:59], s49 offen")
    return wt, wti


def touch_rows(g, ptr, s_rowbase, row_shift, sSG, dst):
    a = g.a
    a(f"v_lshrrev_b32 v4, 3, v{V_L31}")
    a(f"s_lshl_b32 s24, s{sSG}, 2")
    a(f"v_add_u32 v4, s24, v4")
    a(f"v_lshlrev_b32 v4, {row_shift}, v4")
    a(f"v_and_b32 v5, 7, v{V_LANE}")
    a(f"v_lshl_add_u32 v4, v5, 7, v4")
    a(f"v_add_u32 v4, s{s_rowbase}, v4")
    a(f"global_load_dword v{dst}, v4, s[{ptr}:{ptr+1}]")

def touch_cols(g, sNT, sSG, dst):
    a = g.a
    a(f"s_and_b32 s24, s{sNT}, 1")
    a(f"s_cmp_eq_u32 s24, 0")
    a(f"s_cselect_b32 s28, s{P_WG}, s{P_WU}")
    a(f"s_cselect_b32 s29, s{P_WG+1}, s{P_WU+1}")
    a(f"s_lshl_b32 s24, s{sSG}, 6")
    a(f"v_add_u32 v4, s24, v{V_LANE}")
    a(f"v_mul_u32_u24 v4, 2752, v4")
    a(f"s_lshr_b32 s24, s{sNT}, 1")
    a(f"s_lshl_b32 s24, s24, 6")
    a(f"v_add_u32 v4, s24, v4")
    a(f"global_load_dword v{dst}, v4, s[28:29]")

P1_FLAG = 156160
def lds_flag_wait(g, vt):
    a = g.a
    L = g.lab("lfw"); Ld = g.lab("lfwd")
    a(f"v_mov_b32 v{vt}, {P1_FLAG}")
    a(f"s_mov_b32 s31, 0")
    a.label(L)
    a(f"ds_read_b32 v{vt+1}, v{vt}")
    a(f"s_add_u32 s31, s31, 1")
    a("s_waitcnt lgkmcnt(0)")
    a(f"v_readfirstlane_b32 s24, v{vt+1}")
    a(f"s_cmp_eq_u32 s24, 1")
    a(f"s_cbranch_scc1 {Ld}")
    a(f"s_cmp_lt_u32 s31, {1 << 24}")
    a(f"s_cbranch_scc1 {L}")
    a.label(Ld)

def p1_v2(g, V, VT, stampf, fft_items=None):
    a = g.a
    sRT, sSG, sU1, sU2, sB, sSTG = 44, 45, 46, 62, 47, 48
    a(f"s_lshr_b32 s24, s{S_L}, 3")
    a(f"s_lshl_b32 s{sRT}, s{S_X}, 2")
    a(f"s_add_u32 s{sRT}, s{sRT}, s24")
    a(f"s_and_b32 s{sSG}, s{S_L}, 7")
    acc = V.get(64); VD = V.get(); VZ = V.get(); TD = V.get(2); XVO = V.get()
    LW = g.lab("roleW"); LJ = g.lab("rolej")
    a(f"v_mov_b32 v{VZ}, {P1_FLAG}")
    a(f"v_mov_b32 v{VD}, 0")
    a(f"ds_write_b32 v{VZ}, v{VD}")
    a(f"s_lshl_b32 s{sU2}, s{sRT}, 1")
    a(f"s_add_u32 s{sU2}, s{sU2}, s{S_W}")
    a(f"s_cmp_ge_u32 s{S_W}, 2")
    a(f"s_cbranch_scc1 {LW}")
    a(f"s_lshl_b32 s{sB}, s{sRT}, 10")
    a(f"s_lshl_b32 s24, s{S_W}, 20")
    a(f"s_add_u32 s{sB}, s{sB}, s24")
    touch_rows(g, P_X, sB, 15, sSG, TD)
    rows_issue(g, V, P_X, 2048*512*2, sB, 15, part=0, vo=XVO)
    if fft_items: a.items.extend(fft_items)
    a(f"s_branch {LJ}")
    a.label(LW)
    a(f"s_lshr_b32 s24, s{sRT}, 1")
    a(f"s_lshl_b32 s24, s24, 1")
    a(f"s_add_u32 s24, s24, s{S_W}")
    a(f"s_sub_u32 s24, s24, 2")
    a(f"s_lshl_b32 s24, s24, 1")
    a(f"s_and_b32 s25, s{sRT}, 1")
    a(f"s_add_u32 s{sU1}, s24, s25")
    touch_cols(g, sU1, sSG, TD)
    a(f"s_sub_u32 s{sB}, s{sU2}, 2")
    Lt = g.lab("t2d"); Lt2 = g.lab("t2e")
    a(f"s_cmp_ge_u32 s{sB}, 22"); a(f"s_cbranch_scc1 {Lt}")
    a(f"s_add_u32 s{sSTG}, s{sB}, 64")
    touch_cols(g, sSTG, sSG, TD + 1)
    a(f"s_branch {Lt2}")
    a.label(Lt)
    a(f"s_sub_u32 s25, s{sB}, 22")
    a(f"s_lshl_b32 s25, s25, 15")
    touch_rows(g, P_WD, 25, 10, sSG, TD + 1)
    a.label(Lt2)
    p1_genF(g, V, sSG)
    a("s_waitcnt lgkmcnt(0)")
    a.label(LJ)
    stampf("p1i")
    a("s_waitcnt lgkmcnt(0)")
    a("s_barrier")
    p1_readF(g, V)
    a("s_barrier")
    stampf("p1F")
    Lnd = g.lab("nodbg")
    a(f"s_cmp_lg_u32 s{S_W}, 0"); a(f"s_cbranch_scc1 {Lnd}")
    dbg_load(g, VD, VZ)
    a.label(Lnd)
    LW2 = g.lab("roleW2"); LJ2 = g.lab("rolej2")
    a(f"s_cmp_ge_u32 s{S_W}, 2")
    a(f"s_cbranch_scc1 {LW2}")
    a(f"s_lshl_b32 s{sB}, s{sRT}, 10")
    a(f"s_lshl_b32 s24, s{S_W}, 20")
    a(f"s_add_u32 s{sB}, s{sB}, s24")
    rows_issue(g, V, P_X, 2048*512*2, sB, 15, part=1, vo=XVO)
    m = V.mark()
    unit_rows_main(g, V, acc)
    Lnd = g.lab("nodbg2")
    a(f"s_cmp_lg_u32 s{S_W}, 0"); a(f"s_cbranch_scc1 {Lnd}")
    dbg_ready(g, VD, VT)
    a(f"v_mov_b32 v{VZ}, {P1_FLAG}")
    a(f"v_mov_b32 v{VD}, 1")
    a(f"ds_write_b32 v{VZ}, v{VD}")
    a.label(Lnd)
    stampf("p1Xm")
    unitX_epi(g, V, acc, sRT, sSG)
    V.release(m)
    lds_flag_wait(g, VT)
    stampf("p1X")
    LD = g.lab("r2D"); LE = g.lab("r2E")
    a(f"s_cmp_ge_u32 s{sU2}, 22"); a(f"s_cbranch_scc1 {LD}")
    a(f"s_add_u32 s{sU1}, s{sU2}, 64")
    a(f"s_mul_i32 s{sSTG}, s{S_W}, 98304")
    unitW_issue(g, V, sU1, sSTG)
    arrive_wave(g, 0, VT, younger=32)
    it_, _ = capture(g, lambda: unitW_main(g, V, acc, sSTG)); bump_vm(it_, 1); a = g.a; a.items.extend(it_)
    if False: unitW_main(g, V, acc, sSTG)
    unitW_epi(g, V, acc, sU1, sSG)
    V.release(m)
    a(f"s_branch {LE}")
    a.label(LD)
    a(f"s_sub_u32 s{sU1}, s{sU2}, 22")
    a(f"s_lshl_b32 s{sB}, s{sU1}, 15")
    rows_issue(g, V, P_WD, 1376*512*2, sB, 10)
    arrive_wave(g, 0, VT, younger=32)
    if getattr(g, 'finew', False): stampf("d_arr")
    it_, _ = capture(g, lambda: unit_rows_main(g, V, acc)); bump_vm(it_, 1); a.items.extend(it_)
    if getattr(g, 'finew', False): stampf("d_mm")
    unitD_epi(g, V, acc, sU1, sSG)
    if getattr(g, 'finew', False): stampf("d_epi")

    V.release(m)
    a.label(LE)
    a(f"s_branch {LJ2}")
    a.label(LW2)
    m = V.mark()
    g.j4vo = V.get(); kcol = V.get()
    srd(a, 52, P_WR, 0, 2048 * 257 * 2)
    srd(a, 56, P_WI, 0, 2048 * 257 * 2)
    a(f"s_and_b32 s49, s2, 3")
    a(f"s_lshl_b32 s49, s49, 6")
    a(f"s_sub_u32 s51, s{S_W}, 2")
    a(f"s_lshl_b32 s51, s51, 5")
    a(f"s_add_u32 s49, s49, s51")
    a(f"v_add_u32 v{kcol}, s49, v{V_L31}")
    a(f"v_cmp_eq_u32 vcc, 0, v{kcol}")
    a(f"v_mov_b32 v{g.j4vo}, 256")
    a(f"v_cndmask_b32 v{g.j4vo}, v{kcol}, v{g.j4vo}, vcc")
    a(f"v_lshlrev_b32 v{g.j4vo}, 1, v{g.j4vo}")
    a(f"v_mul_u32_u24 v{kcol}, {514*64*8}, v{V_HH}")
    a(f"v_add_u32 v{g.j4vo}, v{g.j4vo}, v{kcol}")
    a(f"s_lshr_b32 s50, s2, 2")
    a(f"s_mul_i32 s50, s50, 514")
    wq = [job4w_issue(g, V, 0), job4w_issue(g, V, 1)]
    a(f"s_sub_u32 s24, s{S_W}, 1")
    a(f"s_lshl_b32 s{sSTG}, s24, 15")
    m2 = V.mark()
    unitW_issue(g, V, sU1, sSTG)
    V.release(m2)
    if getattr(g, 'finew', False): stampf("w_iss")
    a("s_waitcnt vmcnt(32)")
    wad = V.get(); rad = V.get(); vo = V.get(); ob = V.get(16)
    a(f"s_mul_i32 s25, s{S_W}, 6144")
    a(f"s_add_u32 s25, s25, {P1_OT}")
    a(f"v_mul_u32_u24 v{wad}, 144, v{V_L31}")
    a(f"v_lshl_add_u32 v{wad}, v{V_HH}, 6, v{wad}")
    a(f"v_add_u32 v{wad}, s25, v{wad}")
    for qq in range(2):
        wt, wti = wq[qq]
        for n in range(8): a(f"v_lshl_or_b32 v{wt+n}, v{wti+n}, 16, v{wt+n}")
        a(f"ds_write_b128 v{wad}, {vr(wt,4)} offset:{qq*32}")
        a(f"ds_write_b128 v{wad}, {vr(wt+4,4)} offset:{qq*32+16}")
    a(f"v_lshrrev_b32 v{vo}, 3, v{V_LANE}")
    a(f"v_mul_u32_u24 v{rad}, 144, v{vo}")
    a(f"v_lshlrev_b32 v{vo}, 13, v{vo}")
    a(f"v_and_b32 v{wad}, 7, v{V_LANE}")
    a(f"v_lshlrev_b32 v{wad}, 4, v{wad}")
    a(f"v_add_u32 v{rad}, v{rad}, v{wad}")
    a(f"v_add_u32 v{rad}, s25, v{rad}")
    a(f"v_add_u32 v{vo}, v{vo}, v{wad}")
    a("s_waitcnt lgkmcnt(0)")
    for n in range(4): a(f"ds_read_b128 {vr(ob+4*n,4)}, v{rad} offset:{n*8*144}")
    srd(a, 12, P_WS, WT, WT_SZ)
    a(f"s_lshr_b32 s24, s2, 2")
    a(f"s_lshl_b32 s24, s24, 7")
    a(f"s_lshl_b32 s26, s49, 13") if False else None
    a(f"s_and_b32 s26, s2, 3")
    a(f"s_lshl_b32 s26, s26, 6")
    a(f"s_sub_u32 s27, s{S_W}, 2")
    a(f"s_lshl_b32 s27, s27, 5")
    a(f"s_add_u32 s26, s26, s27")
    a(f"s_lshl_b32 s26, s26, 13")
    a(f"s_add_u32 s24, s24, s26")
    for n in range(4):
        a(f"s_waitcnt lgkmcnt({3-n})")
        a(f"s_add_u32 s26, s24, {n*8*8192}")
        a(f"buffer_store_dwordx4 {vr(ob+4*n,4)}, v{vo}, s[12:15], s26 offen{g.st}")
    if getattr(g, 'finew', False): stampf("w_wt")
    V.release(m)
    lds_flag_wait(g, VT)
    arrive_wave(g, 0, VT, younger=0)
    if getattr(g, 'finew', False): stampf("w_arr")
    unitW_main(g, V, acc, sSTG)
    if getattr(g, 'finew', False): stampf("w_mm")
    unitW_epi(g, V, acc, sU1, sSG)
    if getattr(g, 'finew', False): stampf("w_epi")
    V.release(m)
    LX = g.lab("r2x")
    a(f"s_cmp_lg_u32 s{sRT}, 0"); a(f"s_cbranch_scc1 {LX}")
    a(f"s_cmp_lg_u32 s{S_W}, 2"); a(f"s_cbranch_scc1 {LX}")
    a(f"s_mov_b32 s{sU1}, 42")
    a(f"s_lshl_b32 s{sB}, s{sU1}, 15")
    rows_issue(g, V, P_WD, 1376*512*2, sB, 10)
    unit_rows_main(g, V, acc)
    unitD_epi(g, V, acc, sU1, sSG)
    V.release(m)
    a.label(LX)
    if fft_items: a.items.extend(fft_items)
    a.label(LJ2)
    arrive_wave(g, 1, VT)
    stampf("jobs")
    a("s_barrier")
```

```python
import sys
from mega import *
prof = "prof" in sys.argv
upto = 99
for x in sys.argv[1:]:
    if x.startswith("upto="): upto = int(x[5:])

g = G(pers=True, prof=prof)
g.cyc = "cyc" in sys.argv
g.finex = "finex" in sys.argv
g.finew = "finew" in sys.argv
g.fine = "fine" in sys.argv
g.fineg4 = "fineg4" in sys.argv
a = g.a
name = NAME + "_kernel"
a("s_cmp_ge_u32 s2, 256")
a("s_cbranch_scc1 L_end")
g.prologue()
g.stamp("start")
sync_init(g)
if "nopf" not in sys.argv: code_prefetch(g, name, "L_end")
VT = 250 if not prof else 250
g.vlimit = 250
hi = 0
KS2 = 0
for x in sys.argv[1:]:
    if x.startswith('ks2='): KS2 = int(x[4:])
def done(V):
    global hi
    hi = max(hi, V.hi)

V = g.V()
itfft, st_fft0 = capture(g, lambda: fft_pre(g, V))
mfft = V.mark()
p1_v2(g, V, VT, g.stamp, fft_items=itfft)
done(V)
V.release(mfft)
V_fft0 = V
def fft_phase(i, bwait):
    V = g.V() if i == 1 else V_fft0
    if i == 1:
        job5(g, V); job6(g, V, 65536)
        arrive(g, 5, VT)
    st = fft_pre(g, V) if i == 1 else st_fft0
    if i == 1: fft_wt_load(g, V, st)
    g.stamp(f"fftpre{i}")
    wait(g, bwait, VT, 128 if i == 0 else 32)
    g.stamp(f"w_fft{i}")
    if i == 0: fft_wt_load(g, V, st)
    fft_main(g, V, st, XP[2*i], SS[i], XP[2*i+1])
    g.stamp(f"fft{i}")
    done(V)
def g45_phase(i, bwait):
    final = i == 1
    V = g.V()
    VO5 = V.get()
    m45 = V.mark()
    Lskip = g.lab("g4skip"); Ljoin = g.lab("g4join")
    g5_map(g)
    g4_map(g, Lskip)
    itw, nw = capture(g, lambda: g4_weights(g, V))
    gw = split_groups(itw, is_vmem)
    if i == 0:
        arrive(g, bwait, VT)
        wait(g, 1, VT, 128)
        for grp in gw: a.items.extend(grp)
    else:
        for grp in gw[:NEARLY]: a.items.extend(grp)
        arrive(g, bwait, VT, younger=NEARLY)
        for grp in gw[NEARLY:]: a.items.extend(grp)
    st = g4_pre(g, V)
    if i == 1: wait(g, 5, VT)
    side2 = g5w_setup(g, VO5, final)
    g.stamp(f"g4w{i}")
    wait(g, bwait, VT)
    g.stamp(f"w_g4{i}")
    g4_main(g, V, st, XP[2*i+1], H[i], side2=side2[:KS2], side2_all=side2[:KS2])
    g.stamp(f"g4_{i}")
    for grp in side2[KS2:KS2+8]:
        for x in grp: a(x)
    arrive_row(g, i, VT, younger=16)
    for grp in side2[KS2+8:]:
        for x in grp: a(x)
    a(f"s_branch {Ljoin}")
    a.label(Lskip)
    arrive(g, bwait, VT)
    wait(g, 1 if i == 0 else 5, VT, 128 if i == 0 else 32); wait(g, bwait, VT)
    for grp in g5w_setup(g, VO5, final):
        for x in grp: a(x)
    a.label(Ljoin)
    done(V)
    V.release(m45)
    if not final:
        res = g5_resid_load(g, V, XP[1])
    else:
        g7_gpart(g, V, XP[3])
    g.stamp(f"g5w{i}")
    wait_row(g, i, VT)
    g.stamp(f"w_g5{i}")
    if not final:
        g5_main(g, V, H[0], False, res, XP[2], SS[1])
        g.stamp("g5")
        arrive(g, 3, VT)
    else:
        g5_main(g, V, H[1], True)
        g.stamp("g7")
    done(V)
NEARLY = 16
if upto >= 2: fft_phase(0, 0)
if upto >= 3: g45_phase(0, 2)
if upto >= 5: fft_phase(1, 3)
if upto >= 6: g45_phase(1, 4)
g.prof_dump()
a.label("L_end")
a("s_endpgm")
hdr = open("cdna_kernels/" + NAME + ".s.ref").read().split("\n")
out = [l for l in hdr if l.startswith("; ") and "@launch" not in l and "Override" not in l and "grid=ceil" not in l][:12]
out.append(f"; @launch grid=(256,1,1) block=(256,1,1) lds={LDS_TOTAL}")
print("\n".join(out))
print('.amdgcn_target "amdgcn-amd-amdhsa--gfx950"\n.text')
print(kernel_text(name, a))
print('.section .rodata,"a"')
print(kd_text(name, 256, 256, 102))
print("vgprs", hi, "stamps", g.names, file=sys.stderr)
```

```python
import re

_REG = re.compile(r'^(v|a|s)(\d+)$')
_RNG = re.compile(r'^(v|a|s)\[(\d+):(\d+)\]$')

def regs_of(tok):
    tok = tok.strip()
    neg = tok
    for pre in ('-', '|'):
        neg = neg.strip(pre)
    if neg.startswith('abs(') and neg.endswith(')'):
        neg = neg[4:-1]
    m = _REG.match(neg)
    if m:
        return {(m.group(1), int(m.group(2)))}
    m = _RNG.match(neg)
    if m:
        return {(m.group(1), i) for i in range(int(m.group(2)), int(m.group(3)) + 1)}
    if neg == 'vcc':
        return {('s', 106), ('s', 107)}
    if neg == 'vcc_lo':
        return {('s', 106)}
    if neg == 'vcc_hi':
        return {('s', 107)}
    if neg == 'exec':
        return {('s', 126), ('s', 127)}
    if neg == 'm0':
        return {('s', 124)}
    return set()

TRANS = ('v_exp_f32', 'v_log_f32', 'v_rcp_f32', 'v_rsq_f32', 'v_sqrt_f32', 'v_sin_f32', 'v_cos_f32', 'v_rcp_iflag_f32')

class Ins:
    __slots__ = ('text', 'op', 'ops', 'mods', 'kind', 'defs', 'uses', 'srcc', 'passes', 'dpp', 'wide_store', 'lds_dma', 'srcab')
    def __init__(self, text):
        self.text = text
        t = text.split(';')[0].strip()
        parts = t.split(None, 1)
        self.op = parts[0]
        rest = parts[1] if len(parts) > 1 else ''
        ops = []; cur = ''; depth = 0
        for ch in rest:
            if ch in '[(': depth += 1
            if ch in '])': depth -= 1
            if ch == ',' and depth == 0:
                ops.append(cur.strip()); cur = ''
            else:
                cur += ch
        if cur.strip(): ops.append(cur.strip())
        mods = ''
        if ops:
            last = ops[-1].split(None, 1)
            if len(last) > 1:
                ops[-1] = last[0]; mods = last[1]
        self.ops = ops; self.mods = mods
        op = self.op
        self.defs = set(); self.uses = set(); self.srcc = set(); self.srcab = set()
        self.passes = 0; self.dpp = False; self.wide_store = False; self.lds_dma = False
        R = [regs_of(o) for o in ops]
        def U(i0):
            u = set()
            for r in R[i0:]: u |= r
            return u
        if op.startswith('v_mfma'):
            self.kind = 'mfma'
            self.passes = 8 if '32x32x16' in op else 4
            self.defs = R[0]; self.srcab = R[1] | R[2]; self.srcc = R[3]; self.uses = self.srcab | self.srcc
        elif op.startswith('v_'):
            self.kind = 'trans' if op.replace('_e32', '').replace('_e64', '') in TRANS else 'valu'
            if op.startswith('v_dot'): self.kind = 'dot'
            if op.startswith('v_cmp'):
                self.defs = R[0]; self.uses = U(1)
            elif op.startswith('v_readfirstlane') or op.startswith('v_readlane'):
                self.defs = R[0]; self.uses = U(1); self.kind = 'readlane'
            elif 'permlane' in op and 'swap' in op or op.startswith('v_swap'):
                self.defs = R[0] | R[1]; self.uses = R[0] | R[1]; self.kind = 'permlane'
            elif op.startswith(('v_add_co', 'v_sub_co', 'v_addc_co', 'v_subb_co', 'v_subrev_co')):
                self.defs = R[0] | R[1]; self.uses = U(2)
            else:
                self.defs = R[0]; self.uses = U(1)
                if op.startswith(('v_fmac', 'v_dot2c', 'v_pk_fmac', 'v_mac')) or 'd16' in op:
                    self.uses |= R[0]
                if op.startswith('v_cndmask') and len(ops) == 3:
                    self.uses |= regs_of('vcc')
            if any(k in mods for k in ('row_', 'quad_perm', 'wave_', 'dpp')) or '_dpp' in op:
                self.dpp = True
                self.uses |= R[0] if ('bound_ctrl' not in mods) else set()
        elif op.startswith(('buffer_load', 'global_load')):
            self.kind = 'vmem'
            if ' lds' in (' ' + mods) or op.startswith('global_load_lds'):
                self.lds_dma = True; self.uses = U(0) | regs_of('m0')
            else:
                self.defs = R[0]; self.uses = U(1)
                if 'd16' in op: self.uses |= R[0]
        elif op.startswith(('buffer_store', 'global_store', 'buffer_atomic', 'global_atomic')):
            self.kind = 'vmem'; self.uses = U(0)
            if 'x4' in op or 'x3' in op: self.wide_store = True
        elif op.startswith('ds_read') or op.startswith('ds_bpermute') or op.startswith('ds_swizzle'):
            self.kind = 'ds'; self.defs = R[0]; self.uses = U(1)
        elif op.startswith('ds_'):
            self.kind = 'ds'; self.uses = U(0)
        elif op.startswith('s_'):
            self.kind = 'salu'
            if op in ('s_nop', 's_waitcnt', 's_barrier', 's_endpgm', 's_sleep', 's_setprio', 's_branch') or op.startswith(('s_cbranch', 's_cmp', 's_bitcmp')):
                self.uses = U(0)
            else:
                self.defs = R[0]; self.uses = U(1)
                if 'saveexec' in op: self.defs |= regs_of('exec'); self.uses |= regs_of('exec')
        else:
            raise ValueError('unknown op ' + text)
    def states(self):
        if self.op == 's_nop':
            return int(self.ops[0], 0) + 1
        return 1

def is_valu(i): return i.kind in ('valu', 'trans', 'dot', 'readlane', 'permlane')

def need(p, c):
    n = 0
    vdef = {r for r in p.defs if r[0] in 'va'}
    sdef = {r for r in p.defs if r[0] == 's'}
    if p.kind == 'mfma':
        big = p.passes == 8
        if c.kind == 'mfma':
            if c.srcab & p.defs: n = max(n, 12 if big else 8)
            if c.srcc & p.defs and c.srcc != p.defs: n = max(n, 10 if big else 6)
            if c.srcc == p.defs and c.passes != p.passes: n = max(n, 10 if big else 6)
            if (c.defs & p.defs) and c.defs != c.srcc: n = max(n, 12 if big else 8)
        else:
            if (c.uses | c.defs) & p.defs: n = max(n, 12 if big else 8)
            if is_valu(c) and (c.defs & p.srcc): n = max(n, 7 if big else 3)
        return n
    if is_valu(p):
        if c.kind == 'mfma' and (c.uses & vdef): n = max(n, 2)
        if sdef:
            if c.kind == 'vmem' and (c.uses & sdef): n = max(n, 5)
            if is_valu(c) and (c.uses & sdef): n = max(n, 2)
            if c.kind == 'readlane' and (c.uses & sdef): n = max(n, 4)
            if c.kind == 'salu' and (c.uses & sdef): n = max(n, 1)
        if c.kind == 'readlane' and (c.uses & vdef): n = max(n, 1)
        if c.dpp and (c.uses & vdef): n = max(n, 2)
        if c.kind == 'permlane' and (c.uses & vdef): n = max(n, 2)
        if p.kind == 'trans' and is_valu(c) and c.kind != 'trans' and (c.uses & vdef): n = max(n, 1)
        if p.kind == 'trans' and c.kind == 'mfma' and (c.uses & vdef): n = max(n, 2)
        if p.kind == 'dot' and ((c.uses | c.defs) & vdef):
            if not (c.kind == 'dot' and c.op == p.op and not (_srcs01(c) & vdef)): n = max(n, 3)
    if p.kind == 'vmem' and p.wide_store:
        data = regs_of(p.ops[0]) if p.op.startswith('buffer') else regs_of(p.ops[1])
        if c.defs & data: n = max(n, 2 if is_valu(c) else 1)
    if p.kind == 'salu' and ('s', 124) in p.defs and c.lds_dma: n = max(n, 1)
    if p.kind == 'salu' and (('s', 126) in p.defs) and c.dpp: n = max(n, 0)
    return n

def _srcs01(c):
    s = set()
    for o in c.ops[1:3]: s |= regs_of(o)
    return s

class Asm:
    def __init__(self):
        self.items = []
    def __call__(self, text):
        for line in text.split('\n'):
            line = line.strip()
            if not line or line.startswith(';'):
                continue
            if line.endswith(':') or line.startswith('.'):
                self.items.append(line)
            else:
                self.items.append(Ins(line))
    def label(self, name): self.items.append(name + ':')
    def raw(self, text): self.items.append(text)
    def finish(self):
        out = []
        window = []
        WIN = 14
        def flush():
            worst = 0
            for (p, d) in window:
                w = 0
                if p.kind == 'mfma': w = 12 if p.passes == 8 else 8
                elif is_valu(p):
                    w = 2 if p.kind != 'dot' else 3
                    if any(r[0] == 's' for r in p.defs): w = 5
                elif p.kind == 'vmem' and p.wide_store: w = 2
                elif p.kind == 'salu' and ('s', 124) in p.defs: w = 1
                worst = max(worst, w - d)
            return worst
        def emit_nop(n):
            while n > 0:
                k = min(n, 16)
                out.append('    s_nop %d' % (k - 1))
                for j in range(len(window)): window[j] = (window[j][0], window[j][1] + k)
                n -= k
        for it in self.items:
            if isinstance(it, str):
                if it.endswith(':') and it.startswith('NF_'):
                    out.append(it)
                elif it.endswith(':'):
                    emit_nop(flush()); window.clear()
                    out.append(it)
                else:
                    out.append(it)
                continue
            req = 0
            for (p, d) in window:
                req = max(req, need(p, it) - d)
            if (it.op.startswith('s_cbranch') or it.op == 's_branch') and 'nf' not in it.text.split(';')[-1].split():
                req = max(req, flush() - 1)
            if req > 0: emit_nop(req)
            out.append('    ' + it.text)
            st = it.states()
            window[:] = [(p, d + st) for (p, d) in window if d + st < WIN]
            window.append((it, 0))
            if it.op == 's_branch' or it.op == 's_endpgm':
                window.clear()
        return '\n'.join(out) + '\n'

NAME = "interleave_layers__spectral_gfnet__glu_gated_geglu__prompt"

def kernel_text(name, asm):
    return f".globl {name}\n.p2align 8\n.type {name},@function\n{name}:\n" + asm.finish()

def kd_text(name, vgpr, agpr=0, sgpr=96):
    acc = (vgpr + 3) // 4 * 4
    nfv = acc + agpr if agpr else vgpr
    return f""".p2align 6
.amdhsa_kernel {name}
  .amdhsa_next_free_vgpr {nfv}
  .amdhsa_next_free_sgpr {sgpr}
  .amdhsa_accum_offset {acc}
  .amdhsa_group_segment_fixed_size 0
  .amdhsa_kernarg_size 80
  .amdhsa_user_sgpr_count 2
  .amdhsa_user_sgpr_kernarg_segment_ptr 1
  .amdhsa_system_sgpr_workgroup_id_x 1
  .amdhsa_float_denorm_mode_32 3
.end_amdhsa_kernel
"""

class Cnt:
    def __init__(self, a, name, maxv):
        self.a = a; self.name = name; self.maxv = maxv; self.n = 0
    def issue(self, text):
        self.a(text); self.n += 1
        return self.n
    def mark(self): return self.n
    def wait(self, ticket):
        out = self.n - ticket
        assert out >= 0
        if out > self.maxv: out = self.maxv
        self.a(f"s_waitcnt {self.name}({out})")
    def wait_all(self):
        self.a(f"s_waitcnt {self.name}(0)")
```

```python
from common import *

M32 = "v_mfma_f32_32x32x16_bf16"
M16 = "v_mfma_f32_16x16x32_bf16"
S_W, S_X, S_L = 20, 21, 22
V_LANE, V_L31, V_HH = 1, 2, 3
VBASE = 4
LDS_TOTAL = 160 * 1024
LDS_PROF = LDS_TOTAL - 1024

class G:
    def __init__(self, pers=False, prof=False):
        self.a = Asm(); self.pers = pers; self.prof = prof
        self.st = " sc1" if pers else ""
        self.ld = " sc1" if pers else ""
        self.uid = 0; self.names = []
        self.vlimit = 252 if prof else 256
    def lab(self, s):
        self.uid += 1; return f"L_{s}_{self.uid}"
    def V(self): return Alloc(VBASE, self.vlimit)
    def stamp(self, name):
        if not self.prof: return
        a = self.a; n = len(self.names); self.names.append(name)
        a("s_memtime s[98:99]" if getattr(self, 'cyc', False) else "s_memrealtime s[98:99]")
        a("s_waitcnt lgkmcnt(0)")
        a("v_mov_b32 v253, s98")
        a(f"ds_write_b32 v252, v253 offset:{4*n}")
        a("s_waitcnt lgkmcnt(0)")
    def qstamp(self, idx):
        return Ins(f"s_memrealtime s[{84+2*idx}:{85+2*idx}]")
    def qflush(self, names):
        a = self.a
        a("s_waitcnt lgkmcnt(0)")
        for i, n in enumerate(names):
            k = len(self.names); self.names.append(n)
            a(f"v_mov_b32 v253, s{84+2*i}")
            a(f"ds_write_b32 v252, v253 offset:{4*k}")
        a("s_waitcnt lgkmcnt(0)")
    def prologue(self):
        a = self.a
        load_ptrs(a)
        a(f"v_lshrrev_b32 v4, 6, v0")
        a(f"v_and_b32 v{V_LANE}, 63, v0")
        a(f"v_readfirstlane_b32 s{S_W}, v4")
        a(f"v_and_b32 v{V_L31}, 31, v0")
        a(f"v_lshrrev_b32 v{V_HH}, 5, v{V_LANE}")
        a(f"s_and_b32 s{S_X}, s2, 7")
        a(f"s_lshr_b32 s{S_L}, s2, 3")
        if self.prof:
            a(f"v_lshlrev_b32 v252, 8, v4")
            a(f"v_add_u32 v252, {LDS_PROF}, v252")
    def prof_dump(self):
        if not self.prof: return
        a = self.a
        a("s_waitcnt vmcnt(0) lgkmcnt(0)")
        a("s_barrier")
        srd(a, 8, P_WS, PROF, 256 * 1024)
        a("v_lshlrev_b32 v4, 2, v0")
        a(f"v_add_u32 v5, {LDS_PROF}, v4")
        a("ds_read_b32 v6, v5")
        a("s_lshl_b32 s24, s2, 10")
        a("s_waitcnt lgkmcnt(0)")
        a("v_cmp_gt_u32 vcc, 0x100, v0")
        a("s_and_saveexec_b64 s[26:27], vcc")
        a("buffer_store_dword v6, v4, s[8:11], s24 offen")
        a("s_mov_b64 exec, s[26:27]")

def bump_vm(items, k):
    for i, it in enumerate(items):
        if not isinstance(it, str) and it.op == 's_waitcnt' and 'vmcnt' in it.text:
            n = int(it.text.split('vmcnt(')[1].split(')')[0])
            items[i] = Ins(f"s_waitcnt vmcnt({n+k})")

def capture(g, fn):
    old = g.a; tmp = Asm(); g.a = tmp
    r = fn()
    g.a = old
    return tmp.items, r

def merge(g, main, groups, start=0, every=None):
    n = len(main); k = len(groups)
    if every is None: every = max(1, (n - start) // (k + 1))
    gi = 0
    for i, it in enumerate(main):
        g.a.items.append(it)
        if i >= start and (i - start) % every == every - 1 and gi < k:
            g.a.items.extend(groups[gi]); gi += 1
    while gi < k:
        g.a.items.extend(groups[gi]); gi += 1

def split_groups(items, is_last):
    out = []; cur = []
    for it in items:
        cur.append(it)
        if not isinstance(it, str) and is_last(it):
            out.append(cur); cur = []
    if cur:
        if out: out[-1].extend(cur)
        else: out.append(cur)
    return out
def is_vmem(it): return it.kind == 'vmem'

def reduce_write(g, V, acc, cls, mode_perm, RED=0):
    a = g.a
    ad = V.get(3, 1); t = V.get()
    a(f"v_lshlrev_b32 v{t}, 4, v{V_LANE}")
    for c in range(1, 4):
        a(f"s_xor_b32 s24, s{S_W}, {c}")
        a(f"s_mul_i32 s24, s24, 12288")
        a(f"s_add_u32 s24, s24, {RED + (c-1)*4096}")
        a(f"v_add_u32 v{ad+c-1}, s24, v{t}")
    for c in range(1, 4):
        for k in range(4):
            r = acc(k, c) if mode_perm == 'g' else acc(c, k)
            a(f"ds_write_b128 v{ad+c-1}, {vr(r,4,cls)} offset:{k*1024}")

def reduce_read(g, V, dst, RED=0):
    a = g.a
    ad = V.get()
    a(f"s_mul_i32 s24, s{S_W}, 12288")
    a(f"s_add_u32 s24, s24, {RED}")
    a(f"v_lshlrev_b32 v{ad}, 4, v{V_LANE}")
    a(f"v_add_u32 v{ad}, s24, v{ad}")
    for c in range(3):
        for k in range(4):
            a(f"ds_read_b128 {vr(dst + c*16 + k*4, 4)}, v{ad} offset:{c*4096 + k*1024}")

def sum32(g, regs, tmp):
    a = g.a
    for sh in (8, 4, 2, 1):
        for r in regs:
            a(f"v_add_f32_dpp v{r}, v{r}, v{r} row_ror:{sh} row_mask:0xf bank_mask:0xf")
    for r, t in zip(regs, tmp): a(f"v_mov_b32 v{t}, v{r}")
    for r, t in zip(regs, tmp): a(f"v_permlane16_swap_b32 v{r}, v{t}")
    for r, t in zip(regs, tmp): a(f"v_add_f32 v{r}, v{r}, v{t}")

def epi_out(g, V, val, OT, srd_out, row_voff_fn, planes=False):
    a = g.a
    pk = V.get(8); wad = V.get(); t = V.get()
    for k in range(4):
        for j in range(2):
            a(f"v_cvt_pk_bf16_f32 v{pk+2*k+j}, v{val+4*k+2*j}, v{val+4*k+2*j+1}")
    a(f"v_mul_u32_u24 v{wad}, 144, v{V_L31}")
    a(f"v_lshl_add_u32 v{wad}, v{V_HH}, 3, v{wad}")
    a(f"s_lshl_b32 s24, s{S_W}, 4")
    a(f"s_add_u32 s24, s24, {OT}")
    a(f"v_add_u32 v{wad}, s24, v{wad}")
    for tr in range(2):
        for tc in range(2):
            k = 2 * tr + tc
            a(f"ds_write_b64 v{wad}, {vr(pk+2*k,2)} offset:{tc*32*144 + tr*64}")
    a("s_waitcnt lgkmcnt(0)")
    a("s_barrier")
    rad = V.get(); o = V.get(8)
    if planes:
        a(f"v_lshrrev_b32 v{t}, 2, v0")
        a(f"v_mul_u32_u24 v{rad}, 144, v{t}")
        a(f"v_and_b32 v{t}, 3, v0")
        a(f"v_lshl_add_u32 v{rad}, v{t}, 4, v{rad}")
        a(f"v_add_u32 v{rad}, {OT}, v{rad}")
        a(f"ds_read_b128 {vr(o,4)}, v{rad}")
        a(f"ds_read_b128 {vr(o+4,4)}, v{rad} offset:64")
    else:
        a(f"v_lshrrev_b32 v{t}, 3, v0")
        a(f"v_mul_u32_u24 v{rad}, 144, v{t}")
        a(f"v_and_b32 v{t}, 7, v0")
        a(f"v_lshl_add_u32 v{rad}, v{t}, 4, v{rad}")
        a(f"v_add_u32 v{rad}, {OT}, v{rad}")
        a(f"ds_read_b128 {vr(o,4)}, v{rad}")
        a(f"ds_read_b128 {vr(o+4,4)}, v{rad} offset:{32*144}")
    voff, soffs, flags = row_voff_fn()
    a("s_waitcnt lgkmcnt(1)")
    a(f"buffer_store_dwordx4 {vr(o,4)}, v{voff}, s[{srd_out}:{srd_out+3}], {soffs[0]} offen{flags}")
    a("s_waitcnt lgkmcnt(0)")
    a(f"buffer_store_dwordx4 {vr(o+4,4)}, v{voff}, s[{srd_out}:{srd_out+3}], {soffs[1]} offen{flags}")

def stats_out(g, V, val, sSG, s_tok0, SSoff, first_sg_mask):
    a = g.a
    sq = V.get(8); tmp = V.get(8); msk = V.get()
    a(f"v_cmp_eq_u32 vcc, 0, v{V_L31}")
    a(f"s_cmp_eq_u32 s{sSG}, 0")
    a(f"s_cselect_b64 s[26:27], vcc, 0")
    a(f"v_cndmask_b32 v{msk}, 1.0, 0, s[26:27]")
    for tr in range(2):
        for t in range(4):
            x0 = val + (2*tr)*4 + t; x1 = val + (2*tr+1)*4 + t
            a(f"v_mul_f32 v{tmp+4*tr+t}, v{x0}, v{msk}")
            a(f"v_mul_f32 v{sq+4*tr+t}, v{x1}, v{x1}")
            a(f"v_fmac_f32 v{sq+4*tr+t}, v{tmp+4*tr+t}, v{tmp+4*tr+t}")
    sum32(g, [sq+i for i in range(8)], [tmp+i for i in range(8)])
    srd(a, 12, P_WS, SSoff, SS_SZ)
    ad = V.get()
    a(f"v_lshlrev_b32 v{ad}, 4, v{V_HH}")
    a(f"s_lshl_b32 s24, s{sSG}, 13")
    a(f"s_lshl_b32 s25, s{s_tok0}, 2")
    a(f"s_add_u32 s24, s24, s25")
    a(f"s_lshl_b32 s25, s{S_W}, 5")
    a(f"s_add_u32 s24, s24, s25")
    a(f"s_mov_b32 s26, 1")
    a(f"s_mov_b32 s27, 1")
    a(f"s_mov_b64 exec, s[26:27]")
    a(f"buffer_store_dwordx4 {vr(sq,4)}, v{ad}, s[12:15], s24 offen{g.st}")
    a(f"buffer_store_dwordx4 {vr(sq+4,4)}, v{ad}, s[12:15], s24 offen offset:128{g.st}")
    a(f"s_mov_b64 exec, -1")

def gen_F(g, V, Ff, sSG):
    a = g.a
    m = V.mark()
    sl = V.get(); fk = V.get(); ab = V.get(); sg_ = V.get(); t = V.get(); t2 = V.get(); ar = V.get(8); fd = V.get()
    a(f"s_lshl_b32 s24, s{S_W}, 6")
    a(f"v_lshl_add_u32 v{t}, v{V_HH}, 3, s24")
    a(f"v_cvt_f32_u32 v{fd}, v{t}")
    for u in range(2):
        a(f"s_lshl_b32 s24, s{sSG}, 6")
        a(f"s_add_u32 s24, s24, {32*u}")
        a(f"v_add_u32 v{sl}, s24, v{V_L31}")
        a(f"v_lshrrev_b32 v{t}, 1, v{sl}")
        a(f"v_and_b32 v{t2}, 1, v{sl}")
        a(f"v_cmp_eq_u32 vcc, 1, v{sl}")
        a(f"v_mov_b32 v{sg_}, 256")
        a(f"v_cndmask_b32 v{t}, v{t}, v{sg_}, vcc")
        a(f"v_cndmask_b32 v{t2}, v{t2}, 0, vcc") if False else None
        a(f"v_mov_b32 v{sg_}, 0")
        a(f"v_cndmask_b32 v{t2}, v{t2}, v{sg_}, vcc")
        a(f"v_cvt_f32_u32 v{fk}, v{t}")
        a(f"v_mul_f32 v{fk}, {fhex(1/512)}, v{fk}")
        a(f"v_cvt_f32_u32 v{ab}, v{t2}")
        a(f"v_mul_f32 v{ab}, 0.25, v{ab}") if False else a(f"v_mul_f32 v{ab}, {fhex(0.25)}, v{ab}")
        a(f"v_fmac_f32 v{ab}, v{fk}, v{fd}")
        a(f"v_and_b32 v{t}, 1, v{t}")
        a(f"v_mov_b32 v{sg_}, 0x80008000")
        a(f"v_mul_lo_u32 v{sg_}, v{sg_}, v{t}")
        for kq in range(4):
            for j in range(8):
                a(f"v_fmamk_f32 v{ar+j}, v{fk}, {fhex(float(16*kq+j))}, v{ab}")
            for j in range(8): a(f"v_fract_f32 v{ar+j}, v{ar+j}")
            for j in range(8): a(f"v_cos_f32 v{ar+j}, v{ar+j}")
            f = Ff + (u * 8 + kq) * 4
            for j in range(4):
                a(f"v_cvt_pk_bf16_f32 v{f+j}, v{ar+2*j}, v{ar+2*j+1}")
            for j in range(4):
                a(f"v_xor_b32 v{f+16+j}, v{sg_}, v{f+j}")
    V.release(m)

def Ffr(Ff, u, k8): return Ff + (u * 8 + k8) * 4

def job1(g, V, Ff, sRT, sSG):
    a = g.a
    m = V.mark()
    srd(a, 8, P_X, 0, 2048 * 512 * 2)
    A = V.get(64); vo = V.get(); t = V.get()
    a(f"s_lshl_b32 s47, s{S_W}, 3")
    a(f"v_xor_b32 v{t}, s47, v{V_L31}")
    a(f"v_lshlrev_b32 v{vo}, 15, v{t}")
    a(f"v_lshl_add_u32 v{vo}, v{V_HH}, 4, v{vo}")
    a(f"s_lshl_b32 s48, s{sRT}, 10")
    a(f"s_lshl_b32 s47, s{S_W}, 7")
    a(f"s_add_u32 s48, s48, s47")
    for half in range(2):
        for tr in range(2):
            for kq in range(4):
                if kq == 0: a(f"s_add_u32 s47, s48, {hex(tr*1048576 + half*512)}")
                a(f"buffer_load_dwordx4 {vr(A + (tr*8 + half*4 + kq)*4, 4)}, v{vo}, s[8:11], s47 offen offset:{kq*32}")
    return dict(A=A, m=m)

def job1_main(g, V, Ff, sRT, sSG, st, RED=0, side0=(), side1=()):
    a = g.a
    A = st['A']
    acc = V.get(64)
    side0 = list(side0); side1 = list(side1)
    n0 = len(side0)
    for k8 in range(8):
        if k8 == 0:
            a(f"s_waitcnt vmcnt(8)")
            if getattr(g, 'fine', False): g.stamp("x0h0")
        if k8 == 4:
            a(f"s_waitcnt vmcnt({min(63, n0)})")
            if getattr(g, 'fine', False): g.stamp("x0h1")
        side = side0 if k8 < 4 else side1
        for tr in range(2):
            for tc in range(2):
                d = acc + (2*tr+tc)*16
                c = "0" if k8 == 0 else vr(d, 16)
                a(f"{M32} {vr(d,16)}, {vr(A + (tr*8+k8)*4, 4)}, {vr(Ffr(Ff,tc,k8),4)}, {c}")
                if side: a.items.extend(side.pop(0))
    for grp in side0 + side1: a.items.extend(grp)
    if getattr(g, 'fine', False): g.stamp("j1mm")
    if st.get('hook'): st['hook']()
    if getattr(g, 'fine', False): g.stamp("j1hk")
    reduce_write(g, V, lambda k, grp: acc + k*16 + grp*4, 'v', 'g', RED)
    a("s_waitcnt lgkmcnt(0)")
    a("s_barrier")
    part = A
    if getattr(g, 'fine', False): g.stamp("j1rw")
    reduce_read(g, V, part, RED)
    val = V.get(16)
    sc = V.get();
    a(f"v_cmp_gt_u32 vcc, 2, v{V_L31}")
    a(f"s_cmp_eq_u32 s{sSG}, 0")
    a(f"s_cselect_b64 s[26:27], vcc, 0")
    a(f"v_mov_b32 v{sc}, {fhex(1/16)}")
    a(f"v_mov_b32 v{val}, {fhex(1/16/math.sqrt(2))}")
    a(f"v_cndmask_b32 v{sc}, v{sc}, v{val}, s[26:27]")
    a("s_waitcnt lgkmcnt(0)")
    for k in range(4):
        for t in range(4):
            v = val + 4*k + t
            a(f"v_add_f32 v{v}, v{acc+k*16+t}, v{part+k*4+t}")
            a(f"v_add_f32 v{part+16+k*4+t}, v{part+16+k*4+t}, v{part+32+k*4+t}")
        for t in range(4):
            v = val + 4*k + t
            a(f"v_add_f32 v{v}, v{v}, v{part+16+k*4+t}")
        for t in range(4):
            v = val + 4*k + t
            if (k & 1) == 0: a(f"v_mul_f32 v{v}, v{v}, v{sc}")
            else: a(f"v_mul_f32 v{v}, {fhex(1/16)}, v{v}")
    a(f"s_lshl_b32 s28, s{sRT}, 6")
    V2 = Alloc(acc, acc + 64)
    if getattr(g, 'fine', False): g.stamp("j1val")
    stats_out(g, V2, val, sSG, 28, SS[0], None)
    if getattr(g, 'fine', False): g.stamp("j1st")
    planes_out(g, V2, val, sRT, sSG, XP[0], OT=RED+49152)
    V.release(st['m'])

def planes_out(g, V, val, sRT, sSG, XPoff, OT):
    a = g.a
    srd(a, 8, P_WS, XPoff, XP_SZ)
    def rowfn():
        vo = V.get()
        a(f"v_lshlrev_b32 v{vo}, 4, v0")
        a(f"s_lshl_b32 s24, s{sSG}, 12")
        a(f"s_lshl_b32 s25, s{sRT}, 16")
        a(f"s_add_u32 s24, s24, s25")
        a(f"s_add_u32 s25, s24, 32768")
        return vo, ["s24", "s25"], g.st
    epi_out(g, V, val, OT, 8, rowfn, planes=True)

def job4_issue(g, V):
    a = g.a
    wt = V.get(8); wti = V.get(8); vo = V.get(); t = V.get()
    srd(a, 52, P_WR, 0, 2048 * 257 * 2)
    srd(a, 56, P_WI, 0, 2048 * 257 * 2)
    a(f"s_and_b32 s49, s2, 3")
    a(f"s_lshl_b32 s49, s49, 6")
    a(f"v_add_u32 v{t}, s49, v{V_LANE}")
    a(f"v_cmp_eq_u32 s[60:61], 0, v{t}")
    a(f"v_mov_b32 v{vo}, 256")
    a(f"v_cndmask_b32 v{vo}, v{t}, v{vo}, s[60:61]")
    a(f"v_lshlrev_b32 v{vo}, 1, v{vo}")
    a(f"s_lshr_b32 s50, s2, 2")
    a(f"s_lshl_b32 s51, s{S_W}, 8")
    a(f"s_add_u32 s50, s50, s51")
    a(f"s_mul_i32 s50, s50, 514")
    for n in range(8):
        td, r = n >> 2, n & 3
        a(f"s_add_u32 s49, s50, {514*64*(16*td + r)}")
        a(f"buffer_load_ushort v{wt+n}, v{vo}, s[52:55], s49 offen")
        a(f"buffer_load_ushort v{wti+n}, v{vo}, s[56:59], s49 offen")
    return dict(wt=wt, wti=wti, k=t)

def job4_store(g, V, st):
    a = g.a
    wt = st['wt']; t = st['k']
    vo = V.get()
    for n in range(8): a(f"v_lshl_or_b32 v{wt+n}, v{st['wti']+n}, 16, v{wt+n}")
    srd(a, 12, P_WS, WT, WT_SZ)
    a(f"v_lshlrev_b32 v{vo}, 13, v{t}")
    a(f"s_lshr_b32 s25, s2, 2")
    a(f"s_lshl_b32 s24, s25, 7")
    a(f"s_lshl_b32 s25, s{S_W}, 5")
    a(f"s_add_u32 s24, s24, s25")
    a(f"buffer_store_dwordx4 {vr(wt,4)}, v{vo}, s[12:15], s24 offen{g.st}")
    a(f"buffer_store_dwordx4 {vr(wt+4,4)}, v{vo}, s[12:15], s24 offen offset:16{g.st}")

def reduce_t(g, V, acc, part):
    a = g.a
    reduce_write(g, V, lambda c, k: acc + c*16 + k*4, 'v', 't')
    a("s_waitcnt lgkmcnt(0)")
    a("s_barrier")
    reduce_read(g, V, part)
    a("s_waitcnt lgkmcnt(0)")
    a("s_barrier")
    for r in range(16):
        a(f"v_add_f32 v{acc+r}, v{acc+r}, v{part+r}")
        a(f"v_add_f32 v{part+16+r}, v{part+16+r}, v{part+32+r}")
    for r in range(16):
        a(f"v_add_f32 v{acc+r}, v{acc+r}, v{part+16+r}")

def swap_F(g, Ff):
    a = g.a
    L = g.lab("noswap")
    a(f"s_cmp_lt_u32 s{S_W}, 2")
    a(f"s_cbranch_scc1 {L}")
    for r in range(32):
        a(f"v_swap_b32 v{Ff+r}, v{Ff+32+r}")
    a.label(L)

STG3 = 65536

def job3_issue(g, V, sKK, stg):
    a = g.a
    vo = V.get(); t = V.get()
    srd(a, 52, P_WG, 0, 512 * 1376 * 2)
    srd(a, 56, P_WU, 0, 512 * 1376 * 2)
    a(f"v_lshrrev_b32 v{t}, 2, v{V_LANE}")
    a(f"v_mul_u32_u24 v{vo}, 2752, v{t}")
    a(f"v_and_b32 v{t}, 3, v{V_LANE}")
    a(f"v_lshl_add_u32 v{vo}, v{t}, 4, v{vo}")
    a(f"s_mul_i32 s50, s{S_W}, {64*2752}")
    a(f"s_lshl_b32 s49, s{sKK}, 6")
    a(f"s_add_u32 s50, s50, s49")
    a(f"s_lshl_b32 s51, s{S_W}, 14")
    a(f"s_add_u32 s51, s51, {stg}")
    for p in range(2):
        for m in range(8):
            d0 = 16*m if m < 4 else 256 + 16*(m-4)
            a(f"s_add_u32 m0, s51, {p*8192 + m*1024}")
            a(f"s_add_u32 s49, s50, {d0*2752}")
            a(f"buffer_load_dwordx4 v{vo}, s[{52+4*p}:{55+4*p}], s49 offen lds")

def job3_main(g, V, Ff, sKK, sSG, stg, side=()):
    a = g.a
    side = list(side)
    m = V.mark()
    B = V.get(64)
    ad = V.get(); acc = V.get(64); t = V.get()
    a(f"v_and_b32 v{t}, 15, v{V_LANE}")
    a(f"v_lshrrev_b32 v{ad}, 2, v{t}")
    a(f"v_lshl_add_u32 v{ad}, v{V_HH}, 3, v{ad}")
    a(f"v_lshlrev_b32 v{ad}, 6, v{ad}")
    a(f"v_and_b32 v{t}, 3, v{t}")
    a(f"v_lshl_add_u32 v{ad}, v{t}, 3, v{ad}")
    a(f"v_lshrrev_b32 v{t}, 4, v{V_LANE}")
    a(f"v_and_b32 v{t}, 1, v{t}")
    a(f"v_lshl_add_u32 v{ad}, v{t}, 5, v{ad}")
    a(f"s_lshl_b32 s26, s{S_W}, 14")
    a(f"s_add_u32 s26, s26, {stg}")
    a(f"v_add_u32 v{ad}, s26, v{ad}")
    ad2 = V.get(2, 1)
    a(f"s_and_b32 s24, s{S_W}, 1")
    a(f"s_lshl_b32 s24, s24, 13")
    a(f"v_add_u32 v{ad2}, s24, v{ad}")
    a(f"s_xor_b32 s24, s24, 8192")
    a(f"v_add_u32 v{ad2+1}, s24, v{ad}")
    for uc in range(2):
        for k8 in range(8):
            for rd in range(2):
                a(f"ds_read_b64_tr_b16 {vr(B+(uc*8+k8)*4+2*rd,2)}, v{ad2+uc} offset:{k8*1024 + rd*256}")
        if uc == 0: a("s_waitcnt lgkmcnt(8)") if False else None
    a("s_waitcnt lgkmcnt(0)")
    if getattr(g, 'fine3', False): g.stamp("j3rd")
    for k8 in range(8):
        for ur in range(2):
            for uc in range(2):
                d = acc + (2*ur+uc)*16
                c = "0" if k8 == 0 else vr(d, 16)
                a(f"{M32} {vr(d,16)}, {vr(Ffr(Ff,ur,k8),4)}, {vr(B+(uc*8+k8)*4,4)}, {c}")
                if side: a.items.extend(side.pop(0))
    for grp in side: a.items.extend(grp)
    if getattr(g, 'fine3', False): g.stamp("j3mm"); g.fine3 = False
    a("s_barrier")
    reduce_t(g, V, acc, B)
    s0 = V.get(); s1 = V.get()
    a(f"v_mov_b32 v{s0}, {fhex(1/16)}")
    a(f"v_mov_b32 v{s1}, {fhex(1/16)}")
    a(f"v_cmp_eq_u32 vcc, 0, v{V_HH}")
    a(f"s_lshr_b32 s24, s{S_W}, 1")
    a(f"s_or_b32 s24, s24, s{sSG}")
    a(f"s_cmp_eq_u32 s24, 0")
    a(f"s_cselect_b64 s[26:27], vcc, 0")
    a(f"v_mov_b32 v{t}, 0")
    a(f"v_cndmask_b32 v{s0}, v{s0}, v{t}, s[26:27]")
    a(f"v_mov_b32 v{t}, {fhex(1/16/math.sqrt(2))}")
    a(f"v_cndmask_b32 v{s1}, v{s1}, v{t}, s[26:27]")
    a(f"v_mul_f32 v{acc}, v{acc}, v{s0}")
    a(f"v_mul_f32 v{acc+1}, v{acc+1}, v{s1}")
    for r in range(2, 16): a(f"v_mul_f32 v{acc+r}, {fhex(1/16)}, v{acc+r}")
    pk = B
    for j in range(8): a(f"v_cvt_pk_bf16_f32 v{pk+j}, v{acc+2*j}, v{acc+2*j+1}")
    srd(a, 8, P_WS, WGU, WGU_SZ)
    a(f"v_lshlrev_b32 v{t}, 4, v{V_LANE}")
    a(f"s_lshl_b32 s24, s{sKK}, 16")
    a(f"s_and_b32 s25, s{S_W}, 1")
    a(f"s_lshl_b32 s25, s25, 15")
    a(f"s_add_u32 s24, s24, s25")
    a(f"s_lshl_b32 s25, s{sSG}, 12")
    a(f"s_add_u32 s24, s24, s25")
    a(f"s_lshr_b32 s25, s{S_W}, 1")
    a(f"s_lshl_b32 s25, s25, 11")
    a(f"s_add_u32 s24, s24, s25")
    a(f"buffer_store_dwordx4 {vr(pk,4)}, v{t}, s[8:11], s24 offen{g.st}")
    a(f"buffer_store_dwordx4 {vr(pk+4,4)}, v{t}, s[8:11], s24 offen offset:1024{g.st}")
    V.release(m)

def job2_issue(g, V, sFP):
    a = g.a
    srd(a, 52, P_WD, 0, 1376 * 512 * 2)
    A = 0; vo = V.get(); t = V.get()
    a(f"v_lshlrev_b32 v{vo}, 10, v{V_L31}")
    a(f"v_lshl_add_u32 v{vo}, v{V_HH}, 4, v{vo}")
    a(f"s_lshl_b32 s50, s{sFP}, 16")
    a(f"s_lshl_b32 s49, s{S_W}, 7")
    a(f"s_add_u32 s50, s50, s49")
    a(f"s_and_b32 s49, s{S_W}, 1")
    a(f"s_lshl_b32 s51, s49, 15")
    for ur in range(2):
        if ur == 1: a(f"s_xor_b32 s51, s51, 32768")
        for half in range(2):
            a(f"s_add_u32 s49, s50, s51")
            if half: a(f"s_add_u32 s49, s49, 512")
            for kq in range(4):
                a(f"buffer_load_dwordx4 {vr(A + (ur*8 + half*4 + kq)*4, 4, 'a')}, v{vo}, s[52:55], s49 offen offset:{kq*32}")
    return dict(A=A)

def job2_main(g, V, Ff, sFP, sSG, st):
    a = g.a
    A = st['A']
    acc = V.get(64); t = V.get(); sc = V.get(); part = V.get(48)
    for k8 in range(8):
        for ur in range(2):
            for uc in range(2):
                d = acc + (ur | (uc << 1))*16
                c = "0" if k8 == 0 else vr(d, 16)
                a(f"{M32} {vr(d,16)}, {vr(A+(ur*8+k8)*4,4,'a')}, {vr(Ffr(Ff,uc,k8),4)}, {c}")
    reduce_t(g, V, acc, part)
    a(f"v_cmp_gt_u32 vcc, 2, v{V_L31}")
    a(f"s_lshr_b32 s24, s{S_W}, 1")
    a(f"s_or_b32 s24, s24, s{sSG}")
    a(f"s_cmp_eq_u32 s24, 0")
    a(f"s_cselect_b64 s[26:27], vcc, 0")
    a(f"v_mov_b32 v{sc}, {fhex(1/16)}")
    a(f"v_mov_b32 v{t}, {fhex(1/16/math.sqrt(2))}")
    a(f"v_cndmask_b32 v{sc}, v{sc}, v{t}, s[26:27]")
    for r in range(16): a(f"v_mul_f32 v{acc+r}, v{acc+r}, v{sc}")
    pk = part
    for j in range(8): a(f"v_cvt_pk_bf16_f32 v{pk+j}, v{acc+2*j}, v{acc+2*j+1}")
    srd(a, 8, P_WS, WDP, WDP_SZ)
    a(f"s_lshl_b32 s24, s{sFP}, 2")
    a(f"s_and_b32 s25, s{S_W}, 1")
    a(f"s_lshl_b32 s25, s25, 1")
    a(f"s_add_u32 s24, s24, s25")
    L = g.lab("j2skip")
    a(f"s_cmp_ge_u32 s24, 86")
    a(f"s_cbranch_scc1 {L}")
    a(f"s_lshl_b32 s25, s{sSG}, 1")
    a(f"s_lshr_b32 s26, s{S_W}, 1")
    a(f"s_add_u32 s25, s25, s26")
    a(f"s_mul_i32 s25, s25, 86")
    a(f"s_add_u32 s24, s24, s25")
    a(f"s_lshl_b32 s24, s24, 10")
    a(f"v_lshlrev_b32 v{t}, 4, v{V_LANE}")
    a(f"buffer_store_dwordx4 {vr(pk,4)}, v{t}, s[8:11], s24 offen{g.st}")
    a(f"buffer_store_dwordx4 {vr(pk+4,4)}, v{t}, s[8:11], s24 offen offset:1024{g.st}")
    a.label(L)

def job5(g, V):
    a = g.a
    m = V.mark()
    L = g.lab("j5skip")
    a(f"s_cmp_ge_u32 s{S_W}, 2")
    a(f"s_cbranch_scc1 {L}")
    d = V.get(); fd = V.get(); ar = V.get(8); sl = V.get(); kf = V.get(); im = V.get(); t = V.get(); sc = V.get(); pk = V.get(4)
    a(f"s_lshl_b32 s24, s2, 1")
    a(f"s_add_u32 s24, s24, s{S_W}")
    a(f"s_lshr_b32 s25, s24, 5")
    a(f"s_and_b32 s26, s24, 31")
    a(f"s_lshl_b32 s27, s25, 5")
    a(f"v_add_u32 v{d}, s27, v{V_L31}")
    a(f"s_lshl_b32 s27, s26, 4")
    for j in range(8):
        a(f"v_lshl_add_u32 v{sl}, v{V_HH}, 2, s27")
        a(f"v_add_u32 v{sl}, {8*(j>>2) + (j&3)}, v{sl}")
        a(f"v_lshrrev_b32 v{kf}, 1, v{sl}")
        a(f"v_and_b32 v{im}, 1, v{sl}")
        a(f"v_cmp_eq_u32 vcc, 1, v{sl}")
        a(f"v_mov_b32 v{t}, 256")
        a(f"v_cndmask_b32 v{kf}, v{kf}, v{t}, vcc")
        a(f"v_mov_b32 v{t}, 0")
        a(f"v_cndmask_b32 v{im}, v{im}, v{t}, vcc")
        a(f"v_mul_lo_u32 v{kf}, v{kf}, v{d}")
        a(f"v_lshl_add_u32 v{kf}, v{im}, 7, v{kf}")
        a(f"v_and_b32 v{kf}, 511, v{kf}")
        a(f"v_cvt_f32_u32 v{kf}, v{kf}")
        a(f"v_mul_f32 v{kf}, {fhex(1/512)}, v{kf}")
        a(f"v_cos_f32 v{ar+j}, v{kf}")
        a(f"v_cmp_gt_u32 vcc, 2, v{sl}")
        a(f"v_mov_b32 v{sc}, {fhex(1/16)}")
        a(f"v_mov_b32 v{t}, {fhex(1/16/math.sqrt(2))}")
        a(f"v_cndmask_b32 v{sc}, v{sc}, v{t}, vcc")
        a(f"v_mul_f32 v{ar+j}, v{ar+j}, v{sc}")
    for j in range(4): a(f"v_cvt_pk_bf16_f32 v{pk+j}, v{ar+2*j}, v{ar+2*j+1}")
    srd(a, 8, P_WS, GF, GF_SZ)
    a(f"s_lshl_b32 s24, s24, 10")
    a(f"v_lshlrev_b32 v{t}, 4, v{V_LANE}")
    a(f"buffer_store_dwordx4 {vr(pk,4)}, v{t}, s[8:11], s24 offen{g.st}")
    a.label(L)
    V.release(m)

def job6(g, V, stg):
    a = g.a
    m = V.mark()
    vo = V.get(); ad = V.get(); t = V.get(); fr = V.get(4)
    srd(a, 12, P_WD, 0, 1376 * 512 * 2)
    srd(a, 8, P_WS, WDF, WDP_SZ)
    a(f"v_lshrrev_b32 v{t}, 2, v{V_LANE}")
    a(f"v_lshlrev_b32 v{vo}, 10, v{t}")
    a(f"v_and_b32 v{t}, 3, v{V_LANE}")
    a(f"v_lshl_add_u32 v{vo}, v{t}, 4, v{vo}")
    a(f"v_and_b32 v{t}, 15, v{V_LANE}")
    a(f"v_lshrrev_b32 v{ad}, 2, v{t}")
    a(f"v_lshl_add_u32 v{ad}, v{V_HH}, 2, v{ad}")
    a(f"v_lshlrev_b32 v{ad}, 6, v{ad}")
    a(f"v_and_b32 v{t}, 3, v{t}")
    a(f"v_lshl_add_u32 v{ad}, v{t}, 3, v{ad}")
    a(f"v_lshrrev_b32 v{t}, 4, v{V_LANE}")
    a(f"v_and_b32 v{t}, 1, v{t}")
    a(f"v_lshl_add_u32 v{ad}, v{t}, 5, v{ad}")
    a(f"s_lshl_b32 s26, s{S_W}, 10")
    a(f"s_add_u32 s26, s26, {stg}")
    a(f"v_add_u32 v{ad}, s26, v{ad}")
    a(f"v_lshlrev_b32 v{t}, 4, v{V_LANE}")
    fr2 = V.get(4)
    frs = [fr, fr2]
    Ls = g.lab("j6one")
    def ids(it):
        a(f"s_lshl_b32 s24, s2, 2")
        a(f"s_add_u32 s24, s24, s{S_W}")
        if it: a(f"s_add_u32 s24, s24, 1024")
    for it in range(2):
        ids(it)
        if it:
            a(f"s_cmp_ge_u32 s24, 1376")
            a(f"s_cbranch_scc1 {Ls}")
        a(f"s_mul_hi_u32 s25, s24, {hex((2**32 + 85)//86)}")
        a(f"s_mul_i32 s27, s25, 86")
        a(f"s_sub_u32 s27, s24, s27")
        a(f"s_lshl_b32 s27, s27, 14")
        a(f"s_lshl_b32 s25, s25, 6")
        a(f"s_add_u32 s27, s27, s25")
        a(f"s_add_u32 m0, s26, {it*4096}")
        a("s_nop 0")
        a(f"buffer_load_dwordx4 v{vo}, s[12:15], s27 offen lds")
    a.label(Ls)
    a("s_waitcnt vmcnt(0)")
    Le = g.lab("j6end")
    for it in range(2):
        ids(it)
        if it:
            a(f"s_cmp_ge_u32 s24, 1376")
            a(f"s_cbranch_scc1 {Le}")
        a(f"ds_read_b64_tr_b16 {vr(frs[it],2)}, v{ad} offset:{it*4096}")
        a(f"ds_read_b64_tr_b16 {vr(frs[it]+2,2)}, v{ad} offset:{it*4096+512}")
        a(f"s_lshl_b32 s24, s24, 10")
        a("s_waitcnt lgkmcnt(0)")
        a(f"buffer_store_dwordx4 {vr(frs[it],4)}, v{t}, s[8:11], s24 offen{g.st}")
    a.label(Le)
    V.release(m)

def fft_pre(g, V):
    a = g.a
    vi = V.get(); vq = V.get(); t1 = V.get(); t2 = V.get()
    a(f"v_and_b32 v{vi}, 15, v{V_LANE}")
    a(f"v_lshrrev_b32 v{vq}, 4, v{V_LANE}")
    C64 = V.get(8); S64 = V.get(8); N64 = V.get(8)
    C32 = V.get(8); S32 = V.get(8); N32 = V.get(8)
    tw1c = V.get(8); tw1s = V.get(8); tw2c = V.get(8); tw2s = V.get(8)
    tmp = V.get(8); tmp2 = V.get(8)
    m = V.mark()
    fn = V.get(); fb = V.get(); fq = V.get(); fi = V.get()
    sT = 24
    a(f"v_cvt_f32_u32 v{fi}, v{vi}")
    a(f"v_cvt_f32_u32 v{fq}, v{vq}")
    a(f"s_lshl_b32 s{sT}, s{S_W}, 4")
    a(f"v_cvt_f32_u32 v{t1}, s{sT}")
    a(f"v_add_f32 v{fn}, v{t1}, v{fi}")
    a(f"v_mul_f32 v{fb}, v{fn}, v{fq}")
    a(f"v_mul_f32 v{fb}, {fhex(0.125)}, v{fb}")
    def cs(C, S, N):
        for e in range(8): a(f"v_cos_f32 v{tmp2+e}, v{tmp+e}")
        for e in range(8): a(f"v_sin_f32 v{tmp+e}, v{tmp+e}")
        for j in range(4): a(f"v_cvt_pk_bf16_f32 v{C+j}, v{tmp2+2*j}, v{tmp2+2*j+1}")
        for j in range(4): a(f"v_cvt_pk_bf16_f32 v{S+j}, v{tmp+2*j}, v{tmp+2*j+1}")
        for j in range(4): a(f"v_xor_b32 v{N+j}, 0x80008000, v{S+j}")
    for ks in range(2):
        for e in range(8):
            a(f"v_fmamk_f32 v{tmp+e}, v{fn}, {fhex((32*ks+e)/64)}, v{fb}")
        cs(C64+4*ks, S64+4*ks, N64+4*ks)
    for t in range(2):
        a(f"v_add_f32 v{t1}, {fhex(16.0*t)}, v{fi}") if t else a(f"v_mov_b32 v{t1}, v{fi}")
        a(f"v_mul_f32 v{fb}, v{t1}, v{fq}")
        a(f"v_mul_f32 v{fb}, {fhex(0.125)}, v{fb}")
        for e in range(8):
            a(f"v_fmamk_f32 v{tmp+e}, v{t1}, {fhex((16*(e>>2)+(e&3))/32)}, v{fb}")
        cs(C32+4*t, S32+4*t, N32+4*t)
    a(f"v_mul_f32 v{fb}, v{fn}, v{fq}")
    a(f"v_mul_f32 v{fb}, {fhex(4/2048)}, v{fb}")
    for tb in range(2):
        for r in range(4):
            a(f"v_fmamk_f32 v{tmp+4*tb+r}, v{fn}, {fhex((16*tb+r)/2048)}, v{fb}")
    for e in range(8): a(f"v_cos_f32 v{tw1c+e}, v{tmp+e}")
    for e in range(8): a(f"v_sin_f32 v{tw1s+e}, v{tmp+e}")
    a(f"s_lshl_b32 s{sT}, s{S_W}, 4")
    a(f"v_cvt_f32_u32 v{t1}, s{sT}")
    a(f"v_fmamk_f32 v{t1}, v{fq}, {fhex(4.0)}, v{t1}")
    for tb in range(2):
        a(f"v_add_f32 v{t2}, {fhex(16.0*tb)}, v{fi}") if tb else a(f"v_mov_b32 v{t2}, v{fi}")
        a(f"v_mul_f32 v{t2}, {fhex(1/2048)}, v{t2}")
        a(f"v_mul_f32 v{fb}, v{t2}, v{t1}")
        for r in range(4):
            if r == 0: a(f"v_mov_b32 v{tmp+4*tb}, v{fb}")
            else: a(f"v_fmamk_f32 v{tmp+4*tb+r}, v{t2}, {fhex(float(r))}, v{fb}")
    for e in range(8): a(f"v_cos_f32 v{tw2c+e}, v{tmp+e}")
    for e in range(8): a(f"v_sin_f32 v{tw2s+e}, v{tmp+e}")
    for e in range(8): a(f"v_mul_f32 v{tw2c+e}, {fhex(1/2048)}, v{tw2c+e}")
    for e in range(8): a(f"v_mul_f32 v{tw2s+e}, {fhex(1/2048)}, v{tw2s+e}")
    V.release(m)
    return dict(vi=vi, vq=vq, t1=t1, t2=t2, C64=C64, S64=S64, N64=N64, C32=C32, S32=S32, N32=N32,
                tw1c=tw1c, tw1s=tw1s, tw2c=tw2c, tw2s=tw2s, tmp=tmp, tmp2=tmp2)

def fft_wt_load(g, V, st):
    a = g.a
    wt = V.get(8); t0 = V.get()
    srd(a, 16, P_WS, WT, WT_SZ)
    a(f"v_lshlrev_b32 v{t0}, 2, v{st['vi']}")
    a(f"v_add_u32 v{t0}, v{t0}, v{st['vq']}")
    a(f"v_lshlrev_b32 v{t0}, 5, v{t0}")
    a(f"s_lshl_b32 s24, s2, 13")
    a(f"s_lshl_b32 s25, s{S_W}, 11")
    a(f"s_add_u32 s24, s24, s25")
    a(f"buffer_load_dwordx4 {vr(wt,4)}, v{t0}, s[16:19], s24 offen{g.ld}")
    a(f"buffer_load_dwordx4 {vr(wt+4,4)}, v{t0}, s[16:19], s24 offen offset:16{g.ld}")
    st['wt'] = wt

def fft_main(g, V, st, XPin, SSin, XPout, side=None, dpoll=False):
    a = g.a
    vi, vq, t0, t1 = st['vi'], st['vq'], st['t1'], st['t2']
    C64, S64, N64, C32, S32, N32 = (st[k] for k in ('C64', 'S64', 'N64', 'C32', 'S32', 'N32'))
    tw1c, tw1s, tw2c, tw2s, tmp, tmp2, wt = (st[k] for k in ('tw1c', 'tw1s', 'tw2c', 'tw2s', 'tmp', 'tmp2', 'wt'))
    sP, sQ, sT, sFlag, sK = 28, 29, 24, 30, 23
    srd(a, 8, P_WS, XPin, XP_SZ)
    srd(a, 12, P_WS, SSin, SS_SZ)
    a(f"s_lshl_b32 s{sP}, s2, 7")
    a(f"s_add_u32 s{sQ}, s{sP}, 64")
    a(f"s_lshl_b32 s{sK}, s2, 7")
    a(f"s_mov_b32 s{sFlag}, 1.0")
    a(f"s_cmp_lg_u32 s2, 0")
    a(f"s_cselect_b32 s{sP}, s{sP}, 64")
    a(f"s_cselect_b32 s{sQ}, s{sQ}, 0")
    a(f"s_cselect_b32 s{sFlag}, s{sFlag}, 0")
    xr = V.get(4); xi = V.get(4); ss = V.get(64); rawb = V.get(8)
    off16 = V.get(); off32 = V.get(); offb = V.get(); fl = V.get(2)
    a(f"v_lshrrev_b32 v{t0}, 2, v0")
    a(f"v_lshlrev_b32 v{off16}, 15, v{t0}")
    a(f"v_and_b32 v{t0}, 3, v0")
    a(f"v_lshl_add_u32 v{off16}, v{t0}, 4, v{off16}")
    a(f"v_lshlrev_b32 v{off32}, 5, v0")
    a(f"v_lshrrev_b32 v{t0}, 3, v{V_LANE}")
    a(f"s_lshl_b32 s{sT}, s{S_W}, 4")
    a(f"v_add_u32 v{t0}, s{sT}, v{t0}")
    a(f"v_lshlrev_b32 v{offb}, 15, v{t0}")
    a(f"v_and_b32 v{t0}, 7, v{V_LANE}")
    a(f"v_lshl_add_u32 v{offb}, v{t0}, 4, v{offb}")
    fl_ = " sc1" if dpoll else ""
    def ld_raw():
        a(f"buffer_load_dwordx4 {vr(rawb,4)}, v{offb}, s[8:11], s{sK} offen{fl_}")
        a(f"s_add_u32 s{sT}, s{sK}, {8*32768}")
        a(f"buffer_load_dwordx4 {vr(rawb+4,4)}, v{offb}, s[8:11], s{sT} offen{fl_}")
    def ld_rest():
        a(f"buffer_load_dwordx4 {vr(xr,4)}, v{off16}, s[8:11], s{sP} offen{fl_}")
        a(f"buffer_load_dwordx4 {vr(xi,4)}, v{off16}, s[8:11], s{sQ} offen{fl_}")
        a(f"s_mov_b32 s{sT}, 0")
        for p in range(8):
            a(f"buffer_load_dwordx4 {vr(ss+8*p,4)}, v{off32}, s[12:15], s{sT} offen{g.ld}")
            a(f"buffer_load_dwordx4 {vr(ss+8*p+4,4)}, v{off32}, s[12:15], s{sT} offen offset:16{g.ld}")
            if p < 7: a(f"s_add_u32 s{sT}, s{sT}, 8192")
    if not dpoll:
        ld_rest_first = True
        a(f"buffer_load_dwordx4 {vr(xr,4)}, v{off16}, s[8:11], s{sP} offen")
        a(f"buffer_load_dwordx4 {vr(xi,4)}, v{off16}, s[8:11], s{sQ} offen")
        ld_raw()
        a(f"s_mov_b32 s{sT}, 0")
        for p in range(8):
            a(f"buffer_load_dwordx4 {vr(ss+8*p,4)}, v{off32}, s[12:15], s{sT} offen{g.ld}")
            a(f"buffer_load_dwordx4 {vr(ss+8*p+4,4)}, v{off32}, s[12:15], s{sT} offen offset:16{g.ld}")
            if p < 7: a(f"s_add_u32 s{sT}, s{sT}, 8192")
    else:
        L1 = g.lab("fp1"); L2 = g.lab("fp2"); L2d = g.lab("fp2d"); L1d = g.lab("fp1d")
        a("s_mov_b32 s31, 0")
        a.label(L1)
        ld_raw()
        a("s_add_u32 s31, s31, 1")
        a("s_waitcnt vmcnt(0)")
        a(f"v_cmp_eq_u32 vcc, -1, v{rawb}")
        a(f"v_cmp_eq_u32 s[26:27], -1, v{rawb+4}")
        a(f"s_or_b64 s[26:27], s[26:27], vcc")
        a(f"s_cbranch_scc0 {L1d}")
        a(f"s_cmp_lt_u32 s31, {SPIN_MAX}")
        a(f"s_cbranch_scc1 {L1}")
        a.label(L1d)
        a.label(L2)
        ld_rest()
        a("s_add_u32 s31, s31, 1")
        a("s_waitcnt vmcnt(0)")
        regs = [xr, xi] + [ss + 4*i for i in range(16)]
        a(f"v_cmp_eq_u32 vcc, -1, v{regs[0]}")
        a(f"s_mov_b64 s[26:27], vcc")
        for r in regs[1:]:
            a(f"v_cmp_eq_u32 vcc, -1, v{r}")
            a(f"s_or_b64 s[26:27], s[26:27], vcc")
        a(f"s_cmp_eq_u64 s[26:27], 0")
        a(f"s_cbranch_scc1 {L2d}")
        a(f"s_cmp_lt_u32 s31, {SPIN_MAX}")
        a(f"s_cbranch_scc1 {L2}")
        a.label(L2d)
    if getattr(g, 'fine', False): g.stamp("fft_iss")
    RS = 144; PS = 32 * RS
    XN, UX, ZX = 0, 2 * PS, 4 * PS
    ZRS = 272; ZPS = 32 * ZRS
    wad = V.get(); rad = V.get(); uad = V.get()
    a(f"v_lshrrev_b32 v{t0}, 3, v0")
    a(f"v_mul_u32_u24 v{wad}, {RS}, v{t0}")
    a(f"v_and_b32 v{t0}, 7, v0")
    a(f"v_lshl_add_u32 v{wad}, v{t0}, 4, v{wad}")
    a(f"v_mul_u32_u24 v{rad}, {RS}, v{vi}")
    a(f"v_lshl_add_u32 v{rad}, v{vq}, 4, v{rad}")
    a(f"v_mul_u32_u24 v{uad}, {RS}, v{vi}")
    a(f"v_lshl_add_u32 v{uad}, v{vq}, 3, v{uad}")
    a(f"s_lshl_b32 s{sT}, s{S_W}, 5")
    a(f"v_add_u32 v{uad}, s{sT}, v{uad}")
    for p in range(1, 8):
        a(f"s_waitcnt vmcnt({2*(7-p)})")
        for j in range(0, 8, 2):
            a(f"v_pk_add_f32 {vr(ss+j,2)}, {vr(ss+j,2)}, {vr(ss+8*p+j,2)}")
    for j in range(8): a(f"v_mul_f32 v{ss+j}, {fhex(1/512)}, v{ss+j}")
    for j in range(8): a(f"v_add_f32 v{ss+j}, {fhex(1e-5)}, v{ss+j}")
    for j in range(8): a(f"v_rsq_f32 v{ss+j}, v{ss+j}")
    for j in range(8): a(f"v_mul_f32 v{ss+8+j}, s{sFlag}, v{ss+j}")
    nx = ss + 16
    for pl, (x, rs) in enumerate(((xr, ss), (xi, ss + 8))):
        for j in range(4):
            a(f"v_lshlrev_b32 v{tmp+2*j}, 16, v{x+j}")
            a(f"v_and_b32 v{tmp+2*j+1}, 0xffff0000, v{x+j}")
        for j in range(0, 8, 2): a(f"v_pk_mul_f32 {vr(tmp+j,2)}, {vr(tmp+j,2)}, {vr(rs+j,2)}")
        for j in range(4): a(f"v_cvt_pk_bf16_f32 v{nx+4*pl+j}, v{tmp+2*j}, v{tmp+2*j+1}")
        a(f"ds_write_b128 v{wad}, {vr(nx+4*pl,4)} offset:{XN+pl*PS}")
    a("s_waitcnt lgkmcnt(0)")
    a("s_barrier")
    if getattr(g, 'fine', False): g.stamp("fft_norm")
    mark0 = len(a.items)
    fr = ss + 32
    def frag(pl, tb, ks): return fr + ((pl * 2 + tb) * 2 + ks) * 4
    def read_frags(base):
        for ks in range(2):
            for pl in range(2):
                for tb in range(2):
                    a(f"ds_read_b128 {vr(frag(pl,tb,ks),4)}, v{rad} offset:{base + pl*PS + tb*16*RS + ks*64}")
    read_frags(XN)
    Tr = V.get(8); Ti = V.get(8)
    def mf(d, A, B, first=False): a(f"{M16} {vr(d,4)}, {vr(A,4)}, {vr(B,4)}, {'0' if first else vr(d,4)}")
    for ks in range(2):
        a(f"s_waitcnt lgkmcnt({4 if ks == 0 else 0})")
        for tb in range(2):
            mf(Tr+4*tb, frag(0,tb,ks), C64+4*ks, ks == 0)
            mf(Ti+4*tb, frag(1,tb,ks), C64+4*ks, ks == 0)
        for tb in range(2):
            mf(Tr+4*tb, frag(1,tb,ks), S64+4*ks)
            mf(Ti+4*tb, frag(0,tb,ks), N64+4*ks)
    def cmul_pack(Rr, Ri, cc, ssn, sign, Pr, Pi):
        NEG = " neg_lo:[1,0,0] neg_hi:[1,0,0]"
        for e in range(0, 8, 2):
            a(f"v_pk_mul_f32 {vr(tmp+e,2)}, {vr(Rr+e,2)}, {vr(cc+e,2)}")
            a(f"v_pk_mul_f32 {vr(tmp2+e,2)}, {vr(Ri+e,2)}, {vr(cc+e,2)}")
        for e in range(0, 8, 2):
            a(f"v_pk_fma_f32 {vr(tmp+e,2)}, {vr(Ri+e,2)}, {vr(ssn+e,2)}, {vr(tmp+e,2)}{'' if sign > 0 else NEG}")
            a(f"v_pk_fma_f32 {vr(tmp2+e,2)}, {vr(Rr+e,2)}, {vr(ssn+e,2)}, {vr(tmp2+e,2)}{NEG if sign > 0 else ''}")
        for j in range(4):
            a(f"v_cvt_pk_bf16_f32 v{Pr+j}, v{tmp+2*j}, v{tmp+2*j+1}")
            a(f"v_cvt_pk_bf16_f32 v{Pi+j}, v{tmp2+2*j}, v{tmp2+2*j+1}")
    Pr = V.get(4); Pi = V.get(4)
    cmul_pack(Tr, Ti, tw1c, tw1s, +1, Pr, Pi)
    Yr = ss; Yi = ss + 8
    for td in range(2):
        mf(Yr+4*td, C32+4*td, Pr, True)
        mf(Yi+4*td, C32+4*td, Pi, True)
    for td in range(2):
        mf(Yr+4*td, S32+4*td, Pi)
        mf(Yi+4*td, N32+4*td, Pr)
    wr = Tr; wi = Ti
    for e in range(8):
        a(f"v_lshlrev_b32 v{wr+e}, 16, v{wt+e}")
        a(f"v_and_b32 v{wi+e}, 0xffff0000, v{wt+e}")
    cmul_pack(Yr, Yi, wr, wi, -1, Pr, Pi)
    Ur = Yr; Ui = Yi
    for tb in range(2):
        mf(Ur+4*tb, Pr, C32+4*tb, True)
        mf(Ui+4*tb, Pi, C32+4*tb, True)
    for tb in range(2):
        mf(Ur+4*tb, Pi, N32+4*tb)
        mf(Ui+4*tb, Pr, S32+4*tb)
    cmul_pack(Ur, Ui, tw2c, tw2s, -1, Pr, Pi)
    for tb in range(2):
        a(f"ds_write_b64 v{uad}, {vr(Pr+2*tb,2)} offset:{UX + tb*16*RS}")
        a(f"ds_write_b64 v{uad}, {vr(Pi+2*tb,2)} offset:{UX + PS + tb*16*RS}")
    a("s_waitcnt lgkmcnt(0)")
    a("s_barrier")
    if getattr(g, 'fine', False): g.stamp("fft_s3")
    read_frags(UX)
    Zr = Tr; Zi = Ti
    for ks in range(2):
        a(f"s_waitcnt lgkmcnt({4 if ks == 0 else 0})")
        for tb in range(2):
            mf(Zr+4*tb, C64+4*ks, frag(0,tb,ks), ks == 0)
            mf(Zi+4*tb, C64+4*ks, frag(1,tb,ks), ks == 0)
        for tb in range(2):
            mf(Zr+4*tb, N64+4*ks, frag(1,tb,ks))
            mf(Zi+4*tb, S64+4*ks, frag(0,tb,ks))
    zad = V.get()
    a(f"v_mul_u32_u24 v{zad}, {ZRS}, v{vi}")
    a(f"v_lshl_add_u32 v{zad}, v{vq}, 4, v{zad}")
    a(f"s_lshl_b32 s{sT}, s{S_W}, 6")
    a(f"v_add_u32 v{zad}, s{sT}, v{zad}")
    for pl, Z in enumerate((Zr, Zi)):
        for tb in range(2):
            a(f"ds_write_b128 v{zad}, {vr(Z+4*tb,4)} offset:{ZX + pl*ZPS + tb*16*ZRS}")
    a("s_waitcnt lgkmcnt(0)")
    a("s_barrier")
    if side:
        seg = a.items[mark0:]; del a.items[mark0:]
        merge(g, seg, side, start=4, every=max(1, (len(seg) - 8) // len(side)))
    zpl = V.get(); zf = V.get()
    a(f"v_lshrrev_b32 v{t0}, 2, v{V_LANE}")
    a(f"v_and_b32 v{t0}, 1, v{t0}")
    a(f"s_cmp_eq_u32 s2, 0")
    a(f"s_cselect_b32 s{sT}, 1, 0")
    a(f"v_xor_b32 v{zpl}, s{sT}, v{t0}")
    a(f"v_cmp_eq_u32 vcc, 0, v{zpl}")
    a(f"v_mov_b32 v{zf}, s{sFlag}")
    a(f"v_cndmask_b32 v{zf}, v{zf}, 1.0, vcc")
    a(f"v_mul_u32_u24 v{zad}, {ZPS}, v{zpl}")
    a(f"v_lshrrev_b32 v{t0}, 4, v{V_LANE}")
    a(f"s_lshl_b32 s{sT}, s{S_W}, 3")
    a(f"v_add_u32 v{t0}, s{sT}, v{t0}")
    a(f"v_mul_u32_u24 v{t0}, {ZRS}, v{t0}")
    a(f"v_add_u32 v{zad}, v{zad}, v{t0}")
    a(f"v_lshrrev_b32 v{t0}, 3, v{V_LANE}")
    a(f"v_and_b32 v{t0}, 1, v{t0}")
    a(f"v_lshl_add_u32 v{zad}, v{t0}, 7, v{zad}")
    a(f"v_and_b32 v{t0}, 3, v{V_LANE}")
    a(f"v_lshl_add_u32 v{zad}, v{t0}, 5, v{zad}")
    zz = ss + 16
    for n in range(2):
        a(f"ds_read_b128 {vr(zz+8*n,4)}, v{zad} offset:{ZX + n*4*ZRS}")
        a(f"ds_read_b128 {vr(zz+8*n+4,4)}, v{zad} offset:{ZX + n*4*ZRS + 16}")
    srd(a, 8, P_WS, XPout, XP_SZ)
    for n in range(2):
        x = rawb + 4*n
        for j in range(4):
            a(f"v_lshlrev_b32 v{tmp+2*j}, 16, v{x+j}")
            a(f"v_and_b32 v{tmp+2*j+1}, 0xffff0000, v{x+j}")
        a(f"s_waitcnt lgkmcnt({2 if n == 0 else 0})")
        for j in range(8): a(f"v_fma_f32 v{tmp+j}, v{zz+8*n+j}, v{zf}, v{tmp+j}")
        o = tmp2 + 4 * n
        for j in range(4): a(f"v_cvt_pk_bf16_f32 v{o+j}, v{tmp+2*j}, v{tmp+2*j+1}")
        if n == 0: a(f"buffer_store_dwordx4 {vr(o,4)}, v{offb}, s[8:11], s{sK} offen{g.st}")
        else:
            a(f"s_add_u32 s{sT}, s{sK}, {8*32768}")
            a(f"buffer_store_dwordx4 {vr(o,4)}, v{offb}, s[8:11], s{sT} offen{g.st}")

S_RT, S_CG, S_KK = 32, 33, 34
S_IDLE = 90
def g4_map(g, skip_label=None):
    a = g.a
    a(f"s_min_u32 s24, s{S_X}, 2")
    a(f"s_mul_i32 s25, s{S_X}, 30")
    a(f"s_add_u32 s25, s25, s24")
    a(f"s_cmp_lt_u32 s{S_X}, 2")
    a(f"s_cselect_b32 s24, 31, 30")
    a(f"s_cmp_ge_u32 s{S_L}, s24")
    a(f"s_cselect_b32 s{S_IDLE}, 1, 0")
    a(f"s_add_u32 s25, s25, s{S_L}")
    a(f"s_min_u32 s25, s25, 241")
    a(f"s_cmp_ge_u32 s25, 121")
    a(f"s_cselect_b32 s24, 121, 0")
    a(f"s_cselect_b32 s{S_RT}, 11, 0")
    a(f"s_sub_u32 s25, s25, s24")
    a(f"s_mul_hi_u32 s{S_CG}, s25, 0x1745D175")
    a(f"s_mul_i32 s24, s{S_CG}, 11")
    a(f"s_sub_u32 s25, s25, s24")
    a(f"s_add_u32 s{S_RT}, s{S_RT}, s25")
    a(f"s_lshl_b32 s{S_KK}, s{S_CG}, 2")
    a(f"s_add_u32 s{S_KK}, s{S_KK}, s{S_W}")
    a(f"s_cmp_eq_u32 s{S_IDLE}, 1")
    a(f"s_cselect_b32 s{S_KK}, 43, s{S_KK}")

def g4_weights(g, V, j0=0, j1=32):
    a = g.a
    l16 = V.get()
    srd(a, 16, P_WS, WGU, WGU_SZ)
    a(f"v_lshlrev_b32 v{l16}, 4, v{V_LANE}")
    n = 0
    for gq in range(j0 // 8, (j1 + 7) // 8):
        a(f"s_add_u32 s60, s{S_W}, {gq}")
        a(f"s_and_b32 s60, s60, 3")
        a(f"s_lshl_b32 s60, s60, 13")
        a(f"s_lshl_b32 s61, s{S_KK}, 16")
        a(f"s_add_u32 s61, s61, s60")
        for jj in range(8):
            j = gq * 8 + jj
            if j < j0 or j >= j1: continue
            for p in range(2):
                a(f"s_add_u32 s60, s61, {p*32768 + (jj>>2)*4096}")
                a(f"buffer_load_dwordx4 {vr((2*j+p)*4,4,'a')}, v{l16}, s[16:19], s60 offen offset:{(jj&3)*1024}{g.ld}")
                n += 1
    return n

def g4_pre(g, V):
    a = g.a
    TOK = 32768; SSL = 98304
    st = {}
    t0 = V.get(); t1 = V.get(); dv = V.get(); l16 = V.get()
    sNT, sXo, sM0 = 35, 36, 37
    a(f"s_cmp_eq_u32 s{S_RT}, 21")
    a(f"s_cselect_b32 s{sNT}, 1, 3")
    a(f"v_lshlrev_b32 v{l16}, 4, v{V_LANE}")
    a(f"v_mov_b32 v{dv}, v{l16}")
    a(f"s_mul_i32 s{sXo}, s{S_RT}, {3*32768}")
    a(f"s_lshl_b32 s24, s{S_W}, 13")
    a(f"s_add_u32 s{sXo}, s{sXo}, s24")
    a(f"s_lshl_b32 s{sM0}, s{S_W}, 13")
    ad = V.get(4, 1)
    a(f"v_and_b32 v{t0}, 15, v{V_LANE}")
    a(f"v_lshrrev_b32 v{t1}, 2, v{t0}")
    a(f"v_lshl_add_u32 v{t1}, v{V_HH}, 2, v{t1}")
    a(f"v_lshlrev_b32 v{t1}, 6, v{t1}")
    a(f"v_and_b32 v{t0}, 3, v{t0}")
    a(f"v_lshl_add_u32 v{t1}, v{t0}, 3, v{t1}")
    a(f"v_lshrrev_b32 v{t0}, 4, v{V_LANE}")
    a(f"v_and_b32 v{t0}, 1, v{t0}")
    a(f"v_lshl_add_u32 v{t1}, v{t0}, 5, v{t1}")
    for gq in range(4):
        a(f"s_add_u32 s24, s{S_W}, {gq}")
        a(f"s_and_b32 s24, s24, 3")
        a(f"s_lshl_b32 s24, s24, 13")
        a(f"v_add_u32 v{ad+gq}, s24, v{t1}")
    msk = V.get(); sad = V.get(); srd_ = V.get(); Mk = V.get(16)
    a(f"v_cmp_eq_u32 vcc, 0, v{V_HH}")
    a(f"s_cmp_eq_u32 s{S_W}, 0")
    a(f"s_cselect_b64 s[26:27], vcc, 0")
    a(f"v_mov_b32 v{t0}, 0xffff0000")
    a(f"v_cndmask_b32 v{msk}, -1, v{t0}, s[26:27]")
    a(f"v_lshlrev_b32 v{t0}, 2, v{V_HH}")
    a(f"v_sub_u32 v{t0}, v{V_L31}, v{t0}")
    for r in range(16):
        a(f"v_cmp_eq_u32 vcc, {8*(r>>2) + (r&3)}, v{t0}")
        a(f"v_cndmask_b32 v{Mk+r}, 0, 1.0, vcc")
    a(f"v_lshlrev_b32 v{srd_}, 5, v{V_L31}")
    a(f"v_add_u32 v{srd_}, {SSL}, v{srd_}")
    a(f"v_lshl_add_u32 v{sad}, v{V_HH}, 2, v{srd_}")
    a(f"s_lshl_b32 s24, s{S_W}, 3")
    a(f"v_add_u32 v{sad}, s24, v{sad}")
    a(f"s_mul_i32 s38, s{S_RT}, {3*86*1024}")
    a(f"s_lshl_b32 s25, s{S_KK}, 11")
    a(f"s_add_u32 s38, s38, s25")
    a(f"s_cmp_ge_u32 s{S_KK}, 43")
    a(f"s_cselect_b32 s25, 0x7f000000, 0")
    a(f"s_add_u32 s38, s38, s25")
    st.update(dv=dv, l16=l16, ad=ad, msk=msk, sad=sad, srd_=srd_, Mk=Mk, sNT=sNT, sXo=sXo, sM0=sM0)
    return st

def g4_main(g, V, st, XPin, Hout, side2=None, side2_all=None, side1=None, side2b=None):
    side1 = list(side1 or []); side2b = list(side2b or [])
    a = g.a
    TOK = 32768
    dv, l16, ad, msk, sad, srd_, Mk, sNT, sXo, sM0 = (st[k] for k in ('dv', 'l16', 'ad', 'msk', 'sad', 'srd_', 'Mk', 'sNT', 'sXo', 'sM0'))
    srd(a, 8, P_WS, XPin, XP_SZ)
    srd(a, 12, P_WS, Hout, H_SZ)
    def dma_groups(t):
        out = []
        for mm in range(8):
            out.append([Ins(f"s_add_u32 m0, s{sM0}, {t*TOK + mm*1024}"),
                        Ins(f"s_add_u32 s39, s{sXo}, {mm*1024 + t*32768}"),
                        Ins(f"buffer_load_dwordx4 v{dv}, s[8:11], s39 offen{g.ld} lds")])
        return out
    vm = Cnt(a, "vmcnt", 63); st['vm'] = vm
    st['dtk'] = []
    for grp in dma_groups(0):
        a.items.extend(grp[:-1]); st['dtk'].append(vm.issue(grp[-1].text))
    NR = 5
    fr = V.get(4 * NR)
    acc = V.get(64)
    Dg = V.get(16)
    dg2 = V.get(2)
    kc = V.get(6); et = V.get(24); hb = V.get(8)
    sv = et; fz = hb
    c0 = -2.0 * math.sqrt(2.0 / math.pi) * math.log2(math.e); c1 = c0 * 0.044715
    state = {}
    def mk_epi(t, pk):
        ops = []
        A0 = acc + (t & 1) * 32
        ops.append(("ds", f"ds_read_b128 {vr(sv,4)}, v{srd_} offset:{t*1024}"))
        ops.append(("ds", f"ds_read_b128 {vr(sv+4,4)}, v{srd_} offset:{t*1024+16}"))
        for _ in range(0 if pk else 9): ops.append(None)
        ops.append(("waitds", None))
        for j in range(4): ops.append(f"v_add_f32 v{sv+j}, v{sv+j}, v{sv+4+j}")
        ops.append(f"v_add_f32 v{sv}, v{sv}, v{sv+1}")
        ops.append(f"v_add_f32 v{sv+2}, v{sv+2}, v{sv+3}")
        ops.append(f"v_add_f32 v{sv}, v{sv}, v{sv+2}")
        ops.append(f"v_mul_f32 v{sv}, {fhex(1/512)}, v{sv}")
        ops.append(f"v_add_f32 v{kc+4}, {fhex(1e-5)}, v{sv}")
        ops.append(f"v_rsq_f32 v{sv+1}, v{kc+4}")
        ops.append(f"s_nop 0")
        ops.append(f"v_mul_f32 v{kc}, {fhex(c0)}, v{sv+1}")
        ops.append(f"v_mul_f32 v{sv+2}, v{sv+1}, v{sv+1}")
        ops.append(f"v_mul_f32 v{sv+2}, v{sv+2}, v{sv+1}")
        ops.append(f"v_mul_f32 v{kc+2}, {fhex(c1)}, v{sv+2}")
        k0 = vr(kc, 2); k1 = vr(kc+2, 2); ir = vr(kc+4, 2)
        for f in range(2):
            chains = []
            for ii in range(4):
                i = 4*f + ii
                gg = vr(A0 + 2*i, 2); uu = vr(A0 + 16 + 2*i, 2)
                tq = et + ii * 6
                T1 = vr(tq, 2); T2 = vr(tq+2, 2); T3 = vr(tq+4, 2)
                if pk:
                    chains.append([f"v_pk_mul_f32 {T1}, {gg}, {gg}",
                        f"v_pk_mul_f32 {T3}, {gg}, {uu}",
                        f"v_pk_fma_f32 {T1}, {T1}, {k1}, {k0} op_sel_hi:[1,0,0]",
                        f"v_pk_mul_f32 {T1}, {T1}, {gg}",
                        f"v_exp_f32 v{tq+2}, v{tq}",
                        f"v_exp_f32 v{tq+3}, v{tq+1}",
                        f"v_pk_fma_f32 {T2}, {T2}, {ir}, {ir} op_sel_hi:[1,0,0]",
                        f"v_rcp_f32 v{tq+2}, v{tq+2}",
                        f"v_rcp_f32 v{tq+3}, v{tq+3}",
                        f"v_pk_mul_f32 {T3}, {T3}, {T2}",
                        f"v_cvt_pk_bf16_f32 v{hb+i}, v{tq+4}, v{tq+5}"])
                else:
                    g0 = A0 + 2*i; u0 = A0 + 16 + 2*i
                    chains.append([f"v_mul_f32 v{tq}, v{g0}, v{g0}", f"v_mul_f32 v{tq+1}, v{g0+1}, v{g0+1}",
                        f"v_mul_f32 v{tq+4}, v{g0}, v{u0}", f"v_mul_f32 v{tq+5}, v{g0+1}, v{u0+1}",
                        f"v_fma_f32 v{tq}, v{tq}, v{kc+2}, v{kc}", f"v_fma_f32 v{tq+1}, v{tq+1}, v{kc+2}, v{kc}",
                        f"v_mul_f32 v{tq}, v{tq}, v{g0}", f"v_mul_f32 v{tq+1}, v{tq+1}, v{g0+1}",
                        f"v_exp_f32 v{tq+2}, v{tq}", f"v_exp_f32 v{tq+3}, v{tq+1}",
                        f"v_fma_f32 v{tq+2}, v{tq+2}, v{kc+4}, v{kc+4}", f"v_fma_f32 v{tq+3}, v{tq+3}, v{kc+4}, v{kc+4}",
                        f"v_rcp_f32 v{tq+2}, v{tq+2}", f"v_rcp_f32 v{tq+3}, v{tq+3}",
                        f"v_mul_f32 v{tq+4}, v{tq+4}, v{tq+2}", f"v_mul_f32 v{tq+5}, v{tq+5}, v{tq+3}",
                        f"v_cvt_pk_bf16_f32 v{hb+i}, v{tq+4}, v{tq+5}"])
            for k in range(len(chains[0])):
                for ii in range(4): ops.append(chains[ii][k])
            ops.append(f"s_add_u32 s24, s38, {(t*86 + f)*1024}")
            ops.append(("vm", f"buffer_store_dwordx4 {vr(hb+4*f,4)}, v{l16}, s[12:15], s24 offen{g.st}"))
        return ops
    Ldone = g.lab("g4_done")
    lg = Cnt(a, "lgkmcnt", 15)
    vm = st['vm']
    def emit_op(o):
        if o is None: return
        if isinstance(o, tuple):
            if o[0] == "ds": state['dst'] = lg.issue(o[1])
            elif o[0] == "waitds": lg.wait(state['dst'])
            elif o[0] == "vm": vm.issue(o[1])
        else: a(o)
    def emit_dma(grp):
        a.items.extend(grp[:-1]); return vm.issue(grp[-1].text)
    tick = {}
    adcur = [0]
    def issue_reads(J):
        t, j = divmod(J, 32)
        gq = j >> 3
        if t == 2 and j % 8 == 0:
            a(f"v_add_u32 v{ad+gq}, {TOK}, v{ad+gq}")
        toff = 0 if t < 2 else -TOK
        for rd in range(2):
            off = t*TOK + (j & 7)*1024 + rd*512 + toff
            tick[J] = lg.issue(f"ds_read_b64_tr_b16 {vr(fr + (J % NR)*4 + 2*rd,2)}, v{ad+gq} offset:{off}")
    PF = 4
    dtk = st['dtk']
    dm = dma_groups(1) + dma_groups(2)
    dmt = []
    vm.wait(dtk[PF - 1])
    for J in range(PF): issue_reads(J)
    epi = []
    for J in range(96):
        t, j = divmod(J, 32)
        if j == 0 and t == 1:
            a(f"s_cmp_eq_u32 s{sNT}, 1")
            a(f"s_cbranch_scc1 {Ldone}_1")
        if j == 0:
            if getattr(g, 'fineg4', False): g.stamp(f"g4p{t}")
            epi = mk_epi(t - 1, False) if t > 0 else []
        if j % 2 == 0: lg.wait(tick[min(J + 1, 95)])
        f = fr + (J % NR) * 4
        A0 = acc + (t & 1) * 32
        for p in range(2):
            d = A0 + 16*p
            c = "0" if j == 0 else vr(d, 16)
            a(f"{M32} {vr(d,16)}, {vr((2*j+p)*4,4,'a')}, {vr(f,4)}, {c}")
            if p == 0 and J + PF < 96:
                Jn = J + PF
                if Jn < 8: vm.wait(dtk[Jn])
                if Jn == 8: a("s_barrier")
                issue_reads(Jn)
            if p == 1 and dm and t == 0 and j >= 4 and j % 1 == 0 and len(dmt) < 16:
                dmt.append(emit_dma(dm.pop(0)))
            if p == 0 and t == 1 and side1 and j % 2 == 0:
                for x in side1.pop(0):
                    if x.startswith("buffer"): vm.issue(x)
                    else: a(x)
            if p == 0 and t == 2 and side2b and j % 2 == 0:
                for x in side2b.pop(0):
                    if x.startswith("buffer"): vm.issue(x)
                    else: a(x)
            if p == 1 and t == 2 and side2 and j < len(side2):
                for x in side2[j]:
                    if x.startswith("buffer"): vm.issue(x)
                    else: a(x)
            if j >= 2:
                for _ in range(3):
                    if epi: emit_op(epi.pop(0))
        if j < 8:
            if j == 0:
                a(f"v_and_b32 v{fz}, v{msk}, v{f}")
                for q in range(1, 4): a(f"v_mov_b32 v{fz+q}, v{f+q}")
                a(f"{M32} {vr(Dg,16)}, {vr(fz,4)}, {vr(fz,4)}, 0")
            else:
                a(f"{M32} {vr(Dg,16)}, {vr(f,4)}, {vr(f,4)}, {vr(Dg,16)}")
        if j == 10:
            a(f"v_mul_f32 v{dg2}, v{Dg}, v{Mk}")
            a(f"v_mul_f32 v{dg2+1}, v{Dg+1}, v{Mk+1}")
            for r in range(2, 16): a(f"v_fmac_f32 v{dg2+(r&1)}, v{Dg+r}, v{Mk+r}")
            a(f"v_add_f32 v{dg2}, v{dg2}, v{dg2+1}")
            state['stw'] = lg.issue(f"ds_write_b32 v{sad}, v{dg2} offset:{t*1024}")
        if j == 27:
            if t < 2: vm.wait(dmt[8*t + 7])
            a("s_barrier")
        if j == 31:
            while epi: emit_op(epi.pop(0))
    if getattr(g, 'fineg4', False): g.stamp("g4p3")
    for o in mk_epi(2, True): emit_op(o)
    a(f"s_branch {Ldone}")
    a.label(f"{Ldone}_1")
    lg = Cnt(a, "lgkmcnt", 15)
    a("s_waitcnt lgkmcnt(0)")
    for o in mk_epi(0, True): emit_op(o)
    a.label(Ldone)

S_R64, S_SG, S_K0, S_NK = 40, 41, 42, 43
NKMAX = 22
def g5_map(g):
    a = g.a
    a(f"s_lshr_b32 s24, s{S_L}, 3")
    a(f"s_lshl_b32 s{S_R64}, s{S_X}, 2")
    a(f"s_add_u32 s{S_R64}, s{S_R64}, s24")
    a(f"s_and_b32 s{S_SG}, s{S_L}, 7")
    a(f"s_mul_i32 s{S_K0}, s{S_W}, 22")
    a(f"s_cmp_eq_u32 s{S_W}, 3")
    a(f"s_cselect_b32 s24, 1, 0")
    a(f"s_sub_u32 s{S_K0}, s{S_K0}, s24")

ACC5 = 176
def g5w_setup(g, vo, final):
    a = g.a
    srd(a, 16, P_WS, WDF if final else WDP, WDP_SZ)
    if final:
        a(f"s_lshl_b32 s24, s{S_W}, 3")
        a(f"v_xor_b32 v{vo}, s24, v{V_LANE}")
        a(f"v_lshlrev_b32 v{vo}, 4, v{vo}")
    else:
        a(f"v_lshlrev_b32 v{vo}, 4, v{V_LANE}")
    a(f"s_mul_i32 s47, s{S_SG}, {2*86*1024}")
    a(f"s_lshl_b32 s24, s{S_K0}, 10")
    a(f"s_add_u32 s47, s47, s24")
    a(f"s_cmp_ge_u32 s{S_W}, 2")
    a(f"s_cselect_b32 s48, 0x7f000000, 0")
    a(f"s_add_u32 s48, s48, s47")
    groups = []
    for i in range(22):
        grp = []
        for tile in range(2):
            base = 47 if i < 21 else 48
            grp.append(f"s_add_u32 s63, s{base}, {tile*86*1024 + (i>>2)*4096}")
            grp.append(f"buffer_load_dwordx4 {vr((i*2+tile)*4,4,'a')}, v{vo}, s[16:19], s63 offen offset:{(i&3)*1024}{g.ld}")
        groups.append(grp)
    return groups

def g5_resid_load(g, V, XPres):
    a = g.a
    res = V.get(8); vo = V.get()
    srd(a, 12, P_WS, XPres, XP_SZ)
    a(f"v_lshlrev_b32 v{vo}, 6, v{V_L31}")
    a(f"v_lshl_add_u32 v{vo}, v{V_HH}, 3, v{vo}")
    a(f"s_lshl_b32 s24, s{S_SG}, 12")
    a(f"s_lshl_b32 s25, s{S_R64}, 16")
    a(f"s_add_u32 s24, s24, s25")
    a(f"s_lshl_b32 s25, s{S_W}, 4")
    a(f"s_add_u32 s24, s24, s25")
    for tr in range(2):
        for tc in range(2):
            a(f"s_add_u32 s25, s24, {tr*32768 + tc*2048}")
            a(f"buffer_load_dwordx2 {vr(res+(2*tr+tc)*2,2)}, v{vo}, s[12:15], s25 offen{g.ld}")
    return res

STG7 = 65536
def g7_stg(w_sgpr_out, a):
    a(f"s_lshl_b32 s{w_sgpr_out}, s{S_W}, 14")
    a(f"s_cmp_ge_u32 s{S_W}, 2")
    a(f"s_cselect_b32 s24, {101376 - 32768}, 0")
    a(f"s_add_u32 s{w_sgpr_out}, s{w_sgpr_out}, s24")

def g7_setup(g, V):
    a = g.a
    GA = V.get(64); vo = V.get(); dv = V.get()
    srd(a, 84, P_WS, GF, GF_SZ)
    a(f"v_lshlrev_b32 v{dv}, 4, v{V_LANE}")
    a(f"s_lshl_b32 s92, s{S_W}, 13")
    a(f"s_lshl_b32 s24, s{S_R64}, 16")
    a(f"s_add_u32 s92, s92, s24")
    g7_stg(93, a)
    a(f"s_lshl_b32 s24, s{S_W}, 3")
    a(f"v_xor_b32 v{vo}, s24, v{V_LANE}")
    a(f"v_lshlrev_b32 v{vo}, 4, v{vo}")
    a(f"s_lshl_b32 s94, s{S_SG}, 16")
    a(f"s_lshl_b32 s24, s{S_W}, 13")
    a(f"s_add_u32 s94, s94, s24")
    gf = []
    for tr in range(2):
        for i in range(8):
            gf.append([f"s_add_u32 s60, s94, {tr*32768 + (i>>2)*4096}",
                       f"buffer_load_dwordx4 {vr(GA+(tr*8+i)*4,4)}, v{vo}, s[84:87], s60 offen offset:{(i&3)*1024}{g.ld}"])
    dm = []
    for tc in range(2):
        for mm in range(8):
            dm.append([f"s_add_u32 m0, s93, {tc*8192 + mm*1024}",
                       f"s_add_u32 s60, s92, {mm*1024 + tc*32768}",
                       f"buffer_load_dwordx4 v{dv}, s[8:11], s60 offen{g.ld} lds"])
    return dict(GA=GA, gf=gf, dm=dm)

def g7_compute(g, V, st):
    a = g.a
    m = V.mark()
    GA = st['GA']
    B = V.get(64); ad = V.get(); t = V.get()
    a(f"v_and_b32 v{t}, 15, v{V_LANE}")
    a(f"v_lshrrev_b32 v{ad}, 2, v{t}")
    a(f"v_lshl_add_u32 v{ad}, v{V_HH}, 2, v{ad}")
    a(f"v_lshlrev_b32 v{ad}, 6, v{ad}")
    a(f"v_and_b32 v{t}, 3, v{t}")
    a(f"v_lshl_add_u32 v{ad}, v{t}, 3, v{ad}")
    a(f"v_lshrrev_b32 v{t}, 4, v{V_LANE}")
    a(f"v_and_b32 v{t}, 1, v{t}")
    a(f"v_lshl_add_u32 v{ad}, v{t}, 5, v{ad}")
    a(f"v_add_u32 v{ad}, s93, v{ad}")
    for i in range(8):
        for tc in range(2):
            for rd in range(2):
                a(f"ds_read_b64_tr_b16 {vr(B+(tc*8+i)*4+2*rd,2)}, v{ad} offset:{tc*8192 + i*1024 + rd*512}")
        if i == 2: a("s_waitcnt lgkmcnt(8)") if False else None
    for i in range(8):
        a(f"s_waitcnt lgkmcnt({min(15, 4*(7-i))})")
        for tr in range(2):
            for tc in range(2):
                d = ACC5 + (2*tr+tc)*16
                c = "0" if i == 0 else vr(d, 16, 'a')
                a(f"{M32} {vr(d,16,'a')}, {vr(GA+(tr*8+i)*4,4)}, {vr(B+(tc*8+i)*4,4)}, {c}")
    V.release(m)

def g5_main(g, V, Hin, final, res=None, XPout=None, SSout=None):
    a = g.a
    srd(a, 8, P_WS, Hin, H_SZ)
    Hf = V.get(176); vo = V.get()
    if final:
        a(f"v_lshlrev_b32 v{vo}, 4, v{V_LANE}")
    else:
        a(f"s_lshl_b32 s24, s{S_W}, 3")
        a(f"v_xor_b32 v{vo}, s24, v{V_LANE}")
        a(f"v_lshlrev_b32 v{vo}, 4, v{vo}")
    a(f"s_mul_i32 s25, s{S_R64}, {2*86*1024}")
    a(f"s_lshl_b32 s24, s{S_K0}, 10")
    a(f"s_add_u32 s25, s25, s24")
    vm = Cnt(a, "vmcnt", 63)
    tk = {}
    def ld(i):
        for tile in range(2):
            a(f"s_add_u32 s24, s25, {tile*86*1024 + (i>>2)*4096}")
            tk[i] = vm.issue(f"buffer_load_dwordx4 {vr(Hf+(i*2+tile)*4,4)}, v{vo}, s[8:11], s24 offen offset:{(i&3)*1024}{g.ld}")
    def mm(i, mid=None):
        for tr in range(2):
            if tr == 1 and mid: mid()
            for tc in range(2):
                d = ACC5 + (2*tr+tc)*16
                c = "0" if (i == 0 and not final) else vr(d, 16, 'a')
                if final: A = vr((i*2+tr)*4, 4, 'a'); B = vr(Hf+(i*2+tc)*4, 4)
                else: A = vr(Hf+(i*2+tr)*4, 4); B = vr((i*2+tc)*4, 4, 'a')
                a(f"{M32} {vr(d,16,'a')}, {A}, {B}, {c}")
    AH = 6
    L = g.lab("g5l")
    a(f"s_cmp_ge_u32 s{S_W}, 2")
    a(f"s_cbranch_scc1 {L}")
    for tile in range(2):
        a(f"s_add_u32 s24, s25, {tile*86*1024 + (21>>2)*4096}")
        a(f"buffer_load_dwordx4 {vr(Hf+(21*2+tile)*4,4)}, v{vo}, s[8:11], s24 offen offset:{(21&3)*1024}{g.ld}")
    a.label(L)
    for i in range(AH): ld(i)
    if getattr(g, 'fine', False): g.stamp("g5_iss")
    retry = []
    def check(i):
        if not getattr(g, 'dpoll', False): return
        Lb = "NF_" + g.lab("g5b"); Lr = g.lab("g5r")
        a.label(Lb)
        a(f"v_cmp_eq_u32 vcc, -1, v{Hf+(i*2)*4}")
        a(f"v_cmp_eq_u32 s[26:27], -1, v{Hf+(i*2+1)*4}")
        a(f"s_or_b64 s[26:27], s[26:27], vcc")
        a(f"s_cbranch_scc1 {Lr} ; nf")
        a.label(Lb + "x")
        retry.append((i, Lb, Lr))
    if getattr(g, 'dpoll', False): a("s_mov_b32 s31, 0")
    for i in range(21):
        vm.wait(tk[i])
        check(i)
        mm(i, (lambda: ld(i + AH)) if i + AH < 21 else None)
    if getattr(g, 'fine', False): g.stamp("g5_mm")
    L2 = g.lab("g5m")
    a(f"s_cmp_ge_u32 s{S_W}, 2")
    a(f"s_cbranch_scc1 {L2}")
    check(21)
    mm(21)
    a.label(L2)
    if retry:
        Lskip = g.lab("g5rs")
        a(f"s_branch {Lskip}")
        for (i, Lb, Lr) in retry:
            a.label(Lr)
            for tile in range(2):
                a(f"s_add_u32 s24, s25, {tile*86*1024 + (i>>2)*4096}")
                a(f"buffer_load_dwordx4 {vr(Hf+(i*2+tile)*4,4)}, v{vo}, s[8:11], s24 offen offset:{(i&3)*1024} sc1")
            a(f"s_add_u32 s31, s31, 1")
            a("s_waitcnt vmcnt(0)")
            a(f"s_cmp_lt_u32 s31, {SPIN_MAX}")
            a(f"s_cbranch_scc1 {Lb} ; nf")
            a(f"s_branch {Lb}x ; nf")
        a.label(Lskip)
    Hm = Hf
    reduce_write(g, V, lambda k, grp: ACC5 + k*16 + grp*4, 'a', 'g')
    a("s_waitcnt lgkmcnt(0)")
    a("s_barrier")
    part = Hf; val = Hf + 48; own = Hf + 64
    if getattr(g, 'fine', False): g.stamp("g5_rw")
    reduce_read(g, V, part)
    for k in range(4):
        for t in range(4):
            a(f"v_accvgpr_read_b32 v{own+4*k+t}, a{ACC5+k*16+t}")
    if not final:
        rx = Hf + 80
        for k in range(4):
            for j in range(2):
                a(f"v_lshlrev_b32 v{rx+4*k+2*j}, 16, v{res+2*k+j}")
                a(f"v_and_b32 v{rx+4*k+2*j+1}, 0xffff0000, v{res+2*k+j}")
        for r in range(16): a(f"v_add_f32 v{own+r}, v{own+r}, v{rx+r}")
    a("s_waitcnt lgkmcnt(0)")
    for r in range(16):
        a(f"v_add_f32 v{val+r}, v{own+r}, v{part+r}")
        a(f"v_add_f32 v{part+16+r}, v{part+16+r}, v{part+32+r}")
    for r in range(16): a(f"v_add_f32 v{val+r}, v{val+r}, v{part+16+r}")
    V2 = Alloc(Hf + 96, Hf + 176)
    if not final:
        a(f"s_lshl_b32 s28, s{S_R64}, 6")
        stats_out(g, V2, val, S_SG, 28, SSout, None)
        planes_out(g, V2, val, S_R64, S_SG, XPout, OT=49152)
    else:
        srd(a, 8, P_OUT, 0, 2048 * 512 * 2)
        def rowfn():
            vo2 = V2.get(); t = V2.get()
            a(f"v_lshrrev_b32 v{t}, 3, v0")
            a(f"v_lshlrev_b32 v{vo2}, 15, v{t}")
            a(f"v_and_b32 v{t}, 7, v0")
            a(f"v_lshl_add_u32 v{vo2}, v{t}, 4, v{vo2}")
            a(f"s_lshl_b32 s24, s{S_R64}, 10")
            a(f"s_lshl_b32 s25, s{S_SG}, 7")
            a(f"s_add_u32 s24, s24, s25")
            a(f"s_add_u32 s25, s24, {32*32768}")
            return vo2, ["s24", "s25"], ""
        epi_out(g, V2, val, 49152, 8, rowfn)

NINIT = 20
RF = SYNC + 16384
SYNC_SZ = NINIT * 1024
SPIN_MAX = 1 << 20
def sync_init(g):
    a = g.a
    L = g.lab("noinit")
    a(f"s_cmp_ge_u32 s2, {NINIT}")
    a(f"s_cbranch_scc1 {L}")
    a(f"s_cmp_lg_u32 s{S_W}, 0")
    a(f"s_cbranch_scc1 {L}")
    srd(a, 8, P_WS, SYNC, SYNC_SZ)
    for i in range(4): a(f"v_mov_b32 v{8+i}, 0")
    a(f"v_lshlrev_b32 v4, 4, v{V_LANE}")
    a(f"s_lshl_b32 s24, s2, 10")
    a(f"buffer_store_dwordx4 v[8:11], v4, s[8:11], s24 offen sc0 sc1")
    a("s_waitcnt vmcnt(0)")
    srd(a, 8, P_DBG, 0, 256)
    a("v_mov_b32 v8, 1")
    a("v_mov_b32 v4, 0")
    a("s_mov_b64 exec, 1")
    a("buffer_atomic_add v8, v4, s[8:11], 0 offen sc1")
    a("s_mov_b64 exec, -1")
    a.label(L)

def poll(g, srdreg, vaddr, vdata, nlanes, target, soff="0"):
    a = g.a
    Lp = g.lab("poll"); Ld = g.lab("polld")
    a(f"s_mov_b64 exec, {hex((1 << nlanes) - 1)}")
    a(f"s_mov_b32 s31, 0")
    a.label(Lp)
    a(f"buffer_load_dword v{vdata}, v{vaddr}, s[{srdreg}:{srdreg+3}], {soff} offen sc0 sc1")
    a(f"s_add_u32 s31, s31, 1")
    a("s_waitcnt vmcnt(0)")
    a(f"v_cmp_le_u32 vcc, {hex(target)}, v{vdata}")
    a(f"s_cmp_eq_u64 vcc, exec")
    a(f"s_cbranch_scc1 {Ld}")
    a(f"s_cmp_lt_u32 s31, {SPIN_MAX}")
    a(f"s_cbranch_scc1 {Lp}")
    a.label(Ld)
    a("s_mov_b64 exec, -1")

def arrive(g, b, vt, first=False, younger=0):
    a = g.a
    L = g.lab("arr")
    a(f"s_waitcnt vmcnt({younger}) lgkmcnt(0)")
    a("s_barrier")
    a(f"s_cmp_lg_u32 s{S_W}, 0")
    a(f"s_cbranch_scc1 {L}")
    if first:
        Lok = g.lab("dbgok")
        a(f"v_readfirstlane_b32 s24, v{first}")
        a(f"s_cmp_ge_u32 s24, {NINIT}")
        a(f"s_cbranch_scc1 {Lok}")
        srd(a, 4, P_DBG, 0, 256)
        a(f"v_mov_b32 v{vt}, 0")
        poll(g, 4, vt, vt + 1, 1, NINIT)
        a.label(Lok)
    srd(a, 4, P_WS, SYNC, SYNC_SZ)
    a(f"v_lshlrev_b32 v{vt}, 3, v{V_LANE}")
    a(f"v_add_u32 v{vt}, s{S_X}, v{vt}")
    a(f"v_lshlrev_b32 v{vt}, 7, v{vt}")
    a(f"v_mov_b32 v{vt+1}, 1")
    a(f"s_mov_b64 exec, 0xffff")
    a(f"buffer_atomic_add v{vt+1}, v{vt}, s[4:7], 0 offen offset:{4*b} sc1")
    a(f"s_mov_b64 exec, -1")
    a.label(L)

def wait(g, b, vt, target=32):
    a = g.a
    L = g.lab("wt")
    a(f"s_cmp_lg_u32 s{S_W}, 0")
    a(f"s_cbranch_scc1 {L}")
    srd(a, 4, P_WS, SYNC + 4 * b, SYNC_SZ - 4 * b)
    a(f"s_and_b32 s24, s{S_L}, 15")
    a(f"s_lshl_b32 s24, s24, 3")
    a(f"v_add_u32 v{vt}, s24, v{V_LANE}")
    a(f"v_lshlrev_b32 v{vt}, 7, v{vt}")
    poll(g, 4, vt, vt + 1, 8, target)
    a.label(L)
    a("s_barrier")

def arrive_row(g, ph, vt, younger=0):
    a = g.a
    L = g.lab("arr")
    a(f"s_waitcnt vmcnt({younger}) lgkmcnt(0)")
    a("s_barrier")
    a(f"s_cmp_lg_u32 s{S_W}, 0")
    a(f"s_cbranch_scc1 {L}")
    srd(a, 4, P_WS, RF, 4096)
    a(f"s_lshl_b32 s24, s{S_RT}, 7")
    a(f"v_mov_b32 v{vt}, 0")
    a(f"v_mov_b32 v{vt+1}, 1")
    a(f"s_mov_b64 exec, 1")
    a(f"buffer_atomic_add v{vt+1}, v{vt}, s[4:7], s24 offen offset:{4*ph} sc1")
    a(f"s_mov_b64 exec, -1")
    a.label(L)

def wait_row(g, ph, vt):
    a = g.a
    L = g.lab("wt")
    a(f"s_cmp_lg_u32 s{S_W}, 0")
    a(f"s_cbranch_scc1 {L}")
    srd(a, 4, P_WS, RF + 4 * ph, 4096 - 4 * ph)
    a(f"s_lshl_b32 s24, s{S_R64}, 1")
    a(f"v_add_u32 v{vt}, s24, v{V_LANE}")
    a(f"v_mul_u32_u24 v{vt}, 43691, v{vt}")
    a(f"v_lshrrev_b32 v{vt}, 17, v{vt}")
    a(f"v_lshlrev_b32 v{vt}, 7, v{vt}")
    poll(g, 4, vt, vt + 1, 2, 11)
    a.label(L)
    a("s_barrier")


def code_prefetch(g, start_label, end_label):
    a = g.a
    L = g.lab("pc")
    a("s_getpc_b64 s[26:27]")
    a.label(L)
    a(f"s_sub_u32 s26, s26, {L}-{start_label}")
    a("s_subb_u32 s27, s27, 0")
    a(f"s_lshl_b32 s24, s{S_L}, 12")
    a("v_lshlrev_b32 v4, 4, v0")
    a("v_add_u32 v4, s24, v4")
    a(f"s_mov_b32 s24, {end_label}-{start_label}-16")
    a("v_cmp_gt_u32 vcc, s24, v4")
    a("s_and_saveexec_b64 s[28:29], vcc")
    a(f"s_cbranch_execz {L}_skip")
    a("global_load_dwordx4 v[244:247], v4, s[26:27]")
    a.label(f"{L}_skip")
    a("s_mov_b64 exec, s[28:29]")


def dbg_load(g, vdst, vz):
    a = g.a
    srd(a, 4, P_DBG, 0, 256)
    a(f"v_mov_b32 v{vz}, 0")
    a(f"buffer_load_dword v{vdst}, v{vz}, s[4:7], 0 offen sc0 sc1")


def p1_touch(g, sRT, sSG):
    a = g.a
    L1 = g.lab("t1"); L2 = g.lab("t2"); L3 = g.lab("t3"); Le = g.lab("te"); Lb = g.lab("tb")
    a(f"s_cmp_eq_u32 s{S_W}, 0"); a(f"s_cbranch_scc1 {L1}")
    a(f"s_cmp_eq_u32 s{S_W}, 3"); a(f"s_cbranch_scc1 {L3}")
    a.label(L2)
    a(f"s_cmp_eq_u32 s{S_W}, 1")
    a(f"s_cselect_b32 s28, s{P_WG}, s{P_WU}")
    a(f"s_cselect_b32 s29, s{P_WG+1}, s{P_WU+1}")
    a(f"s_lshl_b32 s24, s{sSG}, 6")
    a(f"v_add_u32 v4, s24, v{V_LANE}")
    a(f"v_mul_u32_u24 v4, 2752, v4")
    a(f"s_lshl_b32 s24, s{sRT}, 6")
    a(f"v_add_u32 v4, s24, v4")
    a(f"global_load_dword a240, v4, s[28:29]")
    a(f"s_cmp_ge_u32 s{sRT}, 11"); a(f"s_cbranch_scc1 {Le}")
    a(f"v_add_u32 v4, {32*64}, v4")
    a(f"global_load_dword a241, v4, s[28:29]")
    a(f"s_branch {Le}")
    a.label(L1)
    a(f"v_lshrrev_b32 v4, 3, v{V_LANE}")
    a(f"s_lshl_b32 s24, s{sSG}, 3")
    a(f"v_add_u32 v4, s24, v4")
    a(f"v_lshlrev_b32 v4, 15, v4")
    a(f"v_and_b32 v5, 7, v{V_LANE}")
    a(f"v_lshl_add_u32 v4, v5, 7, v4")
    a(f"s_lshl_b32 s24, s{sRT}, 10")
    a(f"v_add_u32 v4, s24, v4")
    a(f"global_load_dword a240, v4, s[{P_X}:{P_X+1}]")
    a(f"s_branch {Le}")
    a.label(L3)
    a(f"s_sub_u32 s25, s{sRT}, 11")
    a(f"s_cmp_eq_u32 s{sRT}, 0")
    a(f"s_cselect_b32 s25, 21, s25")
    a(f"s_cmp_gt_u32 s25, 21"); a(f"s_cbranch_scc1 {Le}")
    a(f"s_lshl_b32 s25, s25, 6")
    a(f"s_lshl_b32 s24, s{sSG}, 3")
    a(f"s_add_u32 s24, s24, s25")
    a(f"v_lshrrev_b32 v4, 3, v{V_LANE}")
    a(f"v_add_u32 v4, s24, v4")
    a(f"v_min_u32 v4, 1375, v4")
    a(f"v_lshlrev_b32 v4, 10, v4")
    a(f"v_and_b32 v5, 7, v{V_LANE}")
    a(f"v_lshl_add_u32 v4, v5, 7, v4")
    a(f"global_load_dword a240, v4, s[{P_WD}:{P_WD+1}]")
    a.label(Le)

FS = 0
P1_STG = {2: 32768, 3: 65536, 0: 0, 1: 98304}
P1_OT = 131072
AF = 0
AA = 128
def aF(u, ks): return AF + (u * 16 + ks) * 4

def p1_genF(g, V, sSG):
    a = g.a
    m = V.mark()
    sl = V.get(); fk = V.get(); ab = V.get(); c_ = V.get(); t = V.get(); t2 = V.get(); ar = V.get(16); fd = V.get(); pk = V.get(8); wad = V.get()
    a(f"v_lshlrev_b32 v{t}, 3, v{V_HH}")
    a(f"v_cvt_f32_u32 v{fd}, v{t}")
    a(f"v_lshlrev_b32 v{wad}, 4, v{V_LANE}")
    a(f"s_sub_u32 s25, s{S_W}, 2")
    a(f"s_lshl_b32 s24, s25, 14")
    a(f"v_add_u32 v{wad}, s24, v{wad}")
    a(f"s_lshl_b32 s24, s{sSG}, 6")
    a(f"s_lshl_b32 s25, s25, 5")
    a(f"s_add_u32 s24, s24, s25")
    a(f"v_add_u32 v{sl}, s24, v{V_L31}")
    a(f"v_lshrrev_b32 v{t}, 1, v{sl}")
    a(f"v_and_b32 v{t2}, 1, v{sl}")
    a(f"v_cmp_eq_u32 vcc, 1, v{sl}")
    a(f"v_mov_b32 v{c_}, 256")
    a(f"v_cndmask_b32 v{t}, v{t}, v{c_}, vcc")
    a(f"v_mov_b32 v{c_}, 0")
    a(f"v_cndmask_b32 v{t2}, v{t2}, v{c_}, vcc")
    a(f"v_cvt_f32_u32 v{fk}, v{t}")
    a(f"v_mul_f32 v{fk}, {fhex(1/512)}, v{fk}")
    a(f"v_cvt_f32_u32 v{ab}, v{t2}")
    a(f"v_mul_f32 v{ab}, {fhex(0.25)}, v{ab}")
    a(f"v_fmac_f32 v{ab}, v{fk}, v{fd}")
    for ks in range(16):
        r = ar + 8*(ks & 1); p = pk + 4*(ks & 1)
        for j in range(8): a(f"v_fmamk_f32 v{r+j}, v{fk}, {fhex(float(16*ks+j))}, v{ab}")
        for j in range(8): a(f"v_fract_f32 v{r+j}, v{r+j}")
        for j in range(8): a(f"v_cos_f32 v{r+j}, v{r+j}")
        for j in range(4): a(f"v_cvt_pk_bf16_f32 v{p+j}, v{r+2*j}, v{r+2*j+1}")
        a(f"ds_write_b128 v{wad}, {vr(p,4)} offset:{FS + ks*1024}")
    V.release(m)

def p1_readF(g, V):
    a = g.a
    m = V.mark(); rad = V.get()
    a(f"v_lshlrev_b32 v{rad}, 4, v{V_LANE}")
    for u in range(2):
        for ks in range(16):
            a(f"ds_read_b128 {vr(aF(u,ks),4,'a')}, v{rad} offset:{FS + u*16384 + ks*1024}")
            if (u*16 + ks) % 12 == 11: a("s_waitcnt lgkmcnt(4)")
    a("s_waitcnt lgkmcnt(0)")
    V.release(m)

def rows_issue(g, V, base_ptr, nbytes, s_rowbase, row_shift, part=None, vo=None):
    a = g.a
    order = list(range(0, 4)) + list(range(16, 20)) + list(range(4, 8)) + list(range(20, 24)) + list(range(8, 12)) + list(range(24, 28)) + list(range(12, 16)) + list(range(28, 32))
    if True:
        if vo is None: vo = V.get()
        srd(a, 52, base_ptr, 0, nbytes)
        a(f"v_lshlrev_b32 v{vo}, {row_shift}, v{V_L31}")
        a(f"v_lshl_add_u32 v{vo}, v{V_HH}, 4, v{vo}")
    sel = order if part is None else (order[:16] if part == 0 else order[16:])
    for ks in sel:
        a(f"buffer_load_dwordx4 {vr(AA + ks*4, 4, 'a')}, v{vo}, s[52:55], s{s_rowbase} offen offset:{ks*32}")
    return vo

def unit_rows_main(g, V, acc):
    a = g.a
    order = [(0, 28), (4, 20), (8, 12), (12, 4)]
    for q in range(4):
        a(f"s_waitcnt vmcnt({24 - 8*q})")
        for ks in range(4*q, 4*q + 4):
            for hf in range(2):
                for u in range(2):
                    d = acc + (hf*2 + u)*16
                    c = "0" if ks == 0 else vr(d, 16)
                    a(f"{M32} {vr(d,16)}, {vr(AA + (ks + 16*hf)*4, 4, 'a')}, {vr(aF(u,ks),4,'a')}, {c}")

def lane_sign_scale(g, V, sSG):
    a = g.a
    sg_ = V.get(); sc0 = V.get(); t = V.get()
    a(f"v_lshlrev_b32 v{t}, 30, v{V_L31}")
    a(f"v_and_b32 v{t}, 0x80000000, v{t}")
    a(f"v_or_b32 v{sg_}, 0x3f800000, v{t}")
    a(f"v_cmp_gt_u32 vcc, 2, v{V_L31}")
    a(f"s_cmp_eq_u32 s{sSG}, 0")
    a(f"s_cselect_b64 s[26:27], vcc, 0")
    a(f"v_mov_b32 v{sc0}, {fhex(1/16)}")
    a(f"v_mov_b32 v{t}, {fhex(1/16/math.sqrt(2))}")
    a(f"v_cndmask_b32 v{sc0}, v{sc0}, v{t}, s[26:27]")
    return sg_, sc0

def unit_rows_combine(g, V, acc, sSG):
    a = g.a
    sg_, sc0 = lane_sign_scale(g, V, sSG)
    for u in range(2):
        for r in range(16):
            a(f"v_fma_f32 v{acc+u*16+r}, v{acc+32+u*16+r}, v{sg_}, v{acc+u*16+r}")
        for r in range(16):
            if u == 0: a(f"v_mul_f32 v{acc+r}, v{acc+r}, v{sc0}")
            else: a(f"v_mul_f32 v{acc+16+r}, {fhex(1/16)}, v{acc+16+r}")

def unitX_epi(g, V, acc, sRT, sSG):
    a = g.a
    unit_rows_combine(g, V, acc, sSG)
    val = acc
    if getattr(g, 'finex', False): g.stamp("x_comb")
    sq = acc + 32; tmp = acc + 48
    msk = V.get(); pk = V.get(16); wad = V.get(); rad = V.get(); o = V.get(16); t = V.get()
    a(f"v_cmp_eq_u32 vcc, 0, v{V_L31}")
    a(f"s_cmp_eq_u32 s{sSG}, 0")
    a(f"s_cselect_b64 s[26:27], vcc, 0")
    a(f"v_cndmask_b32 v{msk}, 1.0, 0, s[26:27]")
    for u in range(2):
        for j in range(8): a(f"v_cvt_pk_bf16_f32 v{pk+u*8+j}, v{val+u*16+2*j}, v{val+u*16+2*j+1}")
    a(f"s_mul_i32 s25, s{S_W}, 6144")
    a(f"s_add_u32 s25, s25, {P1_OT}")
    a(f"v_mul_u32_u24 v{wad}, 80, v{V_L31}")
    a(f"v_lshl_add_u32 v{wad}, v{V_HH}, 3, v{wad}")
    a(f"v_add_u32 v{wad}, s25, v{wad}")
    for u in range(2):
        for gq in range(4):
            a(f"ds_write_b64 v{wad}, {vr(pk+u*8+2*gq,2)} offset:{u*32*80 + gq*16}")
    a(f"v_lshrrev_b32 v{t}, 2, v{V_LANE}")
    a(f"v_mul_u32_u24 v{rad}, 80, v{t}")
    a(f"v_and_b32 v{t}, 3, v{V_LANE}")
    a(f"v_lshl_add_u32 v{rad}, v{t}, 4, v{rad}")
    a(f"v_add_u32 v{rad}, s25, v{rad}")
    for r in range(16):
        a(f"v_mul_f32 v{tmp+r}, v{val+r}, v{msk}")
        a(f"v_mul_f32 v{sq+r}, v{val+16+r}, v{val+16+r}")
    for r in range(16): a(f"v_fmac_f32 v{sq+r}, v{tmp+r}, v{tmp+r}")
    if getattr(g, 'finex', False): g.stamp("x_sq")
    a("s_waitcnt lgkmcnt(0)")
    for n in range(4): a(f"ds_read_b128 {vr(o+4*n,4)}, v{rad} offset:{n*16*80}")
    srd(a, 8, P_WS, XP[0], XP_SZ)
    a(f"v_lshlrev_b32 v{t}, 4, v{V_LANE}")
    a(f"s_lshl_b32 s24, s{sRT}, 16")
    a(f"s_lshl_b32 s26, s{S_W}, 15")
    a(f"s_add_u32 s24, s24, s26")
    a(f"s_lshl_b32 s26, s{sSG}, 12")
    a(f"s_add_u32 s24, s24, s26")
    for n in range(4):
        a(f"s_waitcnt lgkmcnt({3-n})")
        a(f"buffer_store_dwordx4 {vr(o+4*n,4)}, v{t}, s[8:11], s24 offen offset:{n*1024}{g.st}")
    if getattr(g, 'finex', False): g.stamp("x_st")
    sum32(g, [sq+i for i in range(16)], [tmp+i for i in range(16)])
    if getattr(g, 'finex', False): g.stamp("x_sum")
    a(f"v_lshlrev_b32 v{wad}, 4, v{V_HH}")
    a(f"s_add_u32 s25, s25, 5376")
    a(f"v_add_u32 v{wad}, s25, v{wad}")
    a(f"s_mov_b32 s26, 1"); a(f"s_mov_b32 s27, 1")
    a(f"s_mov_b64 exec, s[26:27]")
    for gq in range(4): a(f"ds_write_b128 v{wad}, {vr(sq+4*gq,4)} offset:{gq*32}")
    a(f"s_mov_b64 exec, -1")
    a(f"v_lshlrev_b32 v{t}, 4, v{V_LANE}")
    a(f"v_add_u32 v{rad}, s25, v{t}")
    a("s_waitcnt lgkmcnt(0)")
    a(f"s_mov_b64 exec, 0xff")
    a(f"ds_read_b128 {vr(o,4)}, v{rad}")
    srd(a, 12, P_WS, SS[0], SS_SZ)
    a(f"s_lshl_b32 s24, s{sSG}, 13")
    a(f"s_lshl_b32 s26, s{sRT}, 8")
    a(f"s_add_u32 s24, s24, s26")
    a(f"s_lshl_b32 s26, s{S_W}, 7")
    a(f"s_add_u32 s24, s24, s26")
    a("s_waitcnt lgkmcnt(0)")
    a(f"buffer_store_dwordx4 {vr(o,4)}, v{t}, s[12:15], s24 offen{g.st}")
    a(f"s_mov_b64 exec, -1")

def unitD_epi(g, V, acc, sFU, sSG):
    a = g.a
    unit_rows_combine(g, V, acc, sSG)
    pk = acc + 32; t = V.get()
    for u in range(2):
        for j in range(8): a(f"v_cvt_pk_bf16_f32 v{pk+u*8+j}, v{acc+u*16+2*j}, v{acc+u*16+2*j+1}")
    srd(a, 8, P_WS, WDP, WDP_SZ)
    a(f"v_lshlrev_b32 v{t}, 4, v{V_LANE}")
    a(f"s_mul_i32 s24, s{sSG}, {2*86*1024}")
    a(f"s_lshl_b32 s25, s{sFU}, 11")
    a(f"s_add_u32 s24, s24, s25")
    for u in range(2):
        a(f"s_add_u32 s25, s24, {u*86*1024}")
        for f in range(2):
            a(f"buffer_store_dwordx4 {vr(pk+u*8+4*f,4)}, v{t}, s[8:11], s25 offen offset:{f*1024}{g.st}")

def unitW_issue(g, V, sNT, s_stg):
    a = g.a
    vo = V.get(); t = V.get()
    a(f"s_and_b32 s49, s{sNT}, 1")
    a(f"s_cmp_eq_u32 s49, 0")
    a(f"s_cselect_b32 s56, s{P_WG}, s{P_WU}")
    a(f"s_cselect_b32 s57, s{P_WG+1}, s{P_WU+1}")
    a(f"s_mov_b32 s58, {hex(512*1376*2)}")
    a(f"s_mov_b32 s59, 0x00020000")
    a(f"v_lshrrev_b32 v{t}, 2, v{V_LANE}")
    a(f"v_mul_u32_u24 v{vo}, 2752, v{t}")
    a(f"v_and_b32 v{t}, 3, v{V_LANE}")
    a(f"v_lshl_add_u32 v{vo}, v{t}, 4, v{vo}")
    a(f"s_lshr_b32 s50, s{sNT}, 1")
    a(f"s_lshl_b32 s50, s50, 6")
    order = list(range(0, 4)) + list(range(16, 20)) + list(range(4, 8)) + list(range(20, 24)) + list(range(8, 12)) + list(range(24, 28)) + list(range(12, 16)) + list(range(28, 32))
    for m in order:
        a(f"s_add_u32 m0, s{s_stg}, {m*1024}")
        a(f"s_add_u32 s49, s50, {m*16*2752}")
        a(f"buffer_load_dwordx4 v{vo}, s[56:59], s49 offen lds")

def unitW_main(g, V, acc, s_stg):
    a = g.a
    m = V.mark()
    NR = 8
    fr = V.get(4*NR); ad = V.get(); t = V.get()
    a(f"v_and_b32 v{t}, 15, v{V_LANE}")
    a(f"v_lshrrev_b32 v{ad}, 2, v{t}")
    a(f"v_lshl_add_u32 v{ad}, v{V_HH}, 3, v{ad}")
    a(f"v_lshlrev_b32 v{ad}, 6, v{ad}")
    a(f"v_and_b32 v{t}, 3, v{t}")
    a(f"v_lshl_add_u32 v{ad}, v{t}, 3, v{ad}")
    a(f"v_lshrrev_b32 v{t}, 4, v{V_LANE}")
    a(f"v_and_b32 v{t}, 1, v{t}")
    a(f"v_lshl_add_u32 v{ad}, v{t}, 5, v{ad}")
    a(f"v_add_u32 v{ad}, s{s_stg}, v{ad}")
    for q in range(4):
        a(f"s_waitcnt vmcnt({24 - 8*q})")
        seq = [(ks, hf) for ks in range(4*q, 4*q+4) for hf in range(2)]
        for i, (ks, hf) in enumerate(seq):
            for rd in range(2):
                a(f"ds_read_b64_tr_b16 {vr(fr + i*4 + 2*rd, 2)}, v{ad} offset:{(ks + 16*hf)*1024 + rd*256}")
        for i, (ks, hf) in enumerate(seq):
            a(f"s_waitcnt lgkmcnt({2*(7-i)})")
            for u in range(2):
                d = acc + (hf*2 + u)*16
                c = "0" if ks == 0 else vr(d, 16)
                a(f"{M32} {vr(d,16)}, {vr(aF(u,ks),4,'a')}, {vr(fr + i*4, 4)}, {c}")
    V.release(m)

def unitW_epi(g, V, acc, sNT, sSG):
    a = g.a
    s0 = V.get(); s1 = V.get(); t = V.get()
    for u in range(2):
        for r in range(16):
            hi = acc + 32 + u*16 + r
            if (r >> 1) & 1: a(f"v_sub_f32 v{acc+u*16+r}, v{acc+u*16+r}, v{hi}")
            else: a(f"v_add_f32 v{acc+u*16+r}, v{acc+u*16+r}, v{hi}")
    a(f"v_mov_b32 v{s0}, {fhex(1/16)}")
    a(f"v_mov_b32 v{s1}, {fhex(1/16)}")
    a(f"v_cmp_eq_u32 vcc, 0, v{V_HH}")
    a(f"s_cmp_eq_u32 s{sSG}, 0")
    a(f"s_cselect_b64 s[26:27], vcc, 0")
    a(f"v_mov_b32 v{t}, 0")
    a(f"v_cndmask_b32 v{s0}, v{s0}, v{t}, s[26:27]")
    a(f"v_mov_b32 v{t}, {fhex(1/16/math.sqrt(2))}")
    a(f"v_cndmask_b32 v{s1}, v{s1}, v{t}, s[26:27]")
    a(f"v_mul_f32 v{acc}, v{acc}, v{s0}")
    a(f"v_mul_f32 v{acc+1}, v{acc+1}, v{s1}")
    for r in range(2, 32): a(f"v_mul_f32 v{acc+r}, {fhex(1/16)}, v{acc+r}")
    pk = acc + 32
    for j in range(16): a(f"v_cvt_pk_bf16_f32 v{pk+j}, v{acc+2*j}, v{acc+2*j+1}")
    srd(a, 8, P_WS, WGU, WGU_SZ)
    a(f"v_lshlrev_b32 v{t}, 4, v{V_LANE}")
    a(f"s_lshl_b32 s24, s{sNT}, 15")
    a(f"s_lshl_b32 s25, s{sSG}, 12")
    a(f"s_add_u32 s24, s24, s25")
    for n in range(4):
        a(f"buffer_store_dwordx4 {vr(pk+4*n,4)}, v{t}, s[8:11], s24 offen offset:{n*1024}{g.st}")

def arrive_wave(g, b, vt, younger=0):
    a = g.a
    a(f"s_waitcnt vmcnt({younger})")
    srd(a, 4, P_WS, SYNC, SYNC_SZ)
    a(f"v_lshlrev_b32 v{vt}, 3, v{V_LANE}")
    a(f"v_add_u32 v{vt}, s{S_X}, v{vt}")
    a(f"v_lshlrev_b32 v{vt}, 7, v{vt}")
    a(f"v_mov_b32 v{vt+1}, 1")
    a(f"s_mov_b64 exec, 0xffff")
    for bb in (b if isinstance(b, (list, tuple)) else [b]):
        a(f"buffer_atomic_add v{vt+1}, v{vt}, s[4:7], 0 offen offset:{4*bb} sc1")
    a(f"s_mov_b64 exec, -1")

def dbg_ready(g, vd, vt):
    a = g.a
    Lok = g.lab("dbgok")
    a(f"v_readfirstlane_b32 s24, v{vd}")
    a(f"s_cmp_ge_u32 s24, {NINIT}")
    a(f"s_cbranch_scc1 {Lok}")
    srd(a, 4, P_DBG, 0, 256)
    a(f"v_mov_b32 v{vt}, 0")
    poll(g, 4, vt, vt + 1, 1, NINIT)
    a.label(Lok)

def job4w_issue(g, V, q):
    a = g.a
    wt = V.get(8); wti = V.get(8)
    for n in range(8):
        td, r = n >> 2, n & 3
        a(f"s_add_u32 s49, s50, {514*64*(16*td + r + 4*q)}")
        a(f"buffer_load_ushort v{wt+n}, v{g.j4vo}, s[52:55], s49 offen")
        a(f"buffer_load_ushort v{wti+n}, v{g.j4vo}, s[56:59], s49 offen")
    return wt, wti


def touch_rows(g, ptr, s_rowbase, row_shift, sSG, dst):
    a = g.a
    a(f"v_lshrrev_b32 v4, 3, v{V_L31}")
    a(f"s_lshl_b32 s24, s{sSG}, 2")
    a(f"v_add_u32 v4, s24, v4")
    a(f"v_lshlrev_b32 v4, {row_shift}, v4")
    a(f"v_and_b32 v5, 7, v{V_LANE}")
    a(f"v_lshl_add_u32 v4, v5, 7, v4")
    a(f"v_add_u32 v4, s{s_rowbase}, v4")
    a(f"global_load_dword v{dst}, v4, s[{ptr}:{ptr+1}]")

def touch_cols(g, sNT, sSG, dst):
    a = g.a
    a(f"s_and_b32 s24, s{sNT}, 1")
    a(f"s_cmp_eq_u32 s24, 0")
    a(f"s_cselect_b32 s28, s{P_WG}, s{P_WU}")
    a(f"s_cselect_b32 s29, s{P_WG+1}, s{P_WU+1}")
    a(f"s_lshl_b32 s24, s{sSG}, 6")
    a(f"v_add_u32 v4, s24, v{V_LANE}")
    a(f"v_mul_u32_u24 v4, 2752, v4")
    a(f"s_lshr_b32 s24, s{sNT}, 1")
    a(f"s_lshl_b32 s24, s24, 6")
    a(f"v_add_u32 v4, s24, v4")
    a(f"global_load_dword v{dst}, v4, s[28:29]")

P1_FLAG = 156160
def lds_flag_wait(g, vt):
    a = g.a
    L = g.lab("lfw"); Ld = g.lab("lfwd")
    a(f"v_mov_b32 v{vt}, {P1_FLAG}")
    a(f"s_mov_b32 s31, 0")
    a.label(L)
    a(f"ds_read_b32 v{vt+1}, v{vt}")
    a(f"s_add_u32 s31, s31, 1")
    a("s_waitcnt lgkmcnt(0)")
    a(f"v_readfirstlane_b32 s24, v{vt+1}")
    a(f"s_cmp_eq_u32 s24, 1")
    a(f"s_cbranch_scc1 {Ld}")
    a(f"s_cmp_lt_u32 s31, {1 << 24}")
    a(f"s_cbranch_scc1 {L}")
    a.label(Ld)

def p1_v2(g, V, VT, stampf, fft_items=None):
    a = g.a
    sRT, sSG, sU1, sU2, sB, sSTG, sEX = 44, 45, 46, 62, 47, 48, 91
    fs = (lambda n: stampf(n)) if getattr(g, 'finew', False) else (lambda n: None)
    a(f"s_lshr_b32 s24, s{S_L}, 3")
    a(f"s_lshl_b32 s{sRT}, s{S_X}, 2")
    a(f"s_add_u32 s{sRT}, s{sRT}, s24")
    a(f"s_and_b32 s{sSG}, s{S_L}, 7")
    acc = V.get(64); VD = V.get(); VZ = V.get(); TD = V.get(2); XVO = V.get()
    g.j4vo = V.get(); kcol = V.get()
    mw = V.mark()
    LW = g.lab("roleW"); LJ = g.lab("rolej")
    a(f"v_mov_b32 v{VZ}, {P1_FLAG}")
    a(f"v_mov_b32 v{VD}, 0")
    a(f"ds_write_b32 v{VZ}, v{VD}")
    a(f"s_lshl_b32 s{sU2}, s{sRT}, 1")
    a(f"s_add_u32 s{sU2}, s{sU2}, s{S_W}")
    a(f"s_cmp_ge_u32 s{S_W}, 2")
    a(f"s_cbranch_scc1 {LW}")
    a(f"s_lshl_b32 s{sB}, s{sRT}, 10")
    a(f"s_lshl_b32 s24, s{S_W}, 20")
    a(f"s_add_u32 s{sB}, s{sB}, s24")
    touch_rows(g, P_X, sB, 15, sSG, TD)
    rows_issue(g, V, P_X, 2048*512*2, sB, 15, part=0, vo=XVO)
    if fft_items: a.items.extend(fft_items)
    a(f"s_branch {LJ}")
    a.label(LW)
    a(f"s_lshr_b32 s24, s{sRT}, 1")
    a(f"s_lshl_b32 s24, s24, 1")
    a(f"s_add_u32 s24, s24, s{S_W}")
    a(f"s_sub_u32 s24, s24, 2")
    a(f"s_lshl_b32 s24, s24, 1")
    a(f"s_and_b32 s25, s{sRT}, 1")
    a(f"s_add_u32 s{sU1}, s24, s25")
    touch_cols(g, sU1, sSG, TD)
    a(f"s_sub_u32 s{sB}, s{sU2}, 2")
    Lt = g.lab("t2d"); Lt2 = g.lab("t2e")
    a(f"s_cmp_ge_u32 s{sB}, 22"); a(f"s_cbranch_scc1 {Lt}")
    a(f"s_add_u32 s{sSTG}, s{sB}, 64")
    touch_cols(g, sSTG, sSG, TD + 1)
    a(f"s_branch {Lt2}")
    a.label(Lt)
    a(f"s_sub_u32 s25, s{sB}, 22")
    a(f"s_lshl_b32 s25, s25, 15")
    touch_rows(g, P_WD, 25, 10, sSG, TD + 1)
    a.label(Lt2)
    p1_genF(g, V, sSG)
    a.label(LJ)
    stampf("p1i")
    a("s_waitcnt lgkmcnt(0)")
    a("s_barrier")
    p1_readF(g, V)
    a("s_barrier")
    stampf("p1F")
    Lnd = g.lab("nodbg")
    a(f"s_cmp_lg_u32 s{S_W}, 0"); a(f"s_cbranch_scc1 {Lnd}")
    dbg_load(g, VD, VZ)
    a.label(Lnd)
    LW2 = g.lab("roleW2"); LJ2 = g.lab("rolej2")
    a(f"s_cmp_ge_u32 s{S_W}, 2")
    a(f"s_cbranch_scc1 {LW2}")
    mx = V.mark()
    V.release(mw)
    a(f"s_lshl_b32 s{sB}, s{sRT}, 10")
    a(f"s_lshl_b32 s24, s{S_W}, 20")
    a(f"s_add_u32 s{sB}, s{sB}, s24")
    rows_issue(g, V, P_X, 2048*512*2, sB, 15, part=1, vo=XVO)
    m = V.mark()
    unit_rows_main(g, V, acc)
    Lnd = g.lab("nodbg2")
    a(f"s_cmp_lg_u32 s{S_W}, 0"); a(f"s_cbranch_scc1 {Lnd}")
    dbg_ready(g, VD, VT)
    a(f"v_mov_b32 v{VZ}, {P1_FLAG}")
    a(f"v_mov_b32 v{VD}, 1")
    a(f"ds_write_b32 v{VZ}, v{VD}")
    a.label(Lnd)
    stampf("p1Xm")
    unitX_epi(g, V, acc, sRT, sSG)
    V.release(m)
    lds_flag_wait(g, VT)
    LD = g.lab("r2D"); LE = g.lab("r2E")
    a(f"s_cmp_ge_u32 s{sU2}, 22"); a(f"s_cbranch_scc1 {LD}")
    a(f"s_add_u32 s{sU1}, s{sU2}, 64")
    a(f"s_mul_i32 s{sSTG}, s{S_W}, 98304")
    it_, _ = capture(g, lambda: unitW_issue(g, V, sU1, sSTG)); gr = split_groups(it_, is_vmem)
    for grp in gr[:12]: a.items.extend(grp)
    arrive_wave(g, 0, VT, younger=12)
    for grp in gr[12:]: a.items.extend(grp)
    unitW_main(g, V, acc, sSTG)
    unitW_epi(g, V, acc, sU1, sSG)
    V.release(m)
    a(f"s_branch {LE}")
    a.label(LD)
    a(f"s_sub_u32 s{sU1}, s{sU2}, 22")
    a(f"s_lshl_b32 s{sB}, s{sU1}, 15")
    it_, _ = capture(g, lambda: rows_issue(g, V, P_WD, 1376*512*2, sB, 10)); gr = split_groups(it_, is_vmem)
    for grp in gr[:12]: a.items.extend(grp)
    arrive_wave(g, 0, VT, younger=12)
    stampf("p1X")
    for grp in gr[12:]: a.items.extend(grp)
    unit_rows_main(g, V, acc)
    fs("d_mm")
    unitD_epi(g, V, acc, sU1, sSG)
    V.release(m)
    a.label(LE)
    a(f"s_branch {LJ2}")
    a.label(LW2)
    V.n = mx
    a(f"s_mov_b32 s{sEX}, 0")
    LX0 = g.lab("r2x0")
    a(f"s_cmp_lg_u32 s{sRT}, 0"); a(f"s_cbranch_scc1 {LX0}")
    a(f"s_cmp_lg_u32 s{S_W}, 2"); a(f"s_cbranch_scc1 {LX0}")
    a(f"s_mov_b32 s{sEX}, 1")
    a(f"s_mov_b32 s{sB}, {42 << 15}")
    mm_ = V.mark()
    rows_issue(g, V, P_WD, 1376*512*2, sB, 10)
    V.release(mm_)
    a.label(LX0)
    srd(a, 52, P_WR, 0, 2048 * 257 * 2)
    srd(a, 56, P_WI, 0, 2048 * 257 * 2)
    a(f"s_and_b32 s49, s2, 3")
    a(f"s_lshl_b32 s49, s49, 6")
    a(f"s_sub_u32 s51, s{S_W}, 2")
    a(f"s_lshl_b32 s51, s51, 5")
    a(f"s_add_u32 s49, s49, s51")
    a(f"v_add_u32 v{kcol}, s49, v{V_L31}")
    a(f"v_cmp_eq_u32 vcc, 0, v{kcol}")
    a(f"v_mov_b32 v{g.j4vo}, 256")
    a(f"v_cndmask_b32 v{g.j4vo}, v{kcol}, v{g.j4vo}, vcc")
    a(f"v_lshlrev_b32 v{g.j4vo}, 1, v{g.j4vo}")
    a(f"v_mul_u32_u24 v{kcol}, {514*64*8}, v{V_HH}")
    a(f"v_add_u32 v{g.j4vo}, v{g.j4vo}, v{kcol}")
    a(f"s_lshr_b32 s50, s2, 2")
    a(f"s_mul_i32 s50, s50, 514")
    wq = [job4w_issue(g, V, 0), job4w_issue(g, V, 1)]
    a(f"s_sub_u32 s24, s{S_W}, 1")
    a(f"s_lshl_b32 s{sSTG}, s24, 15")
    itd, _ = capture(g, lambda: unitW_issue(g, V, sU1, sSTG))
    gd = split_groups(itd, is_vmem)
    for grp in gd[:16]: a.items.extend(grp)
    m = V.mark()
    a("s_waitcnt vmcnt(16)")
    wad = V.get(); rad = V.get(); vo = V.get(); ob = V.get(16)
    a(f"s_mul_i32 s25, s{S_W}, 6144")
    a(f"s_add_u32 s25, s25, {P1_OT}")
    a(f"v_mul_u32_u24 v{wad}, 144, v{V_L31}")
    a(f"v_lshl_add_u32 v{wad}, v{V_HH}, 6, v{wad}")
    a(f"v_add_u32 v{wad}, s25, v{wad}")
    for qq in range(2):
        wt, wti = wq[qq]
        for n in range(8): a(f"v_lshl_or_b32 v{wt+n}, v{wti+n}, 16, v{wt+n}")
        a(f"ds_write_b128 v{wad}, {vr(wt,4)} offset:{qq*32}")
        a(f"ds_write_b128 v{wad}, {vr(wt+4,4)} offset:{qq*32+16}")
    a(f"v_lshrrev_b32 v{vo}, 3, v{V_LANE}")
    a(f"v_mul_u32_u24 v{rad}, 144, v{vo}")
    a(f"v_lshlrev_b32 v{vo}, 13, v{vo}")
    a(f"v_and_b32 v{wad}, 7, v{V_LANE}")
    a(f"v_lshlrev_b32 v{wad}, 4, v{wad}")
    a(f"v_add_u32 v{rad}, v{rad}, v{wad}")
    a(f"v_add_u32 v{rad}, s25, v{rad}")
    a(f"v_add_u32 v{vo}, v{vo}, v{wad}")
    a("s_waitcnt lgkmcnt(0)")
    for n in range(4): a(f"ds_read_b128 {vr(ob+4*n,4)}, v{rad} offset:{n*8*144}")
    srd(a, 12, P_WS, WT, WT_SZ)
    a(f"s_lshr_b32 s24, s2, 2")
    a(f"s_lshl_b32 s24, s24, 7")
    a(f"s_and_b32 s26, s2, 3")
    a(f"s_lshl_b32 s26, s26, 6")
    a(f"s_sub_u32 s27, s{S_W}, 2")
    a(f"s_lshl_b32 s27, s27, 5")
    a(f"s_add_u32 s26, s26, s27")
    a(f"s_lshl_b32 s26, s26, 13")
    a(f"s_add_u32 s24, s24, s26")
    for n in range(4):
        a(f"s_waitcnt lgkmcnt({3-n})")
        a(f"s_add_u32 s26, s24, {n*8*8192}")
        a(f"buffer_store_dwordx4 {vr(ob+4*n,4)}, v{vo}, s[12:15], s26 offen{g.st}")
    fs("w_wt")
    for grp in gd[16:]: a.items.extend(grp)
    lds_flag_wait(g, VT)
    arrive_wave(g, 0, VT, younger=16)
    fs("w_arr")
    V.release(mw)
    m = V.mark()
    it_, _ = capture(g, lambda: unitW_main(g, V, acc, sSTG)); bump_vm(it_, 1)
    a.items.extend(it_)
    fs("w_mm")
    unitW_epi(g, V, acc, sU1, sSG)
    V.release(m)
    LX = g.lab("r2x")
    a(f"s_cmp_eq_u32 s{sEX}, 0"); a(f"s_cbranch_scc1 {LX}")
    a(f"s_mov_b32 s{sU1}, 42")
    a("s_waitcnt vmcnt(0)")
    unit_rows_main(g, V, acc)
    unitD_epi(g, V, acc, sU1, sSG)
    V.release(m)
    a.label(LX)
    if fft_items: a.items.extend(fft_items)
    a.label(LJ2)
    arrive_wave(g, 1, VT)
    stampf("jobs")
    a("s_barrier")


def h_poison(g, V):
    a = g.a
    m = V.mark()
    p = V.get(4); l16 = V.get()
    for j in range(4): a(f"v_mov_b32 v{p+j}, -1")
    a(f"v_lshlrev_b32 v{l16}, 4, v{V_LANE}")
    a(f"s_mul_i32 s24, s{S_RT}, {3*86*1024}")
    a(f"s_lshl_b32 s25, s{S_KK}, 11")
    a(f"s_add_u32 s24, s24, s25")
    a(f"s_cmp_ge_u32 s{S_KK}, 43")
    a(f"s_cselect_b32 s25, 0x7f000000, 0")
    a(f"s_add_u32 s24, s24, s25")
    for i in range(2):
        srd(a, 12, P_WS, H[i], H_SZ)
        for t in range(3):
            a(f"s_add_u32 s25, s24, {t*86*1024}")
            for f in range(2):
                a(f"buffer_store_dwordx4 {vr(p,4)}, v{l16}, s[12:15], s25 offen offset:{f*1024}{g.st}")
    V.release(m)


def x2_poison(g, V):
    a = g.a
    m = V.mark()
    p = V.get(4); vo = V.get()
    for j in range(4): a(f"v_mov_b32 v{p+j}, -1")
    srd(a, 12, P_WS, XP[2], XP_SZ)
    a(f"v_lshlrev_b32 v{vo}, 4, v0")
    a(f"s_lshl_b32 s24, s{S_SG}, 12")
    a(f"s_lshl_b32 s25, s{S_R64}, 16")
    a(f"s_add_u32 s24, s24, s25")
    a(f"buffer_store_dwordx4 {vr(p,4)}, v{vo}, s[12:15], s24 offen{g.st}")
    a(f"s_add_u32 s24, s24, 32768")
    a(f"buffer_store_dwordx4 {vr(p,4)}, v{vo}, s[12:15], s24 offen{g.st}")
    srd(a, 12, P_WS, SS[1], SS_SZ)
    a(f"s_lshl_b32 s24, s{S_SG}, 13")
    a(f"s_lshl_b32 s25, s{S_R64}, 8")
    a(f"s_add_u32 s24, s24, s25")
    a(f"v_cmp_gt_u32 vcc, 16, v0")
    a(f"s_and_saveexec_b64 s[26:27], vcc")
    Ls = g.lab("ssp")
    a(f"s_cbranch_execz {Ls}")
    a(f"buffer_store_dwordx4 {vr(p,4)}, v{vo}, s[12:15], s24 offen{g.st}")
    a.label(Ls)
    a(f"s_mov_b64 exec, s[26:27]")
    V.release(m)


def wait2(g, b1, t1, b2, t2, vt):
    a = g.a
    L = g.lab("wt2")
    a(f"s_cmp_lg_u32 s{S_W}, 0")
    a(f"s_cbranch_scc1 {L}")
    srd(a, 4, P_WS, SYNC, SYNC_SZ)
    a(f"s_and_b32 s24, s{S_L}, 15")
    a(f"s_lshl_b32 s24, s24, 3")
    a(f"v_and_b32 v{vt}, 7, v{V_LANE}")
    a(f"v_add_u32 v{vt}, s24, v{vt}")
    a(f"v_lshlrev_b32 v{vt}, 7, v{vt}")
    a(f"v_cmp_gt_u32 vcc, 8, v{V_LANE}")
    a(f"v_mov_b32 v{vt-1}, {4*b2}")
    a(f"v_mov_b32 v{vt+1}, {4*b1}")
    a(f"v_cndmask_b32 v{vt-1}, v{vt-1}, v{vt+1}, vcc")
    a(f"v_add_u32 v{vt}, v{vt}, v{vt-1}")
    a(f"v_mov_b32 v{vt-1}, {t2}")
    a(f"v_mov_b32 v{vt+1}, {t1}")
    a(f"v_cndmask_b32 v{vt-1}, v{vt-1}, v{vt+1}, vcc")
    Lp = g.lab("poll"); Ld = g.lab("polld")
    a(f"s_mov_b64 exec, 0xffff")
    a(f"s_mov_b32 s31, 0")
    a.label(Lp)
    a(f"buffer_load_dword v{vt+1}, v{vt}, s[4:7], 0 offen sc0 sc1")
    a(f"s_add_u32 s31, s31, 1")
    a("s_waitcnt vmcnt(0)")
    a(f"v_cmp_le_u32 vcc, v{vt-1}, v{vt+1}")
    a(f"s_cmp_eq_u64 vcc, exec")
    a(f"s_cbranch_scc1 {Ld}")
    a(f"s_cmp_lt_u32 s31, {SPIN_MAX}")
    a(f"s_cbranch_scc1 {Lp}")
    a.label(Ld)
    a("s_mov_b64 exec, -1")
    a.label(L)
    a("s_barrier")
```

```python
import sys
from mega import *
prof = "prof" in sys.argv
upto = 99
for x in sys.argv[1:]:
    if x.startswith("upto="): upto = int(x[5:])

g = G(pers=True, prof=prof)
g.cyc = "cyc" in sys.argv
g.finex = "finex" in sys.argv
g.finew = "finew" in sys.argv
g.dpoll = "dpoll" in sys.argv
g.dp2 = "dp2" in sys.argv
g.fine = "fine" in sys.argv
g.fineg4 = "fineg4" in sys.argv
a = g.a
name = NAME + "_kernel"
a("s_cmp_ge_u32 s2, 256")
a("s_cbranch_scc1 L_end")
g.prologue()
g.stamp("start")
sync_init(g)
if "nopf" not in sys.argv: code_prefetch(g, name, "L_end")
VT = 250 if not prof else 250
g.vlimit = 249
hi = 0
KS2 = 0
for x in sys.argv[1:]:
    if x.startswith('ks2='): KS2 = int(x[4:])
def done(V):
    global hi
    hi = max(hi, V.hi)

V = g.V()
itfft, st_fft0 = capture(g, lambda: fft_pre(g, V))
mfft = V.mark()
p1_v2(g, V, VT, g.stamp, fft_items=itfft)
done(V)
V.release(mfft)
V_fft0 = V
def fft_phase(i, bwait):
    V = g.V() if i == 1 else V_fft0
    if i == 1:
        job5(g, V); job6(g, V, 65536)
        arrive(g, 5, VT)
    itw, nw = capture(g, lambda: g4_weights(g, V))
    gw = split_groups(itw, is_vmem)
    nf = NFFT if i == 1 else NFFT0
    side = gw[:nf]; g.gw_rest = gw[nf:]
    st = fft_pre(g, V) if i == 1 else st_fft0
    if i == 1: fft_wt_load(g, V, st)
    g.stamp(f"fftpre{i}")
    if i == 0:
        if NFFT0: wait2(g, 0, 128, 1, 128, VT)
        else: wait(g, 0, VT, 128)
    elif not g.dp2: wait(g, bwait, VT)
    g.stamp(f"w_fft{i}")
    if i == 0: fft_wt_load(g, V, st)
    fft_main(g, V, st, XP[2*i], SS[i], XP[2*i+1], side=side, dpoll=(i == 1 and g.dp2))
    g.stamp(f"fft{i}")
    done(V)
    return V
def g7_wait_loads(g):
    g.a('s_waitcnt vmcnt(0)')
def g45_phase(i, bwait, V):
    final = i == 1
    Lskip = g.lab("g4skip"); Ljoin = g.lab("g4join")
    if i == 0 and not NFFT0:
        arrive(g, bwait, VT)
        wait(g, 1, VT, 128)
        for grp in g.gw_rest: a.items.extend(grp)
    else:
        for grp in g.gw_rest[:NEARLY]: a.items.extend(grp)
        arrive(g, bwait, VT, younger=min(NEARLY, len(g.gw_rest)))
        for grp in g.gw_rest[NEARLY:]: a.items.extend(grp)
    V = g.V()
    VO5 = V.get()
    m7 = V.mark()
    st7 = g7_setup(g, V) if final else None
    m45 = V.mark()
    a(f"s_cmp_eq_u32 s{S_IDLE}, 1")
    a(f"s_cbranch_scc1 {Lskip}")
    st = g4_pre(g, V)
    side2 = g5w_setup(g, VO5, final)
    g.stamp(f"g4w{i}")
    if i == 1: wait2(g, bwait, 32, 5, 32, VT)
    else: wait(g, bwait, VT)
    g.stamp(f"w_g4{i}")
    Lfull = g.lab("g7full")
    g4_main(g, V, st, XP[2*i+1], H[i], side2=side2[:KS2], side2_all=side2[:KS2],
            side1=st7['gf'] if final else None, side2b=st7['dm'] if final else None)
    g.stamp(f"g4_{i}")
    for grp in side2[KS2:KS2+8]:
        for x in grp: a(x)
    if not g.dpoll: arrive_row(g, i, VT, younger=16)
    for grp in side2[KS2+8:]:
        for x in grp: a(x)
    if final:
        a(f"s_cmp_lg_u32 s{S_RT}, 21")
        a(f"s_cbranch_scc1 {Ljoin}")
        for grp in side2[:KS2]:
            for x in grp: a(x)
        for grp in st7['gf'] + st7['dm']:
            for x in grp: a(x)
    elif KS2:
        a(f"s_cmp_lg_u32 s{S_RT}, 21")
        a(f"s_cbranch_scc1 {Ljoin}")
        for grp in side2[:KS2]:
            for x in grp: a(x)
    a(f"s_branch {Ljoin}")
    a.label(Lskip)
    wait2(g, bwait, 32, 5 if i == 1 else 1, 32 if i == 1 else 128, VT)
    for grp in g5w_setup(g, VO5, final):
        for x in grp: a(x)
    if final:
        srd(a, 8, P_WS, XP[3], XP_SZ)
        for grp in st7['gf'] + st7['dm']:
            for x in grp: a(x)
    a.label(Ljoin)
    done(V)
    V.release(m45)
    if not final:
        res = g5_resid_load(g, V, XP[1])
    else:
        a("s_waitcnt vmcnt(0)") if False else None
        g7_wait_loads(g)
        g7_compute(g, V, st7)
        a("s_waitcnt lgkmcnt(0)")
        a("s_barrier")
        V.release(m7)
    g.stamp(f"g5w{i}")
    if not g.dpoll: wait_row(g, i, VT)
    g.stamp(f"w_g5{i}")
    if not final:
        g5_main(g, V, H[0], False, res, XP[2], SS[1])
        g.stamp("g5")
        if not g.dp2: arrive(g, 3, VT)
        else:
            a("s_waitcnt lgkmcnt(0)"); a("s_barrier")
    else:
        g5_main(g, V, H[1], True)
        g.stamp("g7")
    done(V)
NFFT = 16
NFFT0 = 0
NEARLY = 8
for x in sys.argv[1:]:
    if x.startswith('nfft='): NFFT = int(x[5:])
    if x.startswith('nfft0='): NFFT0 = int(x[6:])
    if x.startswith('nearly='): NEARLY = int(x[7:])
g5_map(g)
g4_map(g)
if g.dpoll:
    Vp = Alloc(240 - 8, 250); h_poison(g, Vp)
if g.dp2:
    Vp = Alloc(240 - 8, 250); x2_poison(g, Vp)
if upto >= 2: Vf = fft_phase(0, 0)
if upto >= 3: g45_phase(0, 2, Vf)
if upto >= 5: Vf = fft_phase(1, 3)
if upto >= 6: g45_phase(1, 4, Vf)
if 'dbgst' in sys.argv: g.dbg_dump(['start','p1F','jobs','w_fft0','fft0','w_g40','g4_0','w_g50','g5','w_fft1','fft1','w_g41','g4_1','w_g51','g7'])
else: g.prof_dump()
a.label("L_end")
a("s_endpgm")
hdr = open("cdna_kernels/" + NAME + ".s.ref").read().split("\n")
out = [l for l in hdr if l.startswith("; ") and "@launch" not in l and "Override" not in l and "grid=ceil" not in l][:12]
out.append(f"; @launch grid=(256,1,1) block=(256,1,1) lds={LDS_TOTAL}")
print("\n".join(out))
print('.amdgcn_target "amdgcn-amd-amdhsa--gfx950"\n.text')
print(kernel_text(name, a))
print('.section .rodata,"a"')
print(kd_text(name, 256, 256, 102))
print("vgprs", hi, "stamps", g.names, file=sys.stderr)
```

```python
from common import *

M32 = "v_mfma_f32_32x32x16_bf16"
M16 = "v_mfma_f32_16x16x32_bf16"
S_W, S_X, S_L = 20, 21, 22
V_LANE, V_L31, V_HH = 1, 2, 3
VBASE = 4
LDS_TOTAL = 160 * 1024
LDS_PROF = LDS_TOTAL - 1024

class G:
    def __init__(self, pers=False, prof=False):
        self.a = Asm(); self.pers = pers; self.prof = prof
        self.st = " sc1" if pers else ""
        self.ld = " sc1" if pers else ""
        self.uid = 0; self.names = []
        self.vlimit = 252 if prof else 256
    def lab(self, s):
        self.uid += 1; return f"L_{s}_{self.uid}"
    def V(self): return Alloc(VBASE, self.vlimit)
    def stamp(self, name):
        if not self.prof: return
        a = self.a; n = len(self.names); self.names.append(name)
        a("s_memtime s[98:99]" if getattr(self, 'cyc', False) else "s_memrealtime s[98:99]")
        a("s_waitcnt lgkmcnt(0)")
        a("v_mov_b32 v253, s98")
        a(f"ds_write_b32 v252, v253 offset:{4*n}")
        a("s_waitcnt lgkmcnt(0)")
    def qstamp(self, idx):
        return Ins(f"s_memrealtime s[{84+2*idx}:{85+2*idx}]")
    def qflush(self, names):
        a = self.a
        a("s_waitcnt lgkmcnt(0)")
        for i, n in enumerate(names):
            k = len(self.names); self.names.append(n)
            a(f"v_mov_b32 v253, s{84+2*i}")
            a(f"ds_write_b32 v252, v253 offset:{4*k}")
        a("s_waitcnt lgkmcnt(0)")
    def prologue(self):
        a = self.a
        load_ptrs(a)
        a(f"v_lshrrev_b32 v4, 6, v0")
        a(f"v_and_b32 v{V_LANE}, 63, v0")
        a(f"v_readfirstlane_b32 s{S_W}, v4")
        a(f"v_and_b32 v{V_L31}, 31, v0")
        a(f"v_lshrrev_b32 v{V_HH}, 5, v{V_LANE}")
        a(f"s_and_b32 s{S_X}, s2, 7")
        a(f"s_lshr_b32 s{S_L}, s2, 3")
        if self.prof:
            a(f"v_lshlrev_b32 v252, 8, v4")
            a(f"v_add_u32 v252, {LDS_PROF}, v252")
    def dbg_dump(self, sel):
        a = self.a
        L = self.lab("dd")
        a("s_waitcnt vmcnt(0) lgkmcnt(0)")
        a("s_cmp_lg_u32 s2, 100"); a(f"s_cbranch_scc1 {L}")
        a(f"s_cmp_lg_u32 s{S_W}, 0"); a(f"s_cbranch_scc1 {L}")
        srd(a, 8, P_DBG, 0, 256)
        for k, n in enumerate(sel):
            i = self.names.index(n)
            a(f"ds_read_b32 v6, v252 offset:{4*i}")
            a("s_waitcnt lgkmcnt(0)")
            a(f"v_mov_b32 v4, {4*(k+1)}")
            a("s_mov_b64 exec, 1")
            a("buffer_store_dword v6, v4, s[8:11], 0 offen")
            a("s_mov_b64 exec, -1")
        a.label(L)
    def prof_dump(self):
        if not self.prof: return
        a = self.a
        a("s_waitcnt vmcnt(0) lgkmcnt(0)")
        a("s_barrier")
        srd(a, 8, P_WS, PROF, 256 * 1024)
        a("v_lshlrev_b32 v4, 2, v0")
        a(f"v_add_u32 v5, {LDS_PROF}, v4")
        a("ds_read_b32 v6, v5")
        a("s_lshl_b32 s24, s2, 10")
        a("s_waitcnt lgkmcnt(0)")
        a("v_cmp_gt_u32 vcc, 0x100, v0")
        a("s_and_saveexec_b64 s[26:27], vcc")
        a("buffer_store_dword v6, v4, s[8:11], s24 offen")
        a("s_mov_b64 exec, s[26:27]")

def bump_vm(items, k):
    for i, it in enumerate(items):
        if not isinstance(it, str) and it.op == 's_waitcnt' and 'vmcnt' in it.text:
            n = int(it.text.split('vmcnt(')[1].split(')')[0])
            items[i] = Ins(f"s_waitcnt vmcnt({n+k})")

def capture(g, fn):
    old = g.a; tmp = Asm(); g.a = tmp
    r = fn()
    g.a = old
    return tmp.items, r

def merge(g, main, groups, start=0, every=None):
    n = len(main); k = len(groups)
    if every is None: every = max(1, (n - start) // (k + 1))
    gi = 0
    for i, it in enumerate(main):
        g.a.items.append(it)
        if i >= start and (i - start) % every == every - 1 and gi < k:
            g.a.items.extend(groups[gi]); gi += 1
    while gi < k:
        g.a.items.extend(groups[gi]); gi += 1

def split_groups(items, is_last):
    out = []; cur = []
    for it in items:
        cur.append(it)
        if not isinstance(it, str) and is_last(it):
            out.append(cur); cur = []
    if cur:
        if out: out[-1].extend(cur)
        else: out.append(cur)
    return out
def is_vmem(it): return it.kind == 'vmem'

def reduce_write(g, V, acc, cls, mode_perm, RED=0):
    a = g.a
    ad = V.get(3, 1); t = V.get()
    a(f"v_lshlrev_b32 v{t}, 4, v{V_LANE}")
    for c in range(1, 4):
        a(f"s_xor_b32 s24, s{S_W}, {c}")
        a(f"s_mul_i32 s24, s24, 12288")
        a(f"s_add_u32 s24, s24, {RED + (c-1)*4096}")
        a(f"v_add_u32 v{ad+c-1}, s24, v{t}")
    for c in range(1, 4):
        for k in range(4):
            r = acc(k, c) if mode_perm == 'g' else acc(c, k)
            a(f"ds_write_b128 v{ad+c-1}, {vr(r,4,cls)} offset:{k*1024}")

def reduce_read(g, V, dst, RED=0):
    a = g.a
    ad = V.get()
    a(f"s_mul_i32 s24, s{S_W}, 12288")
    a(f"s_add_u32 s24, s24, {RED}")
    a(f"v_lshlrev_b32 v{ad}, 4, v{V_LANE}")
    a(f"v_add_u32 v{ad}, s24, v{ad}")
    for c in range(3):
        for k in range(4):
            a(f"ds_read_b128 {vr(dst + c*16 + k*4, 4)}, v{ad} offset:{c*4096 + k*1024}")

def sum32(g, regs, tmp):
    a = g.a
    for sh in (8, 4, 2, 1):
        for r in regs:
            a(f"v_add_f32_dpp v{r}, v{r}, v{r} row_ror:{sh} row_mask:0xf bank_mask:0xf")
    for r, t in zip(regs, tmp): a(f"v_mov_b32 v{t}, v{r}")
    for r, t in zip(regs, tmp): a(f"v_permlane16_swap_b32 v{r}, v{t}")
    for r, t in zip(regs, tmp): a(f"v_add_f32 v{r}, v{r}, v{t}")

def epi_out(g, V, val, OT, srd_out, row_voff_fn, planes=False):
    a = g.a
    pk = V.get(8); wad = V.get(); t = V.get()
    for k in range(4):
        for j in range(2):
            a(f"v_cvt_pk_bf16_f32 v{pk+2*k+j}, v{val+4*k+2*j}, v{val+4*k+2*j+1}")
    a(f"v_mul_u32_u24 v{wad}, 144, v{V_L31}")
    a(f"v_lshl_add_u32 v{wad}, v{V_HH}, 3, v{wad}")
    a(f"s_lshl_b32 s24, s{S_W}, 4")
    a(f"s_add_u32 s24, s24, {OT}")
    a(f"v_add_u32 v{wad}, s24, v{wad}")
    for tr in range(2):
        for tc in range(2):
            k = 2 * tr + tc
            a(f"ds_write_b64 v{wad}, {vr(pk+2*k,2)} offset:{tc*32*144 + tr*64}")
    a("s_waitcnt lgkmcnt(0)")
    a("s_barrier")
    rad = V.get(); o = V.get(8)
    if planes:
        a(f"v_lshrrev_b32 v{t}, 2, v0")
        a(f"v_mul_u32_u24 v{rad}, 144, v{t}")
        a(f"v_and_b32 v{t}, 3, v0")
        a(f"v_lshl_add_u32 v{rad}, v{t}, 4, v{rad}")
        a(f"v_add_u32 v{rad}, {OT}, v{rad}")
        a(f"ds_read_b128 {vr(o,4)}, v{rad}")
        a(f"ds_read_b128 {vr(o+4,4)}, v{rad} offset:64")
    else:
        a(f"v_lshrrev_b32 v{t}, 3, v0")
        a(f"v_mul_u32_u24 v{rad}, 144, v{t}")
        a(f"v_and_b32 v{t}, 7, v0")
        a(f"v_lshl_add_u32 v{rad}, v{t}, 4, v{rad}")
        a(f"v_add_u32 v{rad}, {OT}, v{rad}")
        a(f"ds_read_b128 {vr(o,4)}, v{rad}")
        a(f"ds_read_b128 {vr(o+4,4)}, v{rad} offset:{32*144}")
    voff, soffs, flags = row_voff_fn()
    a("s_waitcnt lgkmcnt(1)")
    a(f"buffer_store_dwordx4 {vr(o,4)}, v{voff}, s[{srd_out}:{srd_out+3}], {soffs[0]} offen{flags}")
    a("s_waitcnt lgkmcnt(0)")
    a(f"buffer_store_dwordx4 {vr(o+4,4)}, v{voff}, s[{srd_out}:{srd_out+3}], {soffs[1]} offen{flags}")

def stats_out(g, V, val, sSG, s_tok0, SSoff, first_sg_mask):
    a = g.a
    sq = V.get(8); tmp = V.get(8); msk = V.get()
    a(f"v_cmp_eq_u32 vcc, 0, v{V_L31}")
    a(f"s_cmp_eq_u32 s{sSG}, 0")
    a(f"s_cselect_b64 s[26:27], vcc, 0")
    a(f"v_cndmask_b32 v{msk}, 1.0, 0, s[26:27]")
    for tr in range(2):
        for t in range(4):
            x0 = val + (2*tr)*4 + t; x1 = val + (2*tr+1)*4 + t
            a(f"v_mul_f32 v{tmp+4*tr+t}, v{x0}, v{msk}")
            a(f"v_mul_f32 v{sq+4*tr+t}, v{x1}, v{x1}")
            a(f"v_fmac_f32 v{sq+4*tr+t}, v{tmp+4*tr+t}, v{tmp+4*tr+t}")
    sum32(g, [sq+i for i in range(8)], [tmp+i for i in range(8)])
    srd(a, 12, P_WS, SSoff, SS_SZ)
    ad = V.get()
    a(f"v_lshlrev_b32 v{ad}, 4, v{V_HH}")
    a(f"s_lshl_b32 s24, s{sSG}, 13")
    a(f"s_lshl_b32 s25, s{s_tok0}, 2")
    a(f"s_add_u32 s24, s24, s25")
    a(f"s_lshl_b32 s25, s{S_W}, 5")
    a(f"s_add_u32 s24, s24, s25")
    a(f"s_mov_b32 s26, 1")
    a(f"s_mov_b32 s27, 1")
    a(f"s_mov_b64 exec, s[26:27]")
    a(f"buffer_store_dwordx4 {vr(sq,4)}, v{ad}, s[12:15], s24 offen{g.st}")
    a(f"buffer_store_dwordx4 {vr(sq+4,4)}, v{ad}, s[12:15], s24 offen offset:128{g.st}")
    a(f"s_mov_b64 exec, -1")

def gen_F(g, V, Ff, sSG):
    a = g.a
    m = V.mark()
    sl = V.get(); fk = V.get(); ab = V.get(); sg_ = V.get(); t = V.get(); t2 = V.get(); ar = V.get(8); fd = V.get()
    a(f"s_lshl_b32 s24, s{S_W}, 6")
    a(f"v_lshl_add_u32 v{t}, v{V_HH}, 3, s24")
    a(f"v_cvt_f32_u32 v{fd}, v{t}")
    for u in range(2):
        a(f"s_lshl_b32 s24, s{sSG}, 6")
        a(f"s_add_u32 s24, s24, {32*u}")
        a(f"v_add_u32 v{sl}, s24, v{V_L31}")
        a(f"v_lshrrev_b32 v{t}, 1, v{sl}")
        a(f"v_and_b32 v{t2}, 1, v{sl}")
        a(f"v_cmp_eq_u32 vcc, 1, v{sl}")
        a(f"v_mov_b32 v{sg_}, 256")
        a(f"v_cndmask_b32 v{t}, v{t}, v{sg_}, vcc")
        a(f"v_cndmask_b32 v{t2}, v{t2}, 0, vcc") if False else None
        a(f"v_mov_b32 v{sg_}, 0")
        a(f"v_cndmask_b32 v{t2}, v{t2}, v{sg_}, vcc")
        a(f"v_cvt_f32_u32 v{fk}, v{t}")
        a(f"v_mul_f32 v{fk}, {fhex(1/512)}, v{fk}")
        a(f"v_cvt_f32_u32 v{ab}, v{t2}")
        a(f"v_mul_f32 v{ab}, 0.25, v{ab}") if False else a(f"v_mul_f32 v{ab}, {fhex(0.25)}, v{ab}")
        a(f"v_fmac_f32 v{ab}, v{fk}, v{fd}")
        a(f"v_and_b32 v{t}, 1, v{t}")
        a(f"v_mov_b32 v{sg_}, 0x80008000")
        a(f"v_mul_lo_u32 v{sg_}, v{sg_}, v{t}")
        for kq in range(4):
            for j in range(8):
                a(f"v_fmamk_f32 v{ar+j}, v{fk}, {fhex(float(16*kq+j))}, v{ab}")
            for j in range(8): a(f"v_fract_f32 v{ar+j}, v{ar+j}")
            for j in range(8): a(f"v_cos_f32 v{ar+j}, v{ar+j}")
            f = Ff + (u * 8 + kq) * 4
            for j in range(4):
                a(f"v_cvt_pk_bf16_f32 v{f+j}, v{ar+2*j}, v{ar+2*j+1}")
            for j in range(4):
                a(f"v_xor_b32 v{f+16+j}, v{sg_}, v{f+j}")
    V.release(m)

def Ffr(Ff, u, k8): return Ff + (u * 8 + k8) * 4

def job1(g, V, Ff, sRT, sSG):
    a = g.a
    m = V.mark()
    srd(a, 8, P_X, 0, 2048 * 512 * 2)
    A = V.get(64); vo = V.get(); t = V.get()
    a(f"s_lshl_b32 s47, s{S_W}, 3")
    a(f"v_xor_b32 v{t}, s47, v{V_L31}")
    a(f"v_lshlrev_b32 v{vo}, 15, v{t}")
    a(f"v_lshl_add_u32 v{vo}, v{V_HH}, 4, v{vo}")
    a(f"s_lshl_b32 s48, s{sRT}, 10")
    a(f"s_lshl_b32 s47, s{S_W}, 7")
    a(f"s_add_u32 s48, s48, s47")
    for half in range(2):
        for tr in range(2):
            for kq in range(4):
                if kq == 0: a(f"s_add_u32 s47, s48, {hex(tr*1048576 + half*512)}")
                a(f"buffer_load_dwordx4 {vr(A + (tr*8 + half*4 + kq)*4, 4)}, v{vo}, s[8:11], s47 offen offset:{kq*32}")
    return dict(A=A, m=m)

def job1_main(g, V, Ff, sRT, sSG, st, RED=0, side0=(), side1=()):
    a = g.a
    A = st['A']
    acc = V.get(64)
    side0 = list(side0); side1 = list(side1)
    n0 = len(side0)
    for k8 in range(8):
        if k8 == 0:
            a(f"s_waitcnt vmcnt(8)")
            if getattr(g, 'fine', False): g.stamp("x0h0")
        if k8 == 4:
            a(f"s_waitcnt vmcnt({min(63, n0)})")
            if getattr(g, 'fine', False): g.stamp("x0h1")
        side = side0 if k8 < 4 else side1
        for tr in range(2):
            for tc in range(2):
                d = acc + (2*tr+tc)*16
                c = "0" if k8 == 0 else vr(d, 16)
                a(f"{M32} {vr(d,16)}, {vr(A + (tr*8+k8)*4, 4)}, {vr(Ffr(Ff,tc,k8),4)}, {c}")
                if side: a.items.extend(side.pop(0))
    for grp in side0 + side1: a.items.extend(grp)
    if getattr(g, 'fine', False): g.stamp("j1mm")
    if st.get('hook'): st['hook']()
    if getattr(g, 'fine', False): g.stamp("j1hk")
    reduce_write(g, V, lambda k, grp: acc + k*16 + grp*4, 'v', 'g', RED)
    a("s_waitcnt lgkmcnt(0)")
    a("s_barrier")
    part = A
    if getattr(g, 'fine', False): g.stamp("j1rw")
    reduce_read(g, V, part, RED)
    val = V.get(16)
    sc = V.get();
    a(f"v_cmp_gt_u32 vcc, 2, v{V_L31}")
    a(f"s_cmp_eq_u32 s{sSG}, 0")
    a(f"s_cselect_b64 s[26:27], vcc, 0")
    a(f"v_mov_b32 v{sc}, {fhex(1/16)}")
    a(f"v_mov_b32 v{val}, {fhex(1/16/math.sqrt(2))}")
    a(f"v_cndmask_b32 v{sc}, v{sc}, v{val}, s[26:27]")
    a("s_waitcnt lgkmcnt(0)")
    for k in range(4):
        for t in range(4):
            v = val + 4*k + t
            a(f"v_add_f32 v{v}, v{acc+k*16+t}, v{part+k*4+t}")
            a(f"v_add_f32 v{part+16+k*4+t}, v{part+16+k*4+t}, v{part+32+k*4+t}")
        for t in range(4):
            v = val + 4*k + t
            a(f"v_add_f32 v{v}, v{v}, v{part+16+k*4+t}")
        for t in range(4):
            v = val + 4*k + t
            if (k & 1) == 0: a(f"v_mul_f32 v{v}, v{v}, v{sc}")
            else: a(f"v_mul_f32 v{v}, {fhex(1/16)}, v{v}")
    a(f"s_lshl_b32 s28, s{sRT}, 6")
    V2 = Alloc(acc, acc + 64)
    if getattr(g, 'fine', False): g.stamp("j1val")
    stats_out(g, V2, val, sSG, 28, SS[0], None)
    if getattr(g, 'fine', False): g.stamp("j1st")
    planes_out(g, V2, val, sRT, sSG, XP[0], OT=RED+49152)
    V.release(st['m'])

def planes_out(g, V, val, sRT, sSG, XPoff, OT):
    a = g.a
    srd(a, 8, P_WS, XPoff, XP_SZ)
    def rowfn():
        vo = V.get()
        a(f"v_lshlrev_b32 v{vo}, 4, v0")
        a(f"s_lshl_b32 s24, s{sSG}, 12")
        a(f"s_lshl_b32 s25, s{sRT}, 16")
        a(f"s_add_u32 s24, s24, s25")
        a(f"s_add_u32 s25, s24, 32768")
        return vo, ["s24", "s25"], g.st
    epi_out(g, V, val, OT, 8, rowfn, planes=True)

def job4_issue(g, V):
    a = g.a
    wt = V.get(8); wti = V.get(8); vo = V.get(); t = V.get()
    srd(a, 52, P_WR, 0, 2048 * 257 * 2)
    srd(a, 56, P_WI, 0, 2048 * 257 * 2)
    a(f"s_and_b32 s49, s2, 3")
    a(f"s_lshl_b32 s49, s49, 6")
    a(f"v_add_u32 v{t}, s49, v{V_LANE}")
    a(f"v_cmp_eq_u32 s[60:61], 0, v{t}")
    a(f"v_mov_b32 v{vo}, 256")
    a(f"v_cndmask_b32 v{vo}, v{t}, v{vo}, s[60:61]")
    a(f"v_lshlrev_b32 v{vo}, 1, v{vo}")
    a(f"s_lshr_b32 s50, s2, 2")
    a(f"s_lshl_b32 s51, s{S_W}, 8")
    a(f"s_add_u32 s50, s50, s51")
    a(f"s_mul_i32 s50, s50, 514")
    for n in range(8):
        td, r = n >> 2, n & 3
        a(f"s_add_u32 s49, s50, {514*64*(16*td + r)}")
        a(f"buffer_load_ushort v{wt+n}, v{vo}, s[52:55], s49 offen")
        a(f"buffer_load_ushort v{wti+n}, v{vo}, s[56:59], s49 offen")
    return dict(wt=wt, wti=wti, k=t)

def job4_store(g, V, st):
    a = g.a
    wt = st['wt']; t = st['k']
    vo = V.get()
    for n in range(8): a(f"v_lshl_or_b32 v{wt+n}, v{st['wti']+n}, 16, v{wt+n}")
    srd(a, 12, P_WS, WT, WT_SZ)
    a(f"v_lshlrev_b32 v{vo}, 13, v{t}")
    a(f"s_lshr_b32 s25, s2, 2")
    a(f"s_lshl_b32 s24, s25, 7")
    a(f"s_lshl_b32 s25, s{S_W}, 5")
    a(f"s_add_u32 s24, s24, s25")
    a(f"buffer_store_dwordx4 {vr(wt,4)}, v{vo}, s[12:15], s24 offen{g.st}")
    a(f"buffer_store_dwordx4 {vr(wt+4,4)}, v{vo}, s[12:15], s24 offen offset:16{g.st}")

def reduce_t(g, V, acc, part):
    a = g.a
    reduce_write(g, V, lambda c, k: acc + c*16 + k*4, 'v', 't')
    a("s_waitcnt lgkmcnt(0)")
    a("s_barrier")
    reduce_read(g, V, part)
    a("s_waitcnt lgkmcnt(0)")
    a("s_barrier")
    for r in range(16):
        a(f"v_add_f32 v{acc+r}, v{acc+r}, v{part+r}")
        a(f"v_add_f32 v{part+16+r}, v{part+16+r}, v{part+32+r}")
    for r in range(16):
        a(f"v_add_f32 v{acc+r}, v{acc+r}, v{part+16+r}")

def swap_F(g, Ff):
    a = g.a
    L = g.lab("noswap")
    a(f"s_cmp_lt_u32 s{S_W}, 2")
    a(f"s_cbranch_scc1 {L}")
    for r in range(32):
        a(f"v_swap_b32 v{Ff+r}, v{Ff+32+r}")
    a.label(L)

STG3 = 65536

def job3_issue(g, V, sKK, stg):
    a = g.a
    vo = V.get(); t = V.get()
    srd(a, 52, P_WG, 0, 512 * 1376 * 2)
    srd(a, 56, P_WU, 0, 512 * 1376 * 2)
    a(f"v_lshrrev_b32 v{t}, 2, v{V_LANE}")
    a(f"v_mul_u32_u24 v{vo}, 2752, v{t}")
    a(f"v_and_b32 v{t}, 3, v{V_LANE}")
    a(f"v_lshl_add_u32 v{vo}, v{t}, 4, v{vo}")
    a(f"s_mul_i32 s50, s{S_W}, {64*2752}")
    a(f"s_lshl_b32 s49, s{sKK}, 6")
    a(f"s_add_u32 s50, s50, s49")
    a(f"s_lshl_b32 s51, s{S_W}, 14")
    a(f"s_add_u32 s51, s51, {stg}")
    for p in range(2):
        for m in range(8):
            d0 = 16*m if m < 4 else 256 + 16*(m-4)
            a(f"s_add_u32 m0, s51, {p*8192 + m*1024}")
            a(f"s_add_u32 s49, s50, {d0*2752}")
            a(f"buffer_load_dwordx4 v{vo}, s[{52+4*p}:{55+4*p}], s49 offen lds")

def job3_main(g, V, Ff, sKK, sSG, stg, side=()):
    a = g.a
    side = list(side)
    m = V.mark()
    B = V.get(64)
    ad = V.get(); acc = V.get(64); t = V.get()
    a(f"v_and_b32 v{t}, 15, v{V_LANE}")
    a(f"v_lshrrev_b32 v{ad}, 2, v{t}")
    a(f"v_lshl_add_u32 v{ad}, v{V_HH}, 3, v{ad}")
    a(f"v_lshlrev_b32 v{ad}, 6, v{ad}")
    a(f"v_and_b32 v{t}, 3, v{t}")
    a(f"v_lshl_add_u32 v{ad}, v{t}, 3, v{ad}")
    a(f"v_lshrrev_b32 v{t}, 4, v{V_LANE}")
    a(f"v_and_b32 v{t}, 1, v{t}")
    a(f"v_lshl_add_u32 v{ad}, v{t}, 5, v{ad}")
    a(f"s_lshl_b32 s26, s{S_W}, 14")
    a(f"s_add_u32 s26, s26, {stg}")
    a(f"v_add_u32 v{ad}, s26, v{ad}")
    ad2 = V.get(2, 1)
    a(f"s_and_b32 s24, s{S_W}, 1")
    a(f"s_lshl_b32 s24, s24, 13")
    a(f"v_add_u32 v{ad2}, s24, v{ad}")
    a(f"s_xor_b32 s24, s24, 8192")
    a(f"v_add_u32 v{ad2+1}, s24, v{ad}")
    for uc in range(2):
        for k8 in range(8):
            for rd in range(2):
                a(f"ds_read_b64_tr_b16 {vr(B+(uc*8+k8)*4+2*rd,2)}, v{ad2+uc} offset:{k8*1024 + rd*256}")
        if uc == 0: a("s_waitcnt lgkmcnt(8)") if False else None
    a("s_waitcnt lgkmcnt(0)")
    if getattr(g, 'fine3', False): g.stamp("j3rd")
    for k8 in range(8):
        for ur in range(2):
            for uc in range(2):
                d = acc + (2*ur+uc)*16
                c = "0" if k8 == 0 else vr(d, 16)
                a(f"{M32} {vr(d,16)}, {vr(Ffr(Ff,ur,k8),4)}, {vr(B+(uc*8+k8)*4,4)}, {c}")
                if side: a.items.extend(side.pop(0))
    for grp in side: a.items.extend(grp)
    if getattr(g, 'fine3', False): g.stamp("j3mm"); g.fine3 = False
    a("s_barrier")
    reduce_t(g, V, acc, B)
    s0 = V.get(); s1 = V.get()
    a(f"v_mov_b32 v{s0}, {fhex(1/16)}")
    a(f"v_mov_b32 v{s1}, {fhex(1/16)}")
    a(f"v_cmp_eq_u32 vcc, 0, v{V_HH}")
    a(f"s_lshr_b32 s24, s{S_W}, 1")
    a(f"s_or_b32 s24, s24, s{sSG}")
    a(f"s_cmp_eq_u32 s24, 0")
    a(f"s_cselect_b64 s[26:27], vcc, 0")
    a(f"v_mov_b32 v{t}, 0")
    a(f"v_cndmask_b32 v{s0}, v{s0}, v{t}, s[26:27]")
    a(f"v_mov_b32 v{t}, {fhex(1/16/math.sqrt(2))}")
    a(f"v_cndmask_b32 v{s1}, v{s1}, v{t}, s[26:27]")
    a(f"v_mul_f32 v{acc}, v{acc}, v{s0}")
    a(f"v_mul_f32 v{acc+1}, v{acc+1}, v{s1}")
    for r in range(2, 16): a(f"v_mul_f32 v{acc+r}, {fhex(1/16)}, v{acc+r}")
    pk = B
    for j in range(8): a(f"v_cvt_pk_bf16_f32 v{pk+j}, v{acc+2*j}, v{acc+2*j+1}")
    srd(a, 8, P_WS, WGU, WGU_SZ)
    a(f"v_lshlrev_b32 v{t}, 4, v{V_LANE}")
    a(f"s_lshl_b32 s24, s{sKK}, 16")
    a(f"s_and_b32 s25, s{S_W}, 1")
    a(f"s_lshl_b32 s25, s25, 15")
    a(f"s_add_u32 s24, s24, s25")
    a(f"s_lshl_b32 s25, s{sSG}, 12")
    a(f"s_add_u32 s24, s24, s25")
    a(f"s_lshr_b32 s25, s{S_W}, 1")
    a(f"s_lshl_b32 s25, s25, 11")
    a(f"s_add_u32 s24, s24, s25")
    a(f"buffer_store_dwordx4 {vr(pk,4)}, v{t}, s[8:11], s24 offen{g.st}")
    a(f"buffer_store_dwordx4 {vr(pk+4,4)}, v{t}, s[8:11], s24 offen offset:1024{g.st}")
    V.release(m)

def job2_issue(g, V, sFP):
    a = g.a
    srd(a, 52, P_WD, 0, 1376 * 512 * 2)
    A = 0; vo = V.get(); t = V.get()
    a(f"v_lshlrev_b32 v{vo}, 10, v{V_L31}")
    a(f"v_lshl_add_u32 v{vo}, v{V_HH}, 4, v{vo}")
    a(f"s_lshl_b32 s50, s{sFP}, 16")
    a(f"s_lshl_b32 s49, s{S_W}, 7")
    a(f"s_add_u32 s50, s50, s49")
    a(f"s_and_b32 s49, s{S_W}, 1")
    a(f"s_lshl_b32 s51, s49, 15")
    for ur in range(2):
        if ur == 1: a(f"s_xor_b32 s51, s51, 32768")
        for half in range(2):
            a(f"s_add_u32 s49, s50, s51")
            if half: a(f"s_add_u32 s49, s49, 512")
            for kq in range(4):
                a(f"buffer_load_dwordx4 {vr(A + (ur*8 + half*4 + kq)*4, 4, 'a')}, v{vo}, s[52:55], s49 offen offset:{kq*32}")
    return dict(A=A)

def job2_main(g, V, Ff, sFP, sSG, st):
    a = g.a
    A = st['A']
    acc = V.get(64); t = V.get(); sc = V.get(); part = V.get(48)
    for k8 in range(8):
        for ur in range(2):
            for uc in range(2):
                d = acc + (ur | (uc << 1))*16
                c = "0" if k8 == 0 else vr(d, 16)
                a(f"{M32} {vr(d,16)}, {vr(A+(ur*8+k8)*4,4,'a')}, {vr(Ffr(Ff,uc,k8),4)}, {c}")
    reduce_t(g, V, acc, part)
    a(f"v_cmp_gt_u32 vcc, 2, v{V_L31}")
    a(f"s_lshr_b32 s24, s{S_W}, 1")
    a(f"s_or_b32 s24, s24, s{sSG}")
    a(f"s_cmp_eq_u32 s24, 0")
    a(f"s_cselect_b64 s[26:27], vcc, 0")
    a(f"v_mov_b32 v{sc}, {fhex(1/16)}")
    a(f"v_mov_b32 v{t}, {fhex(1/16/math.sqrt(2))}")
    a(f"v_cndmask_b32 v{sc}, v{sc}, v{t}, s[26:27]")
    for r in range(16): a(f"v_mul_f32 v{acc+r}, v{acc+r}, v{sc}")
    pk = part
    for j in range(8): a(f"v_cvt_pk_bf16_f32 v{pk+j}, v{acc+2*j}, v{acc+2*j+1}")
    srd(a, 8, P_WS, WDP, WDP_SZ)
    a(f"s_lshl_b32 s24, s{sFP}, 2")
    a(f"s_and_b32 s25, s{S_W}, 1")
    a(f"s_lshl_b32 s25, s25, 1")
    a(f"s_add_u32 s24, s24, s25")
    L = g.lab("j2skip")
    a(f"s_cmp_ge_u32 s24, 86")
    a(f"s_cbranch_scc1 {L}")
    a(f"s_lshl_b32 s25, s{sSG}, 1")
    a(f"s_lshr_b32 s26, s{S_W}, 1")
    a(f"s_add_u32 s25, s25, s26")
    a(f"s_mul_i32 s25, s25, 86")
    a(f"s_add_u32 s24, s24, s25")
    a(f"s_lshl_b32 s24, s24, 10")
    a(f"v_lshlrev_b32 v{t}, 4, v{V_LANE}")
    a(f"buffer_store_dwordx4 {vr(pk,4)}, v{t}, s[8:11], s24 offen{g.st}")
    a(f"buffer_store_dwordx4 {vr(pk+4,4)}, v{t}, s[8:11], s24 offen offset:1024{g.st}")
    a.label(L)

def job5(g, V):
    a = g.a
    m = V.mark()
    L = g.lab("j5skip")
    a(f"s_cmp_ge_u32 s{S_W}, 2")
    a(f"s_cbranch_scc1 {L}")
    d = V.get(); fd = V.get(); ar = V.get(8); sl = V.get(); kf = V.get(); im = V.get(); t = V.get(); sc = V.get(); pk = V.get(4)
    a(f"s_lshl_b32 s24, s2, 1")
    a(f"s_add_u32 s24, s24, s{S_W}")
    a(f"s_lshr_b32 s25, s24, 5")
    a(f"s_and_b32 s26, s24, 31")
    a(f"s_lshl_b32 s27, s25, 5")
    a(f"v_add_u32 v{d}, s27, v{V_L31}")
    a(f"s_lshl_b32 s27, s26, 4")
    for j in range(8):
        a(f"v_lshl_add_u32 v{sl}, v{V_HH}, 2, s27")
        a(f"v_add_u32 v{sl}, {8*(j>>2) + (j&3)}, v{sl}")
        a(f"v_lshrrev_b32 v{kf}, 1, v{sl}")
        a(f"v_and_b32 v{im}, 1, v{sl}")
        a(f"v_cmp_eq_u32 vcc, 1, v{sl}")
        a(f"v_mov_b32 v{t}, 256")
        a(f"v_cndmask_b32 v{kf}, v{kf}, v{t}, vcc")
        a(f"v_mov_b32 v{t}, 0")
        a(f"v_cndmask_b32 v{im}, v{im}, v{t}, vcc")
        a(f"v_mul_lo_u32 v{kf}, v{kf}, v{d}")
        a(f"v_lshl_add_u32 v{kf}, v{im}, 7, v{kf}")
        a(f"v_and_b32 v{kf}, 511, v{kf}")
        a(f"v_cvt_f32_u32 v{kf}, v{kf}")
        a(f"v_mul_f32 v{kf}, {fhex(1/512)}, v{kf}")
        a(f"v_cos_f32 v{ar+j}, v{kf}")
        a(f"v_cmp_gt_u32 vcc, 2, v{sl}")
        a(f"v_mov_b32 v{sc}, {fhex(1/16)}")
        a(f"v_mov_b32 v{t}, {fhex(1/16/math.sqrt(2))}")
        a(f"v_cndmask_b32 v{sc}, v{sc}, v{t}, vcc")
        a(f"v_mul_f32 v{ar+j}, v{ar+j}, v{sc}")
    for j in range(4): a(f"v_cvt_pk_bf16_f32 v{pk+j}, v{ar+2*j}, v{ar+2*j+1}")
    srd(a, 8, P_WS, GF, GF_SZ)
    a(f"s_lshl_b32 s24, s24, 10")
    a(f"v_lshlrev_b32 v{t}, 4, v{V_LANE}")
    a(f"buffer_store_dwordx4 {vr(pk,4)}, v{t}, s[8:11], s24 offen{g.st}")
    a.label(L)
    V.release(m)

def job6(g, V, stg):
    a = g.a
    m = V.mark()
    vo = V.get(); ad = V.get(); t = V.get(); fr = V.get(4)
    srd(a, 12, P_WD, 0, 1376 * 512 * 2)
    srd(a, 8, P_WS, WDF, WDP_SZ)
    a(f"v_lshrrev_b32 v{t}, 2, v{V_LANE}")
    a(f"v_lshlrev_b32 v{vo}, 10, v{t}")
    a(f"v_and_b32 v{t}, 3, v{V_LANE}")
    a(f"v_lshl_add_u32 v{vo}, v{t}, 4, v{vo}")
    a(f"v_and_b32 v{t}, 15, v{V_LANE}")
    a(f"v_lshrrev_b32 v{ad}, 2, v{t}")
    a(f"v_lshl_add_u32 v{ad}, v{V_HH}, 2, v{ad}")
    a(f"v_lshlrev_b32 v{ad}, 6, v{ad}")
    a(f"v_and_b32 v{t}, 3, v{t}")
    a(f"v_lshl_add_u32 v{ad}, v{t}, 3, v{ad}")
    a(f"v_lshrrev_b32 v{t}, 4, v{V_LANE}")
    a(f"v_and_b32 v{t}, 1, v{t}")
    a(f"v_lshl_add_u32 v{ad}, v{t}, 5, v{ad}")
    a(f"s_lshl_b32 s26, s{S_W}, 10")
    a(f"s_add_u32 s26, s26, {stg}")
    a(f"v_add_u32 v{ad}, s26, v{ad}")
    a(f"v_lshlrev_b32 v{t}, 4, v{V_LANE}")
    fr2 = V.get(4)
    frs = [fr, fr2]
    Ls = g.lab("j6one")
    def ids(it):
        a(f"s_lshl_b32 s24, s2, 2")
        a(f"s_add_u32 s24, s24, s{S_W}")
        if it: a(f"s_add_u32 s24, s24, 1024")
    for it in range(2):
        ids(it)
        if it:
            a(f"s_cmp_ge_u32 s24, 1376")
            a(f"s_cbranch_scc1 {Ls}")
        a(f"s_mul_hi_u32 s25, s24, {hex((2**32 + 85)//86)}")
        a(f"s_mul_i32 s27, s25, 86")
        a(f"s_sub_u32 s27, s24, s27")
        a(f"s_lshl_b32 s27, s27, 14")
        a(f"s_lshl_b32 s25, s25, 6")
        a(f"s_add_u32 s27, s27, s25")
        a(f"s_add_u32 m0, s26, {it*4096}")
        a("s_nop 0")
        a(f"buffer_load_dwordx4 v{vo}, s[12:15], s27 offen lds")
    a.label(Ls)
    a("s_waitcnt vmcnt(0)")
    Le = g.lab("j6end")
    for it in range(2):
        ids(it)
        if it:
            a(f"s_cmp_ge_u32 s24, 1376")
            a(f"s_cbranch_scc1 {Le}")
        a(f"ds_read_b64_tr_b16 {vr(frs[it],2)}, v{ad} offset:{it*4096}")
        a(f"ds_read_b64_tr_b16 {vr(frs[it]+2,2)}, v{ad} offset:{it*4096+512}")
        a(f"s_lshl_b32 s24, s24, 10")
        a("s_waitcnt lgkmcnt(0)")
        a(f"buffer_store_dwordx4 {vr(frs[it],4)}, v{t}, s[8:11], s24 offen{g.st}")
    a.label(Le)
    V.release(m)

def fft_pre(g, V):
    a = g.a
    vi = V.get(); vq = V.get(); t1 = V.get(); t2 = V.get()
    a(f"v_and_b32 v{vi}, 15, v{V_LANE}")
    a(f"v_lshrrev_b32 v{vq}, 4, v{V_LANE}")
    C64 = V.get(8); S64 = V.get(8); N64 = V.get(8)
    C32 = V.get(8); S32 = V.get(8); N32 = V.get(8)
    tw1c = V.get(8); tw1s = V.get(8); tw2c = V.get(8); tw2s = V.get(8)
    tmp = V.get(8); tmp2 = V.get(8)
    m = V.mark()
    fn = V.get(); fb = V.get(); fq = V.get(); fi = V.get()
    sT = 24
    a(f"v_cvt_f32_u32 v{fi}, v{vi}")
    a(f"v_cvt_f32_u32 v{fq}, v{vq}")
    a(f"s_lshl_b32 s{sT}, s{S_W}, 4")
    a(f"v_cvt_f32_u32 v{t1}, s{sT}")
    a(f"v_add_f32 v{fn}, v{t1}, v{fi}")
    a(f"v_mul_f32 v{fb}, v{fn}, v{fq}")
    a(f"v_mul_f32 v{fb}, {fhex(0.125)}, v{fb}")
    def cs(C, S, N):
        for e in range(8): a(f"v_cos_f32 v{tmp2+e}, v{tmp+e}")
        for e in range(8): a(f"v_sin_f32 v{tmp+e}, v{tmp+e}")
        for j in range(4): a(f"v_cvt_pk_bf16_f32 v{C+j}, v{tmp2+2*j}, v{tmp2+2*j+1}")
        for j in range(4): a(f"v_cvt_pk_bf16_f32 v{S+j}, v{tmp+2*j}, v{tmp+2*j+1}")
        for j in range(4): a(f"v_xor_b32 v{N+j}, 0x80008000, v{S+j}")
    for ks in range(2):
        for e in range(8):
            a(f"v_fmamk_f32 v{tmp+e}, v{fn}, {fhex((32*ks+e)/64)}, v{fb}")
        cs(C64+4*ks, S64+4*ks, N64+4*ks)
    for t in range(2):
        a(f"v_add_f32 v{t1}, {fhex(16.0*t)}, v{fi}") if t else a(f"v_mov_b32 v{t1}, v{fi}")
        a(f"v_mul_f32 v{fb}, v{t1}, v{fq}")
        a(f"v_mul_f32 v{fb}, {fhex(0.125)}, v{fb}")
        for e in range(8):
            a(f"v_fmamk_f32 v{tmp+e}, v{t1}, {fhex((16*(e>>2)+(e&3))/32)}, v{fb}")
        cs(C32+4*t, S32+4*t, N32+4*t)
    a(f"v_mul_f32 v{fb}, v{fn}, v{fq}")
    a(f"v_mul_f32 v{fb}, {fhex(4/2048)}, v{fb}")
    for tb in range(2):
        for r in range(4):
            a(f"v_fmamk_f32 v{tmp+4*tb+r}, v{fn}, {fhex((16*tb+r)/2048)}, v{fb}")
    for e in range(8): a(f"v_cos_f32 v{tw1c+e}, v{tmp+e}")
    for e in range(8): a(f"v_sin_f32 v{tw1s+e}, v{tmp+e}")
    a(f"s_lshl_b32 s{sT}, s{S_W}, 4")
    a(f"v_cvt_f32_u32 v{t1}, s{sT}")
    a(f"v_fmamk_f32 v{t1}, v{fq}, {fhex(4.0)}, v{t1}")
    for tb in range(2):
        a(f"v_add_f32 v{t2}, {fhex(16.0*tb)}, v{fi}") if tb else a(f"v_mov_b32 v{t2}, v{fi}")
        a(f"v_mul_f32 v{t2}, {fhex(1/2048)}, v{t2}")
        a(f"v_mul_f32 v{fb}, v{t2}, v{t1}")
        for r in range(4):
            if r == 0: a(f"v_mov_b32 v{tmp+4*tb}, v{fb}")
            else: a(f"v_fmamk_f32 v{tmp+4*tb+r}, v{t2}, {fhex(float(r))}, v{fb}")
    for e in range(8): a(f"v_cos_f32 v{tw2c+e}, v{tmp+e}")
    for e in range(8): a(f"v_sin_f32 v{tw2s+e}, v{tmp+e}")
    for e in range(8): a(f"v_mul_f32 v{tw2c+e}, {fhex(1/2048)}, v{tw2c+e}")
    for e in range(8): a(f"v_mul_f32 v{tw2s+e}, {fhex(1/2048)}, v{tw2s+e}")
    V.release(m)
    return dict(vi=vi, vq=vq, t1=t1, t2=t2, C64=C64, S64=S64, N64=N64, C32=C32, S32=S32, N32=N32,
                tw1c=tw1c, tw1s=tw1s, tw2c=tw2c, tw2s=tw2s, tmp=tmp, tmp2=tmp2)

def fft_wt_load(g, V, st):
    a = g.a
    wt = V.get(8); t0 = V.get()
    srd(a, 16, P_WS, WT, WT_SZ)
    a(f"v_lshlrev_b32 v{t0}, 2, v{st['vi']}")
    a(f"v_add_u32 v{t0}, v{t0}, v{st['vq']}")
    a(f"v_lshlrev_b32 v{t0}, 5, v{t0}")
    a(f"s_lshl_b32 s24, s2, 13")
    a(f"s_lshl_b32 s25, s{S_W}, 11")
    a(f"s_add_u32 s24, s24, s25")
    a(f"buffer_load_dwordx4 {vr(wt,4)}, v{t0}, s[16:19], s24 offen{g.ld}")
    a(f"buffer_load_dwordx4 {vr(wt+4,4)}, v{t0}, s[16:19], s24 offen offset:16{g.ld}")
    st['wt'] = wt

def fft_main(g, V, st, XPin, SSin, XPout, side=None, dpoll=False):
    a = g.a
    vi, vq, t0, t1 = st['vi'], st['vq'], st['t1'], st['t2']
    C64, S64, N64, C32, S32, N32 = (st[k] for k in ('C64', 'S64', 'N64', 'C32', 'S32', 'N32'))
    tw1c, tw1s, tw2c, tw2s, tmp, tmp2, wt = (st[k] for k in ('tw1c', 'tw1s', 'tw2c', 'tw2s', 'tmp', 'tmp2', 'wt'))
    sP, sQ, sT, sFlag, sK = 28, 29, 24, 30, 23
    srd(a, 8, P_WS, XPin, XP_SZ)
    srd(a, 12, P_WS, SSin, SS_SZ)
    a(f"s_lshl_b32 s{sP}, s2, 7")
    a(f"s_add_u32 s{sQ}, s{sP}, 64")
    a(f"s_lshl_b32 s{sK}, s2, 7")
    a(f"s_mov_b32 s{sFlag}, 1.0")
    a(f"s_cmp_lg_u32 s2, 0")
    a(f"s_cselect_b32 s{sP}, s{sP}, 64")
    a(f"s_cselect_b32 s{sQ}, s{sQ}, 0")
    a(f"s_cselect_b32 s{sFlag}, s{sFlag}, 0")
    xr = V.get(4); xi = V.get(4); ss = V.get(64); rawb = V.get(8)
    off16 = V.get(); off32 = V.get(); offb = V.get(); fl = V.get(2)
    a(f"v_lshrrev_b32 v{t0}, 2, v0")
    a(f"v_lshlrev_b32 v{off16}, 15, v{t0}")
    a(f"v_and_b32 v{t0}, 3, v0")
    a(f"v_lshl_add_u32 v{off16}, v{t0}, 4, v{off16}")
    a(f"v_lshlrev_b32 v{off32}, 5, v0")
    a(f"v_lshrrev_b32 v{t0}, 3, v{V_LANE}")
    a(f"s_lshl_b32 s{sT}, s{S_W}, 4")
    a(f"v_add_u32 v{t0}, s{sT}, v{t0}")
    a(f"v_lshlrev_b32 v{offb}, 15, v{t0}")
    a(f"v_and_b32 v{t0}, 7, v{V_LANE}")
    a(f"v_lshl_add_u32 v{offb}, v{t0}, 4, v{offb}")
    fl_ = " sc1" if dpoll else ""
    def ld_raw():
        a(f"buffer_load_dwordx4 {vr(rawb,4)}, v{offb}, s[8:11], s{sK} offen{fl_}")
        a(f"s_add_u32 s{sT}, s{sK}, {8*32768}")
        a(f"buffer_load_dwordx4 {vr(rawb+4,4)}, v{offb}, s[8:11], s{sT} offen{fl_}")
    def ld_rest():
        a(f"buffer_load_dwordx4 {vr(xr,4)}, v{off16}, s[8:11], s{sP} offen{fl_}")
        a(f"buffer_load_dwordx4 {vr(xi,4)}, v{off16}, s[8:11], s{sQ} offen{fl_}")
        a(f"s_mov_b32 s{sT}, 0")
        for p in range(8):
            a(f"buffer_load_dwordx4 {vr(ss+8*p,4)}, v{off32}, s[12:15], s{sT} offen{g.ld}")
            a(f"buffer_load_dwordx4 {vr(ss+8*p+4,4)}, v{off32}, s[12:15], s{sT} offen offset:16{g.ld}")
            if p < 7: a(f"s_add_u32 s{sT}, s{sT}, 8192")
    if not dpoll:
        ld_rest_first = True
        a(f"buffer_load_dwordx4 {vr(xr,4)}, v{off16}, s[8:11], s{sP} offen")
        a(f"buffer_load_dwordx4 {vr(xi,4)}, v{off16}, s[8:11], s{sQ} offen")
        ld_raw()
        a(f"s_mov_b32 s{sT}, 0")
        for p in range(8):
            a(f"buffer_load_dwordx4 {vr(ss+8*p,4)}, v{off32}, s[12:15], s{sT} offen{g.ld}")
            a(f"buffer_load_dwordx4 {vr(ss+8*p+4,4)}, v{off32}, s[12:15], s{sT} offen offset:16{g.ld}")
            if p < 7: a(f"s_add_u32 s{sT}, s{sT}, 8192")
    else:
        L1 = g.lab("fp1"); L2 = g.lab("fp2"); L2d = g.lab("fp2d"); L1d = g.lab("fp1d")
        a("s_mov_b32 s31, 0")
        a.label(L1)
        ld_raw()
        a("s_add_u32 s31, s31, 1")
        a("s_waitcnt vmcnt(0)")
        a(f"v_cmp_eq_u32 vcc, -1, v{rawb}")
        a(f"v_cmp_eq_u32 s[26:27], -1, v{rawb+4}")
        a(f"s_or_b64 s[26:27], s[26:27], vcc")
        a(f"s_cbranch_scc0 {L1d}")
        a(f"s_cmp_lt_u32 s31, {SPIN_MAX}")
        a(f"s_cbranch_scc1 {L1}")
        a.label(L1d)
        a.label(L2)
        ld_rest()
        a("s_add_u32 s31, s31, 1")
        a("s_waitcnt vmcnt(0)")
        regs = [xr, xi] + [ss + 4*i for i in range(16)]
        a(f"v_cmp_eq_u32 vcc, -1, v{regs[0]}")
        a(f"s_mov_b64 s[26:27], vcc")
        for r in regs[1:]:
            a(f"v_cmp_eq_u32 vcc, -1, v{r}")
            a(f"s_or_b64 s[26:27], s[26:27], vcc")
        a(f"s_cmp_eq_u64 s[26:27], 0")
        a(f"s_cbranch_scc1 {L2d}")
        a(f"s_cmp_lt_u32 s31, {SPIN_MAX}")
        a(f"s_cbranch_scc1 {L2}")
        a.label(L2d)
    if getattr(g, 'fine', False): g.stamp("fft_iss")
    RS = 144; PS = 32 * RS
    XN, UX, ZX = 0, 2 * PS, 4 * PS
    ZRS = 272; ZPS = 32 * ZRS
    wad = V.get(); rad = V.get(); uad = V.get()
    a(f"v_lshrrev_b32 v{t0}, 3, v0")
    a(f"v_mul_u32_u24 v{wad}, {RS}, v{t0}")
    a(f"v_and_b32 v{t0}, 7, v0")
    a(f"v_lshl_add_u32 v{wad}, v{t0}, 4, v{wad}")
    a(f"v_mul_u32_u24 v{rad}, {RS}, v{vi}")
    a(f"v_lshl_add_u32 v{rad}, v{vq}, 4, v{rad}")
    a(f"v_mul_u32_u24 v{uad}, {RS}, v{vi}")
    a(f"v_lshl_add_u32 v{uad}, v{vq}, 3, v{uad}")
    a(f"s_lshl_b32 s{sT}, s{S_W}, 5")
    a(f"v_add_u32 v{uad}, s{sT}, v{uad}")
    for p in range(1, 8):
        a(f"s_waitcnt vmcnt({2*(7-p)})")
        for j in range(0, 8, 2):
            a(f"v_pk_add_f32 {vr(ss+j,2)}, {vr(ss+j,2)}, {vr(ss+8*p+j,2)}")
    for j in range(8): a(f"v_mul_f32 v{ss+j}, {fhex(1/512)}, v{ss+j}")
    for j in range(8): a(f"v_add_f32 v{ss+j}, {fhex(1e-5)}, v{ss+j}")
    for j in range(8): a(f"v_rsq_f32 v{ss+j}, v{ss+j}")
    for j in range(8): a(f"v_mul_f32 v{ss+8+j}, s{sFlag}, v{ss+j}")
    nx = ss + 16
    for pl, (x, rs) in enumerate(((xr, ss), (xi, ss + 8))):
        for j in range(4):
            a(f"v_lshlrev_b32 v{tmp+2*j}, 16, v{x+j}")
            a(f"v_and_b32 v{tmp+2*j+1}, 0xffff0000, v{x+j}")
        for j in range(0, 8, 2): a(f"v_pk_mul_f32 {vr(tmp+j,2)}, {vr(tmp+j,2)}, {vr(rs+j,2)}")
        for j in range(4): a(f"v_cvt_pk_bf16_f32 v{nx+4*pl+j}, v{tmp+2*j}, v{tmp+2*j+1}")
        a(f"ds_write_b128 v{wad}, {vr(nx+4*pl,4)} offset:{XN+pl*PS}")
    a("s_waitcnt lgkmcnt(0)")
    a("s_barrier")
    if getattr(g, 'fine', False): g.stamp("fft_norm")
    mark0 = len(a.items)
    fr = ss + 32
    def frag(pl, tb, ks): return fr + ((pl * 2 + tb) * 2 + ks) * 4
    def read_frags(base):
        for ks in range(2):
            for pl in range(2):
                for tb in range(2):
                    a(f"ds_read_b128 {vr(frag(pl,tb,ks),4)}, v{rad} offset:{base + pl*PS + tb*16*RS + ks*64}")
    read_frags(XN)
    Tr = V.get(8); Ti = V.get(8)
    def mf(d, A, B, first=False): a(f"{M16} {vr(d,4)}, {vr(A,4)}, {vr(B,4)}, {'0' if first else vr(d,4)}")
    for ks in range(2):
        a(f"s_waitcnt lgkmcnt({4 if ks == 0 else 0})")
        for tb in range(2):
            mf(Tr+4*tb, frag(0,tb,ks), C64+4*ks, ks == 0)
            mf(Ti+4*tb, frag(1,tb,ks), C64+4*ks, ks == 0)
        for tb in range(2):
            mf(Tr+4*tb, frag(1,tb,ks), S64+4*ks)
            mf(Ti+4*tb, frag(0,tb,ks), N64+4*ks)
    def cmul_pack(Rr, Ri, cc, ssn, sign, Pr, Pi):
        NEG = " neg_lo:[1,0,0] neg_hi:[1,0,0]"
        for e in range(0, 8, 2):
            a(f"v_pk_mul_f32 {vr(tmp+e,2)}, {vr(Rr+e,2)}, {vr(cc+e,2)}")
            a(f"v_pk_mul_f32 {vr(tmp2+e,2)}, {vr(Ri+e,2)}, {vr(cc+e,2)}")
        for e in range(0, 8, 2):
            a(f"v_pk_fma_f32 {vr(tmp+e,2)}, {vr(Ri+e,2)}, {vr(ssn+e,2)}, {vr(tmp+e,2)}{'' if sign > 0 else NEG}")
            a(f"v_pk_fma_f32 {vr(tmp2+e,2)}, {vr(Rr+e,2)}, {vr(ssn+e,2)}, {vr(tmp2+e,2)}{NEG if sign > 0 else ''}")
        for j in range(4):
            a(f"v_cvt_pk_bf16_f32 v{Pr+j}, v{tmp+2*j}, v{tmp+2*j+1}")
            a(f"v_cvt_pk_bf16_f32 v{Pi+j}, v{tmp2+2*j}, v{tmp2+2*j+1}")
    Pr = V.get(4); Pi = V.get(4)
    cmul_pack(Tr, Ti, tw1c, tw1s, +1, Pr, Pi)
    Yr = ss; Yi = ss + 8
    for td in range(2):
        mf(Yr+4*td, C32+4*td, Pr, True)
        mf(Yi+4*td, C32+4*td, Pi, True)
    for td in range(2):
        mf(Yr+4*td, S32+4*td, Pi)
        mf(Yi+4*td, N32+4*td, Pr)
    wr = Tr; wi = Ti
    for e in range(8):
        a(f"v_lshlrev_b32 v{wr+e}, 16, v{wt+e}")
        a(f"v_and_b32 v{wi+e}, 0xffff0000, v{wt+e}")
    cmul_pack(Yr, Yi, wr, wi, -1, Pr, Pi)
    Ur = Yr; Ui = Yi
    for tb in range(2):
        mf(Ur+4*tb, Pr, C32+4*tb, True)
        mf(Ui+4*tb, Pi, C32+4*tb, True)
    for tb in range(2):
        mf(Ur+4*tb, Pi, N32+4*tb)
        mf(Ui+4*tb, Pr, S32+4*tb)
    cmul_pack(Ur, Ui, tw2c, tw2s, -1, Pr, Pi)
    for tb in range(2):
        a(f"ds_write_b64 v{uad}, {vr(Pr+2*tb,2)} offset:{UX + tb*16*RS}")
        a(f"ds_write_b64 v{uad}, {vr(Pi+2*tb,2)} offset:{UX + PS + tb*16*RS}")
    a("s_waitcnt lgkmcnt(0)")
    a("s_barrier")
    if getattr(g, 'fine', False): g.stamp("fft_s3")
    read_frags(UX)
    Zr = Tr; Zi = Ti
    for ks in range(2):
        a(f"s_waitcnt lgkmcnt({4 if ks == 0 else 0})")
        for tb in range(2):
            mf(Zr+4*tb, C64+4*ks, frag(0,tb,ks), ks == 0)
            mf(Zi+4*tb, C64+4*ks, frag(1,tb,ks), ks == 0)
        for tb in range(2):
            mf(Zr+4*tb, N64+4*ks, frag(1,tb,ks))
            mf(Zi+4*tb, S64+4*ks, frag(0,tb,ks))
    zad = V.get()
    a(f"v_mul_u32_u24 v{zad}, {ZRS}, v{vi}")
    a(f"v_lshl_add_u32 v{zad}, v{vq}, 4, v{zad}")
    a(f"s_lshl_b32 s{sT}, s{S_W}, 6")
    a(f"v_add_u32 v{zad}, s{sT}, v{zad}")
    for pl, Z in enumerate((Zr, Zi)):
        for tb in range(2):
            a(f"ds_write_b128 v{zad}, {vr(Z+4*tb,4)} offset:{ZX + pl*ZPS + tb*16*ZRS}")
    a("s_waitcnt lgkmcnt(0)")
    a("s_barrier")
    if side:
        seg = a.items[mark0:]; del a.items[mark0:]
        merge(g, seg, side, start=4, every=max(1, (len(seg) - 8) // len(side)))
    zpl = V.get(); zf = V.get()
    a(f"v_lshrrev_b32 v{t0}, 2, v{V_LANE}")
    a(f"v_and_b32 v{t0}, 1, v{t0}")
    a(f"s_cmp_eq_u32 s2, 0")
    a(f"s_cselect_b32 s{sT}, 1, 0")
    a(f"v_xor_b32 v{zpl}, s{sT}, v{t0}")
    a(f"v_cmp_eq_u32 vcc, 0, v{zpl}")
    a(f"v_mov_b32 v{zf}, s{sFlag}")
    a(f"v_cndmask_b32 v{zf}, v{zf}, 1.0, vcc")
    a(f"v_mul_u32_u24 v{zad}, {ZPS}, v{zpl}")
    a(f"v_lshrrev_b32 v{t0}, 4, v{V_LANE}")
    a(f"s_lshl_b32 s{sT}, s{S_W}, 3")
    a(f"v_add_u32 v{t0}, s{sT}, v{t0}")
    a(f"v_mul_u32_u24 v{t0}, {ZRS}, v{t0}")
    a(f"v_add_u32 v{zad}, v{zad}, v{t0}")
    a(f"v_lshrrev_b32 v{t0}, 3, v{V_LANE}")
    a(f"v_and_b32 v{t0}, 1, v{t0}")
    a(f"v_lshl_add_u32 v{zad}, v{t0}, 7, v{zad}")
    a(f"v_and_b32 v{t0}, 3, v{V_LANE}")
    a(f"v_lshl_add_u32 v{zad}, v{t0}, 5, v{zad}")
    zz = ss + 16
    for n in range(2):
        a(f"ds_read_b128 {vr(zz+8*n,4)}, v{zad} offset:{ZX + n*4*ZRS}")
        a(f"ds_read_b128 {vr(zz+8*n+4,4)}, v{zad} offset:{ZX + n*4*ZRS + 16}")
    srd(a, 8, P_WS, XPout, XP_SZ)
    for n in range(2):
        x = rawb + 4*n
        for j in range(4):
            a(f"v_lshlrev_b32 v{tmp+2*j}, 16, v{x+j}")
            a(f"v_and_b32 v{tmp+2*j+1}, 0xffff0000, v{x+j}")
        a(f"s_waitcnt lgkmcnt({2 if n == 0 else 0})")
        for j in range(8): a(f"v_fma_f32 v{tmp+j}, v{zz+8*n+j}, v{zf}, v{tmp+j}")
        o = tmp2 + 4 * n
        for j in range(4): a(f"v_cvt_pk_bf16_f32 v{o+j}, v{tmp+2*j}, v{tmp+2*j+1}")
        if n == 0: a(f"buffer_store_dwordx4 {vr(o,4)}, v{offb}, s[8:11], s{sK} offen{g.st}")
        else:
            a(f"s_add_u32 s{sT}, s{sK}, {8*32768}")
            a(f"buffer_store_dwordx4 {vr(o,4)}, v{offb}, s[8:11], s{sT} offen{g.st}")

S_RT, S_CG, S_KK = 32, 33, 34
S_IDLE = 90
def g4_map(g, skip_label=None):
    a = g.a
    a(f"s_min_u32 s24, s{S_X}, 2")
    a(f"s_mul_i32 s25, s{S_X}, 30")
    a(f"s_add_u32 s25, s25, s24")
    a(f"s_cmp_lt_u32 s{S_X}, 2")
    a(f"s_cselect_b32 s24, 31, 30")
    a(f"s_cmp_ge_u32 s{S_L}, s24")
    a(f"s_cselect_b32 s{S_IDLE}, 1, 0")
    a(f"s_add_u32 s25, s25, s{S_L}")
    a(f"s_min_u32 s25, s25, 241")
    a(f"s_cmp_ge_u32 s25, 121")
    a(f"s_cselect_b32 s24, 121, 0")
    a(f"s_cselect_b32 s{S_RT}, 11, 0")
    a(f"s_sub_u32 s25, s25, s24")
    a(f"s_mul_hi_u32 s{S_CG}, s25, 0x1745D175")
    a(f"s_mul_i32 s24, s{S_CG}, 11")
    a(f"s_sub_u32 s25, s25, s24")
    a(f"s_add_u32 s{S_RT}, s{S_RT}, s25")
    a(f"s_lshl_b32 s{S_KK}, s{S_CG}, 2")
    a(f"s_add_u32 s{S_KK}, s{S_KK}, s{S_W}")
    a(f"s_cmp_eq_u32 s{S_IDLE}, 1")
    a(f"s_cselect_b32 s{S_KK}, 43, s{S_KK}")

def g4_weights(g, V, j0=0, j1=32):
    a = g.a
    l16 = V.get()
    srd(a, 16, P_WS, WGU, WGU_SZ)
    a(f"v_lshlrev_b32 v{l16}, 4, v{V_LANE}")
    n = 0
    for gq in range(j0 // 8, (j1 + 7) // 8):
        a(f"s_add_u32 s60, s{S_W}, {gq}")
        a(f"s_and_b32 s60, s60, 3")
        a(f"s_lshl_b32 s60, s60, 13")
        a(f"s_lshl_b32 s61, s{S_KK}, 16")
        a(f"s_add_u32 s61, s61, s60")
        for jj in range(8):
            j = gq * 8 + jj
            if j < j0 or j >= j1: continue
            for p in range(2):
                a(f"s_add_u32 s60, s61, {p*32768 + (jj>>2)*4096}")
                a(f"buffer_load_dwordx4 {vr((2*j+p)*4,4,'a')}, v{l16}, s[16:19], s60 offen offset:{(jj&3)*1024}{g.ld}")
                n += 1
    return n

def g4_pre(g, V):
    a = g.a
    TOK = 32768; SSL = 98304
    st = {}
    t0 = V.get(); t1 = V.get(); dv = V.get(); l16 = V.get()
    sNT, sXo, sM0 = 35, 36, 37
    a(f"s_cmp_eq_u32 s{S_RT}, 21")
    a(f"s_cselect_b32 s{sNT}, 1, 3")
    a(f"v_lshlrev_b32 v{l16}, 4, v{V_LANE}")
    a(f"v_mov_b32 v{dv}, v{l16}")
    a(f"s_mul_i32 s{sXo}, s{S_RT}, {3*32768}")
    a(f"s_lshl_b32 s24, s{S_W}, 13")
    a(f"s_add_u32 s{sXo}, s{sXo}, s24")
    a(f"s_lshl_b32 s{sM0}, s{S_W}, 13")
    ad = V.get(4, 1)
    a(f"v_and_b32 v{t0}, 15, v{V_LANE}")
    a(f"v_lshrrev_b32 v{t1}, 2, v{t0}")
    a(f"v_lshl_add_u32 v{t1}, v{V_HH}, 2, v{t1}")
    a(f"v_lshlrev_b32 v{t1}, 6, v{t1}")
    a(f"v_and_b32 v{t0}, 3, v{t0}")
    a(f"v_lshl_add_u32 v{t1}, v{t0}, 3, v{t1}")
    a(f"v_lshrrev_b32 v{t0}, 4, v{V_LANE}")
    a(f"v_and_b32 v{t0}, 1, v{t0}")
    a(f"v_lshl_add_u32 v{t1}, v{t0}, 5, v{t1}")
    for gq in range(4):
        a(f"s_add_u32 s24, s{S_W}, {gq}")
        a(f"s_and_b32 s24, s24, 3")
        a(f"s_lshl_b32 s24, s24, 13")
        a(f"v_add_u32 v{ad+gq}, s24, v{t1}")
    msk = V.get(); sad = V.get(); srd_ = V.get(); Mk = V.get(16)
    a(f"v_cmp_eq_u32 vcc, 0, v{V_HH}")
    a(f"s_cmp_eq_u32 s{S_W}, 0")
    a(f"s_cselect_b64 s[26:27], vcc, 0")
    a(f"v_mov_b32 v{t0}, 0xffff0000")
    a(f"v_cndmask_b32 v{msk}, -1, v{t0}, s[26:27]")
    a(f"v_lshlrev_b32 v{t0}, 2, v{V_HH}")
    a(f"v_sub_u32 v{t0}, v{V_L31}, v{t0}")
    for r in range(16):
        a(f"v_cmp_eq_u32 vcc, {8*(r>>2) + (r&3)}, v{t0}")
        a(f"v_cndmask_b32 v{Mk+r}, 0, 1.0, vcc")
    a(f"v_lshlrev_b32 v{srd_}, 5, v{V_L31}")
    a(f"v_add_u32 v{srd_}, {SSL}, v{srd_}")
    a(f"v_lshl_add_u32 v{sad}, v{V_HH}, 2, v{srd_}")
    a(f"s_lshl_b32 s24, s{S_W}, 3")
    a(f"v_add_u32 v{sad}, s24, v{sad}")
    a(f"s_mul_i32 s38, s{S_RT}, {3*86*1024}")
    a(f"s_lshl_b32 s25, s{S_KK}, 11")
    a(f"s_add_u32 s38, s38, s25")
    a(f"s_cmp_ge_u32 s{S_KK}, 43")
    a(f"s_cselect_b32 s25, 0x7f000000, 0")
    a(f"s_add_u32 s38, s38, s25")
    st.update(dv=dv, l16=l16, ad=ad, msk=msk, sad=sad, srd_=srd_, Mk=Mk, sNT=sNT, sXo=sXo, sM0=sM0)
    return st

def g4_main(g, V, st, XPin, Hout, side2=None, side2_all=None, side1=None, side2b=None):
    side1 = list(side1 or []); side2b = list(side2b or [])
    a = g.a
    TOK = 32768
    dv, l16, ad, msk, sad, srd_, Mk, sNT, sXo, sM0 = (st[k] for k in ('dv', 'l16', 'ad', 'msk', 'sad', 'srd_', 'Mk', 'sNT', 'sXo', 'sM0'))
    srd(a, 8, P_WS, XPin, XP_SZ)
    srd(a, 12, P_WS, Hout, H_SZ)
    def dma_groups(t):
        out = []
        for mm in range(8):
            out.append([Ins(f"s_add_u32 m0, s{sM0}, {t*TOK + mm*1024}"),
                        Ins(f"s_add_u32 s39, s{sXo}, {mm*1024 + t*32768}"),
                        Ins(f"buffer_load_dwordx4 v{dv}, s[8:11], s39 offen{g.ld} lds")])
        return out
    vm = Cnt(a, "vmcnt", 63); st['vm'] = vm
    st['dtk'] = []
    for grp in dma_groups(0):
        a.items.extend(grp[:-1]); st['dtk'].append(vm.issue(grp[-1].text))
    NR = 5
    fr = V.get(4 * NR)
    acc = V.get(64)
    Dg = V.get(16)
    dg2 = V.get(2)
    kc = V.get(6); et = V.get(24); hb = V.get(8)
    sv = et; fz = hb
    c0 = -2.0 * math.sqrt(2.0 / math.pi) * math.log2(math.e); c1 = c0 * 0.044715
    state = {}
    def mk_epi(t, pk):
        ops = []
        A0 = acc + (t & 1) * 32
        ops.append(("ds", f"ds_read_b128 {vr(sv,4)}, v{srd_} offset:{t*1024}"))
        ops.append(("ds", f"ds_read_b128 {vr(sv+4,4)}, v{srd_} offset:{t*1024+16}"))
        for _ in range(0 if pk else 9): ops.append(None)
        ops.append(("waitds", None))
        for j in range(4): ops.append(f"v_add_f32 v{sv+j}, v{sv+j}, v{sv+4+j}")
        ops.append(f"v_add_f32 v{sv}, v{sv}, v{sv+1}")
        ops.append(f"v_add_f32 v{sv+2}, v{sv+2}, v{sv+3}")
        ops.append(f"v_add_f32 v{sv}, v{sv}, v{sv+2}")
        ops.append(f"v_mul_f32 v{sv}, {fhex(1/512)}, v{sv}")
        ops.append(f"v_add_f32 v{kc+4}, {fhex(1e-5)}, v{sv}")
        ops.append(f"v_rsq_f32 v{sv+1}, v{kc+4}")
        ops.append(f"s_nop 0")
        ops.append(f"v_mul_f32 v{kc}, {fhex(c0)}, v{sv+1}")
        ops.append(f"v_mul_f32 v{sv+2}, v{sv+1}, v{sv+1}")
        ops.append(f"v_mul_f32 v{sv+2}, v{sv+2}, v{sv+1}")
        ops.append(f"v_mul_f32 v{kc+2}, {fhex(c1)}, v{sv+2}")
        k0 = vr(kc, 2); k1 = vr(kc+2, 2); ir = vr(kc+4, 2)
        for f in range(2):
            chains = []
            for ii in range(4):
                i = 4*f + ii
                gg = vr(A0 + 2*i, 2); uu = vr(A0 + 16 + 2*i, 2)
                tq = et + ii * 6
                T1 = vr(tq, 2); T2 = vr(tq+2, 2); T3 = vr(tq+4, 2)
                if pk:
                    chains.append([f"v_pk_mul_f32 {T1}, {gg}, {gg}",
                        f"v_pk_mul_f32 {T3}, {gg}, {uu}",
                        f"v_pk_fma_f32 {T1}, {T1}, {k1}, {k0} op_sel_hi:[1,0,0]",
                        f"v_pk_mul_f32 {T1}, {T1}, {gg}",
                        f"v_exp_f32 v{tq+2}, v{tq}",
                        f"v_exp_f32 v{tq+3}, v{tq+1}",
                        f"v_pk_fma_f32 {T2}, {T2}, {ir}, {ir} op_sel_hi:[1,0,0]",
                        f"v_rcp_f32 v{tq+2}, v{tq+2}",
                        f"v_rcp_f32 v{tq+3}, v{tq+3}",
                        f"v_pk_mul_f32 {T3}, {T3}, {T2}",
                        f"v_cvt_pk_bf16_f32 v{hb+i}, v{tq+4}, v{tq+5}"])
                else:
                    g0 = A0 + 2*i; u0 = A0 + 16 + 2*i
                    chains.append([f"v_mul_f32 v{tq}, v{g0}, v{g0}", f"v_mul_f32 v{tq+1}, v{g0+1}, v{g0+1}",
                        f"v_mul_f32 v{tq+4}, v{g0}, v{u0}", f"v_mul_f32 v{tq+5}, v{g0+1}, v{u0+1}",
                        f"v_fma_f32 v{tq}, v{tq}, v{kc+2}, v{kc}", f"v_fma_f32 v{tq+1}, v{tq+1}, v{kc+2}, v{kc}",
                        f"v_mul_f32 v{tq}, v{tq}, v{g0}", f"v_mul_f32 v{tq+1}, v{tq+1}, v{g0+1}",
                        f"v_exp_f32 v{tq+2}, v{tq}", f"v_exp_f32 v{tq+3}, v{tq+1}",
                        f"v_fma_f32 v{tq+2}, v{tq+2}, v{kc+4}, v{kc+4}", f"v_fma_f32 v{tq+3}, v{tq+3}, v{kc+4}, v{kc+4}",
                        f"v_rcp_f32 v{tq+2}, v{tq+2}", f"v_rcp_f32 v{tq+3}, v{tq+3}",
                        f"v_mul_f32 v{tq+4}, v{tq+4}, v{tq+2}", f"v_mul_f32 v{tq+5}, v{tq+5}, v{tq+3}",
                        f"v_cvt_pk_bf16_f32 v{hb+i}, v{tq+4}, v{tq+5}"])
            for k in range(len(chains[0])):
                for ii in range(4): ops.append(chains[ii][k])
            ops.append(f"s_add_u32 s24, s38, {(t*86 + f)*1024}")
            ops.append(("vm", f"buffer_store_dwordx4 {vr(hb+4*f,4)}, v{l16}, s[12:15], s24 offen{g.st}"))
        return ops
    Ldone = g.lab("g4_done")
    lg = Cnt(a, "lgkmcnt", 15)
    vm = st['vm']
    def emit_op(o):
        if o is None: return
        if isinstance(o, tuple):
            if o[0] == "ds": state['dst'] = lg.issue(o[1])
            elif o[0] == "waitds": lg.wait(state['dst'])
            elif o[0] == "vm": vm.issue(o[1])
        else: a(o)
    def emit_dma(grp):
        a.items.extend(grp[:-1]); return vm.issue(grp[-1].text)
    tick = {}
    adcur = [0]
    def issue_reads(J):
        t, j = divmod(J, 32)
        gq = j >> 3
        if t == 2 and j % 8 == 0:
            a(f"v_add_u32 v{ad+gq}, {TOK}, v{ad+gq}")
        toff = 0 if t < 2 else -TOK
        for rd in range(2):
            off = t*TOK + (j & 7)*1024 + rd*512 + toff
            tick[J] = lg.issue(f"ds_read_b64_tr_b16 {vr(fr + (J % NR)*4 + 2*rd,2)}, v{ad+gq} offset:{off}")
    PF = 4
    dtk = st['dtk']
    dm = dma_groups(1) + dma_groups(2)
    dmt = []
    vm.wait(dtk[PF - 1])
    for J in range(PF): issue_reads(J)
    epi = []
    for J in range(96):
        t, j = divmod(J, 32)
        if j == 0 and t == 1:
            a(f"s_cmp_eq_u32 s{sNT}, 1")
            a(f"s_cbranch_scc1 {Ldone}_1")
        if j == 0:
            if getattr(g, 'fineg4', False): g.stamp(f"g4p{t}")
            epi = mk_epi(t - 1, False) if t > 0 else []
        if j % 2 == 0: lg.wait(tick[min(J + 1, 95)])
        f = fr + (J % NR) * 4
        A0 = acc + (t & 1) * 32
        for p in range(2):
            d = A0 + 16*p
            c = "0" if j == 0 else vr(d, 16)
            a(f"{M32} {vr(d,16)}, {vr((2*j+p)*4,4,'a')}, {vr(f,4)}, {c}")
            if p == 0 and J + PF < 96:
                Jn = J + PF
                if Jn < 8: vm.wait(dtk[Jn])
                if Jn == 8: a("s_barrier")
                issue_reads(Jn)
            if p == 1 and dm and t == 0 and j >= 4 and j % 1 == 0 and len(dmt) < 16:
                dmt.append(emit_dma(dm.pop(0)))
            if p == 0 and t == 1 and side1 and j % 2 == 0:
                for x in side1.pop(0):
                    if x.startswith("buffer"): vm.issue(x)
                    else: a(x)
            if p == 0 and t == 2 and side2b and j % 2 == 0:
                for x in side2b.pop(0):
                    if x.startswith("buffer"): vm.issue(x)
                    else: a(x)
            if p == 1 and t == 2 and side2 and j < len(side2):
                for x in side2[j]:
                    if x.startswith("buffer"): vm.issue(x)
                    else: a(x)
            if j >= 2:
                for _ in range(3):
                    if epi: emit_op(epi.pop(0))
        if j < 8:
            if j == 0:
                a(f"v_and_b32 v{fz}, v{msk}, v{f}")
                for q in range(1, 4): a(f"v_mov_b32 v{fz+q}, v{f+q}")
                a(f"{M32} {vr(Dg,16)}, {vr(fz,4)}, {vr(fz,4)}, 0")
            else:
                a(f"{M32} {vr(Dg,16)}, {vr(f,4)}, {vr(f,4)}, {vr(Dg,16)}")
        if j == 10:
            a(f"v_mul_f32 v{dg2}, v{Dg}, v{Mk}")
            a(f"v_mul_f32 v{dg2+1}, v{Dg+1}, v{Mk+1}")
            for r in range(2, 16): a(f"v_fmac_f32 v{dg2+(r&1)}, v{Dg+r}, v{Mk+r}")
            a(f"v_add_f32 v{dg2}, v{dg2}, v{dg2+1}")
            state['stw'] = lg.issue(f"ds_write_b32 v{sad}, v{dg2} offset:{t*1024}")
        if j == 27:
            if t < 2: vm.wait(dmt[8*t + 7])
            a("s_barrier")
        if j == 31:
            while epi: emit_op(epi.pop(0))
    if getattr(g, 'fineg4', False): g.stamp("g4p3")
    for o in mk_epi(2, True): emit_op(o)
    a(f"s_branch {Ldone}")
    a.label(f"{Ldone}_1")
    lg = Cnt(a, "lgkmcnt", 15)
    a("s_waitcnt lgkmcnt(0)")
    for o in mk_epi(0, True): emit_op(o)
    a.label(Ldone)

S_R64, S_SG, S_K0, S_NK = 40, 41, 42, 43
NKMAX = 22
def g5_map(g):
    a = g.a
    a(f"s_lshr_b32 s24, s{S_L}, 3")
    a(f"s_lshl_b32 s{S_R64}, s{S_X}, 2")
    a(f"s_add_u32 s{S_R64}, s{S_R64}, s24")
    a(f"s_and_b32 s{S_SG}, s{S_L}, 7")
    a(f"s_mul_i32 s{S_K0}, s{S_W}, 22")
    a(f"s_cmp_eq_u32 s{S_W}, 3")
    a(f"s_cselect_b32 s24, 1, 0")
    a(f"s_sub_u32 s{S_K0}, s{S_K0}, s24")

ACC5 = 176
def g5w_setup(g, vo, final):
    a = g.a
    srd(a, 16, P_WS, WDF if final else WDP, WDP_SZ)
    if final:
        a(f"s_lshl_b32 s24, s{S_W}, 3")
        a(f"v_xor_b32 v{vo}, s24, v{V_LANE}")
        a(f"v_lshlrev_b32 v{vo}, 4, v{vo}")
    else:
        a(f"v_lshlrev_b32 v{vo}, 4, v{V_LANE}")
    a(f"s_mul_i32 s47, s{S_SG}, {2*86*1024}")
    a(f"s_lshl_b32 s24, s{S_K0}, 10")
    a(f"s_add_u32 s47, s47, s24")
    a(f"s_cmp_ge_u32 s{S_W}, 2")
    a(f"s_cselect_b32 s48, 0x7f000000, 0")
    a(f"s_add_u32 s48, s48, s47")
    groups = []
    for i in range(22):
        grp = []
        for tile in range(2):
            base = 47 if i < 21 else 48
            grp.append(f"s_add_u32 s63, s{base}, {tile*86*1024 + (i>>2)*4096}")
            grp.append(f"buffer_load_dwordx4 {vr((i*2+tile)*4,4,'a')}, v{vo}, s[16:19], s63 offen offset:{(i&3)*1024}{g.ld}")
        groups.append(grp)
    return groups

def g5_resid_load(g, V, XPres):
    a = g.a
    res = V.get(8); vo = V.get()
    srd(a, 12, P_WS, XPres, XP_SZ)
    a(f"v_lshlrev_b32 v{vo}, 6, v{V_L31}")
    a(f"v_lshl_add_u32 v{vo}, v{V_HH}, 3, v{vo}")
    a(f"s_lshl_b32 s24, s{S_SG}, 12")
    a(f"s_lshl_b32 s25, s{S_R64}, 16")
    a(f"s_add_u32 s24, s24, s25")
    a(f"s_lshl_b32 s25, s{S_W}, 4")
    a(f"s_add_u32 s24, s24, s25")
    for tr in range(2):
        for tc in range(2):
            a(f"s_add_u32 s25, s24, {tr*32768 + tc*2048}")
            a(f"buffer_load_dwordx2 {vr(res+(2*tr+tc)*2,2)}, v{vo}, s[12:15], s25 offen{g.ld}")
    return res

STG7 = 65536
def g7_stg(w_sgpr_out, a):
    a(f"s_lshl_b32 s{w_sgpr_out}, s{S_W}, 14")
    a(f"s_cmp_ge_u32 s{S_W}, 2")
    a(f"s_cselect_b32 s24, {101376 - 32768}, 0")
    a(f"s_add_u32 s{w_sgpr_out}, s{w_sgpr_out}, s24")

def g7_setup(g, V):
    a = g.a
    GA = V.get(64); vo = V.get(); dv = V.get()
    srd(a, 84, P_WS, GF, GF_SZ)
    a(f"v_lshlrev_b32 v{dv}, 4, v{V_LANE}")
    a(f"s_lshl_b32 s92, s{S_W}, 13")
    a(f"s_lshl_b32 s24, s{S_R64}, 16")
    a(f"s_add_u32 s92, s92, s24")
    g7_stg(93, a)
    a(f"s_lshl_b32 s24, s{S_W}, 3")
    a(f"v_xor_b32 v{vo}, s24, v{V_LANE}")
    a(f"v_lshlrev_b32 v{vo}, 4, v{vo}")
    a(f"s_lshl_b32 s94, s{S_SG}, 16")
    a(f"s_lshl_b32 s24, s{S_W}, 13")
    a(f"s_add_u32 s94, s94, s24")
    gf = []
    for tr in range(2):
        for i in range(8):
            gf.append([f"s_add_u32 s60, s94, {tr*32768 + (i>>2)*4096}",
                       f"buffer_load_dwordx4 {vr(GA+(tr*8+i)*4,4)}, v{vo}, s[84:87], s60 offen offset:{(i&3)*1024}{g.ld}"])
    dm = []
    for tc in range(2):
        for mm in range(8):
            dm.append([f"s_add_u32 m0, s93, {tc*8192 + mm*1024}",
                       f"s_add_u32 s60, s92, {mm*1024 + tc*32768}",
                       f"buffer_load_dwordx4 v{dv}, s[8:11], s60 offen{g.ld} lds"])
    return dict(GA=GA, gf=gf, dm=dm)

def g7_compute(g, V, st):
    a = g.a
    m = V.mark()
    GA = st['GA']
    B = V.get(64); ad = V.get(); t = V.get()
    a(f"v_and_b32 v{t}, 15, v{V_LANE}")
    a(f"v_lshrrev_b32 v{ad}, 2, v{t}")
    a(f"v_lshl_add_u32 v{ad}, v{V_HH}, 2, v{ad}")
    a(f"v_lshlrev_b32 v{ad}, 6, v{ad}")
    a(f"v_and_b32 v{t}, 3, v{t}")
    a(f"v_lshl_add_u32 v{ad}, v{t}, 3, v{ad}")
    a(f"v_lshrrev_b32 v{t}, 4, v{V_LANE}")
    a(f"v_and_b32 v{t}, 1, v{t}")
    a(f"v_lshl_add_u32 v{ad}, v{t}, 5, v{ad}")
    a(f"v_add_u32 v{ad}, s93, v{ad}")
    for i in range(8):
        for tc in range(2):
            for rd in range(2):
                a(f"ds_read_b64_tr_b16 {vr(B+(tc*8+i)*4+2*rd,2)}, v{ad} offset:{tc*8192 + i*1024 + rd*512}")
        if i == 2: a("s_waitcnt lgkmcnt(8)") if False else None
    for i in range(8):
        a(f"s_waitcnt lgkmcnt({min(15, 4*(7-i))})")
        for tr in range(2):
            for tc in range(2):
                d = ACC5 + (2*tr+tc)*16
                c = "0" if i == 0 else vr(d, 16, 'a')
                a(f"{M32} {vr(d,16,'a')}, {vr(GA+(tr*8+i)*4,4)}, {vr(B+(tc*8+i)*4,4)}, {c}")
    V.release(m)

def g5_main(g, V, Hin, final, res=None, XPout=None, SSout=None):
    a = g.a
    srd(a, 8, P_WS, Hin, H_SZ)
    Hf = V.get(176); vo = V.get()
    if final:
        a(f"v_lshlrev_b32 v{vo}, 4, v{V_LANE}")
    else:
        a(f"s_lshl_b32 s24, s{S_W}, 3")
        a(f"v_xor_b32 v{vo}, s24, v{V_LANE}")
        a(f"v_lshlrev_b32 v{vo}, 4, v{vo}")
    a(f"s_mul_i32 s25, s{S_R64}, {2*86*1024}")
    a(f"s_lshl_b32 s24, s{S_K0}, 10")
    a(f"s_add_u32 s25, s25, s24")
    vm = Cnt(a, "vmcnt", 63)
    tk = {}
    def ld(i):
        for tile in range(2):
            a(f"s_add_u32 s24, s25, {tile*86*1024 + (i>>2)*4096}")
            tk[i] = vm.issue(f"buffer_load_dwordx4 {vr(Hf+(i*2+tile)*4,4)}, v{vo}, s[8:11], s24 offen offset:{(i&3)*1024}{g.ld}")
    def mm(i, mid=None):
        for tr in range(2):
            if tr == 1 and mid: mid()
            for tc in range(2):
                d = ACC5 + (2*tr+tc)*16
                c = "0" if (i == 0 and not final) else vr(d, 16, 'a')
                if final: A = vr((i*2+tr)*4, 4, 'a'); B = vr(Hf+(i*2+tc)*4, 4)
                else: A = vr(Hf+(i*2+tr)*4, 4); B = vr((i*2+tc)*4, 4, 'a')
                a(f"{M32} {vr(d,16,'a')}, {A}, {B}, {c}")
    AH = 6
    L = g.lab("g5l")
    a(f"s_cmp_ge_u32 s{S_W}, 2")
    a(f"s_cbranch_scc1 {L}")
    for tile in range(2):
        a(f"s_add_u32 s24, s25, {tile*86*1024 + (21>>2)*4096}")
        a(f"buffer_load_dwordx4 {vr(Hf+(21*2+tile)*4,4)}, v{vo}, s[8:11], s24 offen offset:{(21&3)*1024}{g.ld}")
    a.label(L)
    for i in range(AH): ld(i)
    if getattr(g, 'fine', False): g.stamp("g5_iss")
    retry = []
    def check(i):
        if not getattr(g, 'dpoll', False): return
        Lb = "NF_" + g.lab("g5b"); Lr = g.lab("g5r")
        a.label(Lb)
        a(f"v_cmp_eq_u32 vcc, -1, v{Hf+(i*2)*4}")
        a(f"v_cmp_eq_u32 s[26:27], -1, v{Hf+(i*2+1)*4}")
        a(f"s_or_b64 s[26:27], s[26:27], vcc")
        a(f"s_cbranch_scc1 {Lr} ; nf")
        a.label(Lb + "x")
        retry.append((i, Lb, Lr))
    if getattr(g, 'dpoll', False): a("s_mov_b32 s31, 0")
    for i in range(21):
        vm.wait(tk[i])
        check(i)
        mm(i, (lambda: ld(i + AH)) if i + AH < 21 else None)
    if getattr(g, 'fine', False): g.stamp("g5_mm")
    L2 = g.lab("g5m")
    a(f"s_cmp_ge_u32 s{S_W}, 2")
    a(f"s_cbranch_scc1 {L2}")
    check(21)
    mm(21)
    a.label(L2)
    if retry:
        Lskip = g.lab("g5rs")
        a(f"s_branch {Lskip}")
        for (i, Lb, Lr) in retry:
            a.label(Lr)
            for tile in range(2):
                a(f"s_add_u32 s24, s25, {tile*86*1024 + (i>>2)*4096}")
                a(f"buffer_load_dwordx4 {vr(Hf+(i*2+tile)*4,4)}, v{vo}, s[8:11], s24 offen offset:{(i&3)*1024} sc1")
            a(f"s_add_u32 s31, s31, 1")
            a("s_waitcnt vmcnt(0)")
            a(f"s_cmp_lt_u32 s31, {SPIN_MAX}")
            a(f"s_cbranch_scc1 {Lb} ; nf")
            a(f"s_branch {Lb}x ; nf")
        a.label(Lskip)
    Hm = Hf
    reduce_write(g, V, lambda k, grp: ACC5 + k*16 + grp*4, 'a', 'g')
    a("s_waitcnt lgkmcnt(0)")
    a("s_barrier")
    part = Hf; val = Hf + 48; own = Hf + 64
    if getattr(g, 'fine', False): g.stamp("g5_rw")
    reduce_read(g, V, part)
    for k in range(4):
        for t in range(4):
            a(f"v_accvgpr_read_b32 v{own+4*k+t}, a{ACC5+k*16+t}")
    if not final:
        rx = Hf + 80
        for k in range(4):
            for j in range(2):
                a(f"v_lshlrev_b32 v{rx+4*k+2*j}, 16, v{res+2*k+j}")
                a(f"v_and_b32 v{rx+4*k+2*j+1}, 0xffff0000, v{res+2*k+j}")
        for r in range(16): a(f"v_add_f32 v{own+r}, v{own+r}, v{rx+r}")
    a("s_waitcnt lgkmcnt(0)")
    for r in range(16):
        a(f"v_add_f32 v{val+r}, v{own+r}, v{part+r}")
        a(f"v_add_f32 v{part+16+r}, v{part+16+r}, v{part+32+r}")
    for r in range(16): a(f"v_add_f32 v{val+r}, v{val+r}, v{part+16+r}")
    V2 = Alloc(Hf + 96, Hf + 176)
    if not final:
        a(f"s_lshl_b32 s28, s{S_R64}, 6")
        stats_out(g, V2, val, S_SG, 28, SSout, None)
        planes_out(g, V2, val, S_R64, S_SG, XPout, OT=49152)
    else:
        srd(a, 8, P_OUT, 0, 2048 * 512 * 2)
        def rowfn():
            vo2 = V2.get(); t = V2.get()
            a(f"v_lshrrev_b32 v{t}, 3, v0")
            a(f"v_lshlrev_b32 v{vo2}, 15, v{t}")
            a(f"v_and_b32 v{t}, 7, v0")
            a(f"v_lshl_add_u32 v{vo2}, v{t}, 4, v{vo2}")
            a(f"s_lshl_b32 s24, s{S_R64}, 10")
            a(f"s_lshl_b32 s25, s{S_SG}, 7")
            a(f"s_add_u32 s24, s24, s25")
            a(f"s_add_u32 s25, s24, {32*32768}")
            return vo2, ["s24", "s25"], ""
        epi_out(g, V2, val, 49152, 8, rowfn)

NINIT = 20
RF = SYNC + 16384
SYNC_SZ = NINIT * 1024
SPIN_MAX = 1 << 20
def sync_init(g):
    a = g.a
    L = g.lab("noinit")
    a(f"s_cmp_ge_u32 s2, {NINIT}")
    a(f"s_cbranch_scc1 {L}")
    a(f"s_cmp_lg_u32 s{S_W}, 0")
    a(f"s_cbranch_scc1 {L}")
    srd(a, 8, P_WS, SYNC, SYNC_SZ)
    for i in range(4): a(f"v_mov_b32 v{8+i}, 0")
    a(f"v_lshlrev_b32 v4, 4, v{V_LANE}")
    a(f"s_lshl_b32 s24, s2, 10")
    a(f"buffer_store_dwordx4 v[8:11], v4, s[8:11], s24 offen sc0 sc1")
    a("s_waitcnt vmcnt(0)")
    srd(a, 8, P_DBG, 0, 256)
    a("v_mov_b32 v8, 1")
    a("v_mov_b32 v4, 0")
    a("s_mov_b64 exec, 1")
    a("buffer_atomic_add v8, v4, s[8:11], 0 offen sc1")
    a("s_mov_b64 exec, -1")
    a.label(L)

def poll(g, srdreg, vaddr, vdata, nlanes, target, soff="0"):
    a = g.a
    Lp = g.lab("poll"); Ld = g.lab("polld")
    a(f"s_mov_b64 exec, {hex((1 << nlanes) - 1)}")
    a(f"s_mov_b32 s31, 0")
    a.label(Lp)
    a(f"buffer_load_dword v{vdata}, v{vaddr}, s[{srdreg}:{srdreg+3}], {soff} offen sc0 sc1")
    a(f"s_add_u32 s31, s31, 1")
    a("s_waitcnt vmcnt(0)")
    a(f"v_cmp_le_u32 vcc, {hex(target)}, v{vdata}")
    a(f"s_cmp_eq_u64 vcc, exec")
    a(f"s_cbranch_scc1 {Ld}")
    a(f"s_cmp_lt_u32 s31, {SPIN_MAX}")
    a(f"s_cbranch_scc1 {Lp}")
    a.label(Ld)
    a("s_mov_b64 exec, -1")

def arrive(g, b, vt, first=False, younger=0):
    a = g.a
    L = g.lab("arr")
    a(f"s_waitcnt vmcnt({younger}) lgkmcnt(0)")
    a("s_barrier")
    a(f"s_cmp_lg_u32 s{S_W}, 0")
    a(f"s_cbranch_scc1 {L}")
    if first:
        Lok = g.lab("dbgok")
        a(f"v_readfirstlane_b32 s24, v{first}")
        a(f"s_cmp_ge_u32 s24, {NINIT}")
        a(f"s_cbranch_scc1 {Lok}")
        srd(a, 4, P_DBG, 0, 256)
        a(f"v_mov_b32 v{vt}, 0")
        poll(g, 4, vt, vt + 1, 1, NINIT)
        a.label(Lok)
    srd(a, 4, P_WS, SYNC, SYNC_SZ)
    a(f"v_lshlrev_b32 v{vt}, 3, v{V_LANE}")
    a(f"v_add_u32 v{vt}, s{S_X}, v{vt}")
    a(f"v_lshlrev_b32 v{vt}, 7, v{vt}")
    a(f"v_mov_b32 v{vt+1}, 1")
    a(f"s_mov_b64 exec, 0xffff")
    a(f"buffer_atomic_add v{vt+1}, v{vt}, s[4:7], 0 offen offset:{4*b} sc1")
    a(f"s_mov_b64 exec, -1")
    a.label(L)

def wait(g, b, vt, target=32):
    a = g.a
    L = g.lab("wt")
    a(f"s_cmp_lg_u32 s{S_W}, 0")
    a(f"s_cbranch_scc1 {L}")
    srd(a, 4, P_WS, SYNC + 4 * b, SYNC_SZ - 4 * b)
    a(f"s_and_b32 s24, s{S_L}, 15")
    a(f"s_lshl_b32 s24, s24, 3")
    a(f"v_add_u32 v{vt}, s24, v{V_LANE}")
    a(f"v_lshlrev_b32 v{vt}, 7, v{vt}")
    poll(g, 4, vt, vt + 1, 8, target)
    a.label(L)
    a("s_barrier")

def arrive_row(g, ph, vt, younger=0):
    a = g.a
    L = g.lab("arr")
    a(f"s_waitcnt vmcnt({younger}) lgkmcnt(0)")
    a("s_barrier")
    a(f"s_cmp_lg_u32 s{S_W}, 0")
    a(f"s_cbranch_scc1 {L}")
    srd(a, 4, P_WS, RF, 4096)
    a(f"s_lshl_b32 s24, s{S_RT}, 7")
    a(f"v_mov_b32 v{vt}, 0")
    a(f"v_mov_b32 v{vt+1}, 1")
    a(f"s_mov_b64 exec, 1")
    a(f"buffer_atomic_add v{vt+1}, v{vt}, s[4:7], s24 offen offset:{4*ph} sc1")
    a(f"s_mov_b64 exec, -1")
    a.label(L)

def wait_row(g, ph, vt):
    a = g.a
    L = g.lab("wt")
    a(f"s_cmp_lg_u32 s{S_W}, 0")
    a(f"s_cbranch_scc1 {L}")
    srd(a, 4, P_WS, RF + 4 * ph, 4096 - 4 * ph)
    a(f"s_lshl_b32 s24, s{S_R64}, 1")
    a(f"v_add_u32 v{vt}, s24, v{V_LANE}")
    a(f"v_mul_u32_u24 v{vt}, 43691, v{vt}")
    a(f"v_lshrrev_b32 v{vt}, 17, v{vt}")
    a(f"v_lshlrev_b32 v{vt}, 7, v{vt}")
    poll(g, 4, vt, vt + 1, 2, 11)
    a.label(L)
    a("s_barrier")


def code_prefetch(g, start_label, end_label):
    a = g.a
    L = g.lab("pc")
    a("s_getpc_b64 s[26:27]")
    a.label(L)
    a(f"s_sub_u32 s26, s26, {L}-{start_label}")
    a("s_subb_u32 s27, s27, 0")
    a(f"s_lshl_b32 s24, s{S_L}, 12")
    a("v_lshlrev_b32 v4, 4, v0")
    a("v_add_u32 v4, s24, v4")
    a(f"s_mov_b32 s24, {end_label}-{start_label}-16")
    a("v_cmp_gt_u32 vcc, s24, v4")
    a("s_and_saveexec_b64 s[28:29], vcc")
    a(f"s_cbranch_execz {L}_skip")
    a("global_load_dwordx4 v[244:247], v4, s[26:27]")
    a.label(f"{L}_skip")
    a("s_mov_b64 exec, s[28:29]")


def dbg_load(g, vdst, vz):
    a = g.a
    srd(a, 4, P_DBG, 0, 256)
    a(f"v_mov_b32 v{vz}, 0")
    a(f"buffer_load_dword v{vdst}, v{vz}, s[4:7], 0 offen sc0 sc1")


def p1_touch(g, sRT, sSG):
    a = g.a
    L1 = g.lab("t1"); L2 = g.lab("t2"); L3 = g.lab("t3"); Le = g.lab("te"); Lb = g.lab("tb")
    a(f"s_cmp_eq_u32 s{S_W}, 0"); a(f"s_cbranch_scc1 {L1}")
    a(f"s_cmp_eq_u32 s{S_W}, 3"); a(f"s_cbranch_scc1 {L3}")
    a.label(L2)
    a(f"s_cmp_eq_u32 s{S_W}, 1")
    a(f"s_cselect_b32 s28, s{P_WG}, s{P_WU}")
    a(f"s_cselect_b32 s29, s{P_WG+1}, s{P_WU+1}")
    a(f"s_lshl_b32 s24, s{sSG}, 6")
    a(f"v_add_u32 v4, s24, v{V_LANE}")
    a(f"v_mul_u32_u24 v4, 2752, v4")
    a(f"s_lshl_b32 s24, s{sRT}, 6")
    a(f"v_add_u32 v4, s24, v4")
    a(f"global_load_dword a240, v4, s[28:29]")
    a(f"s_cmp_ge_u32 s{sRT}, 11"); a(f"s_cbranch_scc1 {Le}")
    a(f"v_add_u32 v4, {32*64}, v4")
    a(f"global_load_dword a241, v4, s[28:29]")
    a(f"s_branch {Le}")
    a.label(L1)
    a(f"v_lshrrev_b32 v4, 3, v{V_LANE}")
    a(f"s_lshl_b32 s24, s{sSG}, 3")
    a(f"v_add_u32 v4, s24, v4")
    a(f"v_lshlrev_b32 v4, 15, v4")
    a(f"v_and_b32 v5, 7, v{V_LANE}")
    a(f"v_lshl_add_u32 v4, v5, 7, v4")
    a(f"s_lshl_b32 s24, s{sRT}, 10")
    a(f"v_add_u32 v4, s24, v4")
    a(f"global_load_dword a240, v4, s[{P_X}:{P_X+1}]")
    a(f"s_branch {Le}")
    a.label(L3)
    a(f"s_sub_u32 s25, s{sRT}, 11")
    a(f"s_cmp_eq_u32 s{sRT}, 0")
    a(f"s_cselect_b32 s25, 21, s25")
    a(f"s_cmp_gt_u32 s25, 21"); a(f"s_cbranch_scc1 {Le}")
    a(f"s_lshl_b32 s25, s25, 6")
    a(f"s_lshl_b32 s24, s{sSG}, 3")
    a(f"s_add_u32 s24, s24, s25")
    a(f"v_lshrrev_b32 v4, 3, v{V_LANE}")
    a(f"v_add_u32 v4, s24, v4")
    a(f"v_min_u32 v4, 1375, v4")
    a(f"v_lshlrev_b32 v4, 10, v4")
    a(f"v_and_b32 v5, 7, v{V_LANE}")
    a(f"v_lshl_add_u32 v4, v5, 7, v4")
    a(f"global_load_dword a240, v4, s[{P_WD}:{P_WD+1}]")
    a.label(Le)

FS = 0
P1_STG = {2: 32768, 3: 65536, 0: 0, 1: 98304}
P1_OT = 131072
AF = 0
AA = 128
def aF(u, ks): return AF + (u * 16 + ks) * 4

def p1_genF(g, V, sSG):
    a = g.a
    m = V.mark()
    sl = V.get(); fk = V.get(); ab = V.get(); c_ = V.get(); t = V.get(); t2 = V.get(); ar = V.get(16); fd = V.get(); pk = V.get(8); wad = V.get()
    a(f"v_lshlrev_b32 v{t}, 3, v{V_HH}")
    a(f"v_cvt_f32_u32 v{fd}, v{t}")
    a(f"v_lshlrev_b32 v{wad}, 4, v{V_LANE}")
    a(f"s_sub_u32 s25, s{S_W}, 2")
    a(f"s_lshl_b32 s24, s25, 14")
    a(f"v_add_u32 v{wad}, s24, v{wad}")
    a(f"s_lshl_b32 s24, s{sSG}, 6")
    a(f"s_lshl_b32 s25, s25, 5")
    a(f"s_add_u32 s24, s24, s25")
    a(f"v_add_u32 v{sl}, s24, v{V_L31}")
    a(f"v_lshrrev_b32 v{t}, 1, v{sl}")
    a(f"v_and_b32 v{t2}, 1, v{sl}")
    a(f"v_cmp_eq_u32 vcc, 1, v{sl}")
    a(f"v_mov_b32 v{c_}, 256")
    a(f"v_cndmask_b32 v{t}, v{t}, v{c_}, vcc")
    a(f"v_mov_b32 v{c_}, 0")
    a(f"v_cndmask_b32 v{t2}, v{t2}, v{c_}, vcc")
    a(f"v_cvt_f32_u32 v{fk}, v{t}")
    a(f"v_mul_f32 v{fk}, {fhex(1/512)}, v{fk}")
    a(f"v_cvt_f32_u32 v{ab}, v{t2}")
    a(f"v_mul_f32 v{ab}, {fhex(0.25)}, v{ab}")
    a(f"v_fmac_f32 v{ab}, v{fk}, v{fd}")
    for ks in range(16):
        r = ar + 8*(ks & 1); p = pk + 4*(ks & 1)
        for j in range(8): a(f"v_fmamk_f32 v{r+j}, v{fk}, {fhex(float(16*ks+j))}, v{ab}")
        for j in range(8): a(f"v_fract_f32 v{r+j}, v{r+j}")
        for j in range(8): a(f"v_cos_f32 v{r+j}, v{r+j}")
        for j in range(4): a(f"v_cvt_pk_bf16_f32 v{p+j}, v{r+2*j}, v{r+2*j+1}")
        a(f"ds_write_b128 v{wad}, {vr(p,4)} offset:{FS + ks*1024}")
    V.release(m)

def p1_readF(g, V):
    a = g.a
    m = V.mark(); rad = V.get()
    a(f"v_lshlrev_b32 v{rad}, 4, v{V_LANE}")
    for u in range(2):
        for ks in range(16):
            a(f"ds_read_b128 {vr(aF(u,ks),4,'a')}, v{rad} offset:{FS + u*16384 + ks*1024}")
            if (u*16 + ks) % 12 == 11: a("s_waitcnt lgkmcnt(4)")
    a("s_waitcnt lgkmcnt(0)")
    V.release(m)

def rows_issue(g, V, base_ptr, nbytes, s_rowbase, row_shift, part=None, vo=None):
    a = g.a
    order = list(range(0, 4)) + list(range(16, 20)) + list(range(4, 8)) + list(range(20, 24)) + list(range(8, 12)) + list(range(24, 28)) + list(range(12, 16)) + list(range(28, 32))
    if True:
        if vo is None: vo = V.get()
        srd(a, 52, base_ptr, 0, nbytes)
        a(f"v_lshlrev_b32 v{vo}, {row_shift}, v{V_L31}")
        a(f"v_lshl_add_u32 v{vo}, v{V_HH}, 4, v{vo}")
    sel = order if part is None else (order[:16] if part == 0 else order[16:])
    for ks in sel:
        a(f"buffer_load_dwordx4 {vr(AA + ks*4, 4, 'a')}, v{vo}, s[52:55], s{s_rowbase} offen offset:{ks*32}")
    return vo

def unit_rows_main(g, V, acc):
    a = g.a
    order = [(0, 28), (4, 20), (8, 12), (12, 4)]
    for q in range(4):
        a(f"s_waitcnt vmcnt({24 - 8*q})")
        for ks in range(4*q, 4*q + 4):
            for hf in range(2):
                for u in range(2):
                    d = acc + (hf*2 + u)*16
                    c = "0" if ks == 0 else vr(d, 16)
                    a(f"{M32} {vr(d,16)}, {vr(AA + (ks + 16*hf)*4, 4, 'a')}, {vr(aF(u,ks),4,'a')}, {c}")

def lane_sign_scale(g, V, sSG):
    a = g.a
    sg_ = V.get(); sc0 = V.get(); t = V.get()
    a(f"v_lshlrev_b32 v{t}, 30, v{V_L31}")
    a(f"v_and_b32 v{t}, 0x80000000, v{t}")
    a(f"v_or_b32 v{sg_}, 0x3f800000, v{t}")
    a(f"v_cmp_gt_u32 vcc, 2, v{V_L31}")
    a(f"s_cmp_eq_u32 s{sSG}, 0")
    a(f"s_cselect_b64 s[26:27], vcc, 0")
    a(f"v_mov_b32 v{sc0}, {fhex(1/16)}")
    a(f"v_mov_b32 v{t}, {fhex(1/16/math.sqrt(2))}")
    a(f"v_cndmask_b32 v{sc0}, v{sc0}, v{t}, s[26:27]")
    return sg_, sc0

def unit_rows_combine(g, V, acc, sSG):
    a = g.a
    sg_, sc0 = lane_sign_scale(g, V, sSG)
    for u in range(2):
        for r in range(16):
            a(f"v_fma_f32 v{acc+u*16+r}, v{acc+32+u*16+r}, v{sg_}, v{acc+u*16+r}")
        for r in range(16):
            if u == 0: a(f"v_mul_f32 v{acc+r}, v{acc+r}, v{sc0}")
            else: a(f"v_mul_f32 v{acc+16+r}, {fhex(1/16)}, v{acc+16+r}")

def unitX_epi(g, V, acc, sRT, sSG):
    a = g.a
    unit_rows_combine(g, V, acc, sSG)
    val = acc
    if getattr(g, 'finex', False): g.stamp("x_comb")
    sq = acc + 32; tmp = acc + 48
    msk = V.get(); pk = V.get(16); wad = V.get(); rad = V.get(); o = V.get(16); t = V.get()
    a(f"v_cmp_eq_u32 vcc, 0, v{V_L31}")
    a(f"s_cmp_eq_u32 s{sSG}, 0")
    a(f"s_cselect_b64 s[26:27], vcc, 0")
    a(f"v_cndmask_b32 v{msk}, 1.0, 0, s[26:27]")
    for u in range(2):
        for j in range(8): a(f"v_cvt_pk_bf16_f32 v{pk+u*8+j}, v{val+u*16+2*j}, v{val+u*16+2*j+1}")
    a(f"s_mul_i32 s25, s{S_W}, 6144")
    a(f"s_add_u32 s25, s25, {P1_OT}")
    a(f"v_mul_u32_u24 v{wad}, 80, v{V_L31}")
    a(f"v_lshl_add_u32 v{wad}, v{V_HH}, 3, v{wad}")
    a(f"v_add_u32 v{wad}, s25, v{wad}")
    for u in range(2):
        for gq in range(4):
            a(f"ds_write_b64 v{wad}, {vr(pk+u*8+2*gq,2)} offset:{u*32*80 + gq*16}")
    a(f"v_lshrrev_b32 v{t}, 2, v{V_LANE}")
    a(f"v_mul_u32_u24 v{rad}, 80, v{t}")
    a(f"v_and_b32 v{t}, 3, v{V_LANE}")
    a(f"v_lshl_add_u32 v{rad}, v{t}, 4, v{rad}")
    a(f"v_add_u32 v{rad}, s25, v{rad}")
    for r in range(16):
        a(f"v_mul_f32 v{tmp+r}, v{val+r}, v{msk}")
        a(f"v_mul_f32 v{sq+r}, v{val+16+r}, v{val+16+r}")
    for r in range(16): a(f"v_fmac_f32 v{sq+r}, v{tmp+r}, v{tmp+r}")
    if getattr(g, 'finex', False): g.stamp("x_sq")
    a("s_waitcnt lgkmcnt(0)")
    for n in range(4): a(f"ds_read_b128 {vr(o+4*n,4)}, v{rad} offset:{n*16*80}")
    srd(a, 8, P_WS, XP[0], XP_SZ)
    a(f"v_lshlrev_b32 v{t}, 4, v{V_LANE}")
    a(f"s_lshl_b32 s24, s{sRT}, 16")
    a(f"s_lshl_b32 s26, s{S_W}, 15")
    a(f"s_add_u32 s24, s24, s26")
    a(f"s_lshl_b32 s26, s{sSG}, 12")
    a(f"s_add_u32 s24, s24, s26")
    for n in range(4):
        a(f"s_waitcnt lgkmcnt({3-n})")
        a(f"buffer_store_dwordx4 {vr(o+4*n,4)}, v{t}, s[8:11], s24 offen offset:{n*1024}{g.st}")
    if getattr(g, 'finex', False): g.stamp("x_st")
    sum32(g, [sq+i for i in range(16)], [tmp+i for i in range(16)])
    if getattr(g, 'finex', False): g.stamp("x_sum")
    a(f"v_lshlrev_b32 v{wad}, 4, v{V_HH}")
    a(f"s_add_u32 s25, s25, 5376")
    a(f"v_add_u32 v{wad}, s25, v{wad}")
    a(f"s_mov_b32 s26, 1"); a(f"s_mov_b32 s27, 1")
    a(f"s_mov_b64 exec, s[26:27]")
    for gq in range(4): a(f"ds_write_b128 v{wad}, {vr(sq+4*gq,4)} offset:{gq*32}")
    a(f"s_mov_b64 exec, -1")
    a(f"v_lshlrev_b32 v{t}, 4, v{V_LANE}")
    a(f"v_add_u32 v{rad}, s25, v{t}")
    a("s_waitcnt lgkmcnt(0)")
    a(f"s_mov_b64 exec, 0xff")
    a(f"ds_read_b128 {vr(o,4)}, v{rad}")
    srd(a, 12, P_WS, SS[0], SS_SZ)
    a(f"s_lshl_b32 s24, s{sSG}, 13")
    a(f"s_lshl_b32 s26, s{sRT}, 8")
    a(f"s_add_u32 s24, s24, s26")
    a(f"s_lshl_b32 s26, s{S_W}, 7")
    a(f"s_add_u32 s24, s24, s26")
    a("s_waitcnt lgkmcnt(0)")
    a(f"buffer_store_dwordx4 {vr(o,4)}, v{t}, s[12:15], s24 offen{g.st}")
    a(f"s_mov_b64 exec, -1")

def unitD_epi(g, V, acc, sFU, sSG):
    a = g.a
    unit_rows_combine(g, V, acc, sSG)
    pk = acc + 32; t = V.get()
    for u in range(2):
        for j in range(8): a(f"v_cvt_pk_bf16_f32 v{pk+u*8+j}, v{acc+u*16+2*j}, v{acc+u*16+2*j+1}")
    srd(a, 8, P_WS, WDP, WDP_SZ)
    a(f"v_lshlrev_b32 v{t}, 4, v{V_LANE}")
    a(f"s_mul_i32 s24, s{sSG}, {2*86*1024}")
    a(f"s_lshl_b32 s25, s{sFU}, 11")
    a(f"s_add_u32 s24, s24, s25")
    for u in range(2):
        a(f"s_add_u32 s25, s24, {u*86*1024}")
        for f in range(2):
            a(f"buffer_store_dwordx4 {vr(pk+u*8+4*f,4)}, v{t}, s[8:11], s25 offen offset:{f*1024}{g.st}")

def unitW_issue(g, V, sNT, s_stg):
    a = g.a
    vo = V.get(); t = V.get()
    a(f"s_and_b32 s49, s{sNT}, 1")
    a(f"s_cmp_eq_u32 s49, 0")
    a(f"s_cselect_b32 s56, s{P_WG}, s{P_WU}")
    a(f"s_cselect_b32 s57, s{P_WG+1}, s{P_WU+1}")
    a(f"s_mov_b32 s58, {hex(512*1376*2)}")
    a(f"s_mov_b32 s59, 0x00020000")
    a(f"v_lshrrev_b32 v{t}, 2, v{V_LANE}")
    a(f"v_mul_u32_u24 v{vo}, 2752, v{t}")
    a(f"v_and_b32 v{t}, 3, v{V_LANE}")
    a(f"v_lshl_add_u32 v{vo}, v{t}, 4, v{vo}")
    a(f"s_lshr_b32 s50, s{sNT}, 1")
    a(f"s_lshl_b32 s50, s50, 6")
    order = list(range(0, 4)) + list(range(16, 20)) + list(range(4, 8)) + list(range(20, 24)) + list(range(8, 12)) + list(range(24, 28)) + list(range(12, 16)) + list(range(28, 32))
    for m in order:
        a(f"s_add_u32 m0, s{s_stg}, {m*1024}")
        a(f"s_add_u32 s49, s50, {m*16*2752}")
        a(f"buffer_load_dwordx4 v{vo}, s[56:59], s49 offen lds")

def unitW_main(g, V, acc, s_stg):
    a = g.a
    m = V.mark()
    NR = 8
    fr = V.get(4*NR); ad = V.get(); t = V.get()
    a(f"v_and_b32 v{t}, 15, v{V_LANE}")
    a(f"v_lshrrev_b32 v{ad}, 2, v{t}")
    a(f"v_lshl_add_u32 v{ad}, v{V_HH}, 3, v{ad}")
    a(f"v_lshlrev_b32 v{ad}, 6, v{ad}")
    a(f"v_and_b32 v{t}, 3, v{t}")
    a(f"v_lshl_add_u32 v{ad}, v{t}, 3, v{ad}")
    a(f"v_lshrrev_b32 v{t}, 4, v{V_LANE}")
    a(f"v_and_b32 v{t}, 1, v{t}")
    a(f"v_lshl_add_u32 v{ad}, v{t}, 5, v{ad}")
    a(f"v_add_u32 v{ad}, s{s_stg}, v{ad}")
    for q in range(4):
        a(f"s_waitcnt vmcnt({24 - 8*q})")
        seq = [(ks, hf) for ks in range(4*q, 4*q+4) for hf in range(2)]
        for i, (ks, hf) in enumerate(seq):
            for rd in range(2):
                a(f"ds_read_b64_tr_b16 {vr(fr + i*4 + 2*rd, 2)}, v{ad} offset:{(ks + 16*hf)*1024 + rd*256}")
        for i, (ks, hf) in enumerate(seq):
            a(f"s_waitcnt lgkmcnt({2*(7-i)})")
            for u in range(2):
                d = acc + (hf*2 + u)*16
                c = "0" if ks == 0 else vr(d, 16)
                a(f"{M32} {vr(d,16)}, {vr(aF(u,ks),4,'a')}, {vr(fr + i*4, 4)}, {c}")
    V.release(m)

def unitW_epi(g, V, acc, sNT, sSG):
    a = g.a
    s0 = V.get(); s1 = V.get(); t = V.get()
    for u in range(2):
        for r in range(16):
            hi = acc + 32 + u*16 + r
            if (r >> 1) & 1: a(f"v_sub_f32 v{acc+u*16+r}, v{acc+u*16+r}, v{hi}")
            else: a(f"v_add_f32 v{acc+u*16+r}, v{acc+u*16+r}, v{hi}")
    a(f"v_mov_b32 v{s0}, {fhex(1/16)}")
    a(f"v_mov_b32 v{s1}, {fhex(1/16)}")
    a(f"v_cmp_eq_u32 vcc, 0, v{V_HH}")
    a(f"s_cmp_eq_u32 s{sSG}, 0")
    a(f"s_cselect_b64 s[26:27], vcc, 0")
    a(f"v_mov_b32 v{t}, 0")
    a(f"v_cndmask_b32 v{s0}, v{s0}, v{t}, s[26:27]")
    a(f"v_mov_b32 v{t}, {fhex(1/16/math.sqrt(2))}")
    a(f"v_cndmask_b32 v{s1}, v{s1}, v{t}, s[26:27]")
    a(f"v_mul_f32 v{acc}, v{acc}, v{s0}")
    a(f"v_mul_f32 v{acc+1}, v{acc+1}, v{s1}")
    for r in range(2, 32): a(f"v_mul_f32 v{acc+r}, {fhex(1/16)}, v{acc+r}")
    pk = acc + 32
    for j in range(16): a(f"v_cvt_pk_bf16_f32 v{pk+j}, v{acc+2*j}, v{acc+2*j+1}")
    srd(a, 8, P_WS, WGU, WGU_SZ)
    a(f"v_lshlrev_b32 v{t}, 4, v{V_LANE}")
    a(f"s_lshl_b32 s24, s{sNT}, 15")
    a(f"s_lshl_b32 s25, s{sSG}, 12")
    a(f"s_add_u32 s24, s24, s25")
    for n in range(4):
        a(f"buffer_store_dwordx4 {vr(pk+4*n,4)}, v{t}, s[8:11], s24 offen offset:{n*1024}{g.st}")

def arrive_wave(g, b, vt, younger=0):
    a = g.a
    a(f"s_waitcnt vmcnt({younger})")
    srd(a, 4, P_WS, SYNC, SYNC_SZ)
    a(f"v_lshlrev_b32 v{vt}, 3, v{V_LANE}")
    a(f"v_add_u32 v{vt}, s{S_X}, v{vt}")
    a(f"v_lshlrev_b32 v{vt}, 7, v{vt}")
    a(f"v_mov_b32 v{vt+1}, 1")
    a(f"s_mov_b64 exec, 0xffff")
    for bb in (b if isinstance(b, (list, tuple)) else [b]):
        a(f"buffer_atomic_add v{vt+1}, v{vt}, s[4:7], 0 offen offset:{4*bb} sc1")
    a(f"s_mov_b64 exec, -1")

def dbg_ready(g, vd, vt):
    a = g.a
    Lok = g.lab("dbgok")
    a(f"v_readfirstlane_b32 s24, v{vd}")
    a(f"s_cmp_ge_u32 s24, {NINIT}")
    a(f"s_cbranch_scc1 {Lok}")
    srd(a, 4, P_DBG, 0, 256)
    a(f"v_mov_b32 v{vt}, 0")
    poll(g, 4, vt, vt + 1, 1, NINIT)
    a.label(Lok)

def job4w_issue(g, V, q):
    a = g.a
    wt = V.get(8); wti = V.get(8)
    for n in range(8):
        td, r = n >> 2, n & 3
        a(f"s_add_u32 s49, s50, {514*64*(16*td + r + 4*q)}")
        a(f"buffer_load_ushort v{wt+n}, v{g.j4vo}, s[52:55], s49 offen")
        a(f"buffer_load_ushort v{wti+n}, v{g.j4vo}, s[56:59], s49 offen")
    return wt, wti


def touch_rows(g, ptr, s_rowbase, row_shift, sSG, dst):
    a = g.a
    a(f"v_lshrrev_b32 v4, 3, v{V_L31}")
    a(f"s_lshl_b32 s24, s{sSG}, 2")
    a(f"v_add_u32 v4, s24, v4")
    a(f"v_lshlrev_b32 v4, {row_shift}, v4")
    a(f"v_and_b32 v5, 7, v{V_LANE}")
    a(f"v_lshl_add_u32 v4, v5, 7, v4")
    a(f"v_add_u32 v4, s{s_rowbase}, v4")
    a(f"global_load_dword v{dst}, v4, s[{ptr}:{ptr+1}]")

def touch_cols(g, sNT, sSG, dst):
    a = g.a
    a(f"s_and_b32 s24, s{sNT}, 1")
    a(f"s_cmp_eq_u32 s24, 0")
    a(f"s_cselect_b32 s28, s{P_WG}, s{P_WU}")
    a(f"s_cselect_b32 s29, s{P_WG+1}, s{P_WU+1}")
    a(f"s_lshl_b32 s24, s{sSG}, 6")
    a(f"v_add_u32 v4, s24, v{V_LANE}")
    a(f"v_mul_u32_u24 v4, 2752, v4")
    a(f"s_lshr_b32 s24, s{sNT}, 1")
    a(f"s_lshl_b32 s24, s24, 6")
    a(f"v_add_u32 v4, s24, v4")
    a(f"global_load_dword v{dst}, v4, s[28:29]")

P1_FLAG = 156160
def lds_flag_wait(g, vt):
    a = g.a
    L = g.lab("lfw"); Ld = g.lab("lfwd")
    a(f"v_mov_b32 v{vt}, {P1_FLAG}")
    a(f"s_mov_b32 s31, 0")
    a.label(L)
    a(f"ds_read_b32 v{vt+1}, v{vt}")
    a(f"s_add_u32 s31, s31, 1")
    a("s_waitcnt lgkmcnt(0)")
    a(f"v_readfirstlane_b32 s24, v{vt+1}")
    a(f"s_cmp_eq_u32 s24, 1")
    a(f"s_cbranch_scc1 {Ld}")
    a(f"s_cmp_lt_u32 s31, {1 << 24}")
    a(f"s_cbranch_scc1 {L}")
    a.label(Ld)

def p1_v2(g, V, VT, stampf, fft_items=None):
    a = g.a
    sRT, sSG, sU1, sU2, sB, sSTG, sEX = 44, 45, 46, 62, 47, 48, 91
    fs = (lambda n: stampf(n)) if getattr(g, 'finew', False) else (lambda n: None)
    a(f"s_lshr_b32 s24, s{S_L}, 3")
    a(f"s_lshl_b32 s{sRT}, s{S_X}, 2")
    a(f"s_add_u32 s{sRT}, s{sRT}, s24")
    a(f"s_and_b32 s{sSG}, s{S_L}, 7")
    acc = V.get(64); VD = V.get(); VZ = V.get(); TD = V.get(2); XVO = V.get()
    g.j4vo = V.get(); kcol = V.get()
    mw = V.mark()
    LW = g.lab("roleW"); LJ = g.lab("rolej")
    a(f"v_mov_b32 v{VZ}, {P1_FLAG}")
    a(f"v_mov_b32 v{VD}, 0")
    a(f"ds_write_b32 v{VZ}, v{VD}")
    a(f"s_lshl_b32 s{sU2}, s{sRT}, 1")
    a(f"s_add_u32 s{sU2}, s{sU2}, s{S_W}")
    a(f"s_cmp_ge_u32 s{S_W}, 2")
    a(f"s_cbranch_scc1 {LW}")
    a(f"s_lshl_b32 s{sB}, s{sRT}, 10")
    a(f"s_lshl_b32 s24, s{S_W}, 20")
    a(f"s_add_u32 s{sB}, s{sB}, s24")
    touch_rows(g, P_X, sB, 15, sSG, TD)
    rows_issue(g, V, P_X, 2048*512*2, sB, 15, part=0, vo=XVO)
    if fft_items: a.items.extend(fft_items)
    a(f"s_branch {LJ}")
    a.label(LW)
    a(f"s_lshr_b32 s24, s{sRT}, 1")
    a(f"s_lshl_b32 s24, s24, 1")
    a(f"s_add_u32 s24, s24, s{S_W}")
    a(f"s_sub_u32 s24, s24, 2")
    a(f"s_lshl_b32 s24, s24, 1")
    a(f"s_and_b32 s25, s{sRT}, 1")
    a(f"s_add_u32 s{sU1}, s24, s25")
    touch_cols(g, sU1, sSG, TD)
    a(f"s_sub_u32 s{sB}, s{sU2}, 2")
    Lt = g.lab("t2d"); Lt2 = g.lab("t2e")
    a(f"s_cmp_ge_u32 s{sB}, 22"); a(f"s_cbranch_scc1 {Lt}")
    a(f"s_add_u32 s{sSTG}, s{sB}, 64")
    touch_cols(g, sSTG, sSG, TD + 1)
    a(f"s_branch {Lt2}")
    a.label(Lt)
    a(f"s_sub_u32 s25, s{sB}, 22")
    a(f"s_lshl_b32 s25, s25, 15")
    touch_rows(g, P_WD, 25, 10, sSG, TD + 1)
    a.label(Lt2)
    p1_genF(g, V, sSG)
    a.label(LJ)
    stampf("p1i")
    a("s_waitcnt lgkmcnt(0)")
    a("s_barrier")
    p1_readF(g, V)
    a("s_barrier")
    stampf("p1F")
    Lnd = g.lab("nodbg")
    a(f"s_cmp_lg_u32 s{S_W}, 0"); a(f"s_cbranch_scc1 {Lnd}")
    dbg_load(g, VD, VZ)
    a.label(Lnd)
    LW2 = g.lab("roleW2"); LJ2 = g.lab("rolej2")
    a(f"s_cmp_ge_u32 s{S_W}, 2")
    a(f"s_cbranch_scc1 {LW2}")
    mx = V.mark()
    V.release(mw)
    a(f"s_lshl_b32 s{sB}, s{sRT}, 10")
    a(f"s_lshl_b32 s24, s{S_W}, 20")
    a(f"s_add_u32 s{sB}, s{sB}, s24")
    rows_issue(g, V, P_X, 2048*512*2, sB, 15, part=1, vo=XVO)
    m = V.mark()
    unit_rows_main(g, V, acc)
    Lnd = g.lab("nodbg2")
    a(f"s_cmp_lg_u32 s{S_W}, 0"); a(f"s_cbranch_scc1 {Lnd}")
    dbg_ready(g, VD, VT)
    a(f"v_mov_b32 v{VZ}, {P1_FLAG}")
    a(f"v_mov_b32 v{VD}, 1")
    a(f"ds_write_b32 v{VZ}, v{VD}")
    a.label(Lnd)
    stampf("p1Xm")
    unitX_epi(g, V, acc, sRT, sSG)
    V.release(m)
    lds_flag_wait(g, VT)
    LD = g.lab("r2D"); LE = g.lab("r2E")
    a(f"s_cmp_ge_u32 s{sU2}, 22"); a(f"s_cbranch_scc1 {LD}")
    a(f"s_add_u32 s{sU1}, s{sU2}, 64")
    a(f"s_mul_i32 s{sSTG}, s{S_W}, 98304")
    it_, _ = capture(g, lambda: unitW_issue(g, V, sU1, sSTG)); gr = split_groups(it_, is_vmem)
    for grp in gr[:12]: a.items.extend(grp)
    arrive_wave(g, 0, VT, younger=12)
    for grp in gr[12:]: a.items.extend(grp)
    unitW_main(g, V, acc, sSTG)
    unitW_epi(g, V, acc, sU1, sSG)
    V.release(m)
    a(f"s_branch {LE}")
    a.label(LD)
    a(f"s_sub_u32 s{sU1}, s{sU2}, 22")
    a(f"s_lshl_b32 s{sB}, s{sU1}, 15")
    it_, _ = capture(g, lambda: rows_issue(g, V, P_WD, 1376*512*2, sB, 10)); gr = split_groups(it_, is_vmem)
    for grp in gr[:12]: a.items.extend(grp)
    arrive_wave(g, 0, VT, younger=12)
    stampf("p1X")
    for grp in gr[12:]: a.items.extend(grp)
    unit_rows_main(g, V, acc)
    fs("d_mm")
    unitD_epi(g, V, acc, sU1, sSG)
    V.release(m)
    a.label(LE)
    a(f"s_branch {LJ2}")
    a.label(LW2)
    V.n = mx
    a(f"s_mov_b32 s{sEX}, 0")
    LX0 = g.lab("r2x0")
    a(f"s_cmp_lg_u32 s{sRT}, 0"); a(f"s_cbranch_scc1 {LX0}")
    a(f"s_cmp_lg_u32 s{S_W}, 2"); a(f"s_cbranch_scc1 {LX0}")
    a(f"s_mov_b32 s{sEX}, 1")
    a(f"s_mov_b32 s{sB}, {42 << 15}")
    mm_ = V.mark()
    rows_issue(g, V, P_WD, 1376*512*2, sB, 10)
    V.release(mm_)
    a.label(LX0)
    srd(a, 52, P_WR, 0, 2048 * 257 * 2)
    srd(a, 56, P_WI, 0, 2048 * 257 * 2)
    a(f"s_and_b32 s49, s2, 3")
    a(f"s_lshl_b32 s49, s49, 6")
    a(f"s_sub_u32 s51, s{S_W}, 2")
    a(f"s_lshl_b32 s51, s51, 5")
    a(f"s_add_u32 s49, s49, s51")
    a(f"v_add_u32 v{kcol}, s49, v{V_L31}")
    a(f"v_cmp_eq_u32 vcc, 0, v{kcol}")
    a(f"v_mov_b32 v{g.j4vo}, 256")
    a(f"v_cndmask_b32 v{g.j4vo}, v{kcol}, v{g.j4vo}, vcc")
    a(f"v_lshlrev_b32 v{g.j4vo}, 1, v{g.j4vo}")
    a(f"v_mul_u32_u24 v{kcol}, {514*64*8}, v{V_HH}")
    a(f"v_add_u32 v{g.j4vo}, v{g.j4vo}, v{kcol}")
    a(f"s_lshr_b32 s50, s2, 2")
    a(f"s_mul_i32 s50, s50, 514")
    wq = [job4w_issue(g, V, 0), job4w_issue(g, V, 1)]
    a(f"s_sub_u32 s24, s{S_W}, 1")
    a(f"s_lshl_b32 s{sSTG}, s24, 15")
    itd, _ = capture(g, lambda: unitW_issue(g, V, sU1, sSTG))
    gd = split_groups(itd, is_vmem)
    for grp in gd[:16]: a.items.extend(grp)
    m = V.mark()
    a("s_waitcnt vmcnt(16)")
    wad = V.get(); rad = V.get(); vo = V.get(); ob = V.get(16)
    a(f"s_mul_i32 s25, s{S_W}, 6144")
    a(f"s_add_u32 s25, s25, {P1_OT}")
    a(f"v_mul_u32_u24 v{wad}, 144, v{V_L31}")
    a(f"v_lshl_add_u32 v{wad}, v{V_HH}, 6, v{wad}")
    a(f"v_add_u32 v{wad}, s25, v{wad}")
    for qq in range(2):
        wt, wti = wq[qq]
        for n in range(8): a(f"v_lshl_or_b32 v{wt+n}, v{wti+n}, 16, v{wt+n}")
        a(f"ds_write_b128 v{wad}, {vr(wt,4)} offset:{qq*32}")
        a(f"ds_write_b128 v{wad}, {vr(wt+4,4)} offset:{qq*32+16}")
    a(f"v_lshrrev_b32 v{vo}, 3, v{V_LANE}")
    a(f"v_mul_u32_u24 v{rad}, 144, v{vo}")
    a(f"v_lshlrev_b32 v{vo}, 13, v{vo}")
    a(f"v_and_b32 v{wad}, 7, v{V_LANE}")
    a(f"v_lshlrev_b32 v{wad}, 4, v{wad}")
    a(f"v_add_u32 v{rad}, v{rad}, v{wad}")
    a(f"v_add_u32 v{rad}, s25, v{rad}")
    a(f"v_add_u32 v{vo}, v{vo}, v{wad}")
    a("s_waitcnt lgkmcnt(0)")
    for n in range(4): a(f"ds_read_b128 {vr(ob+4*n,4)}, v{rad} offset:{n*8*144}")
    srd(a, 12, P_WS, WT, WT_SZ)
    a(f"s_lshr_b32 s24, s2, 2")
    a(f"s_lshl_b32 s24, s24, 7")
    a(f"s_and_b32 s26, s2, 3")
    a(f"s_lshl_b32 s26, s26, 6")
    a(f"s_sub_u32 s27, s{S_W}, 2")
    a(f"s_lshl_b32 s27, s27, 5")
    a(f"s_add_u32 s26, s26, s27")
    a(f"s_lshl_b32 s26, s26, 13")
    a(f"s_add_u32 s24, s24, s26")
    for n in range(4):
        a(f"s_waitcnt lgkmcnt({3-n})")
        a(f"s_add_u32 s26, s24, {n*8*8192}")
        a(f"buffer_store_dwordx4 {vr(ob+4*n,4)}, v{vo}, s[12:15], s26 offen{g.st}")
    fs("w_wt")
    for grp in gd[16:]: a.items.extend(grp)
    lds_flag_wait(g, VT)
    arrive_wave(g, 0, VT, younger=16)
    fs("w_arr")
    V.release(mw)
    m = V.mark()
    it_, _ = capture(g, lambda: unitW_main(g, V, acc, sSTG)); bump_vm(it_, 1)
    a.items.extend(it_)
    fs("w_mm")
    unitW_epi(g, V, acc, sU1, sSG)
    V.release(m)
    LX = g.lab("r2x")
    a(f"s_cmp_eq_u32 s{sEX}, 0"); a(f"s_cbranch_scc1 {LX}")
    a(f"s_mov_b32 s{sU1}, 42")
    a("s_waitcnt vmcnt(0)")
    unit_rows_main(g, V, acc)
    unitD_epi(g, V, acc, sU1, sSG)
    V.release(m)
    a.label(LX)
    if fft_items: a.items.extend(fft_items)
    a.label(LJ2)
    arrive_wave(g, 1, VT)
    stampf("jobs")
    a("s_barrier")


def h_poison(g, V):
    a = g.a
    m = V.mark()
    p = V.get(4); l16 = V.get()
    for j in range(4): a(f"v_mov_b32 v{p+j}, -1")
    a(f"v_lshlrev_b32 v{l16}, 4, v{V_LANE}")
    a(f"s_mul_i32 s24, s{S_RT}, {3*86*1024}")
    a(f"s_lshl_b32 s25, s{S_KK}, 11")
    a(f"s_add_u32 s24, s24, s25")
    a(f"s_cmp_ge_u32 s{S_KK}, 43")
    a(f"s_cselect_b32 s25, 0x7f000000, 0")
    a(f"s_add_u32 s24, s24, s25")
    for i in range(2):
        srd(a, 12, P_WS, H[i], H_SZ)
        for t in range(3):
            a(f"s_add_u32 s25, s24, {t*86*1024}")
            for f in range(2):
                a(f"buffer_store_dwordx4 {vr(p,4)}, v{l16}, s[12:15], s25 offen offset:{f*1024}{g.st}")
    V.release(m)


def x2_poison(g, V):
    a = g.a
    m = V.mark()
    p = V.get(4); vo = V.get()
    for j in range(4): a(f"v_mov_b32 v{p+j}, -1")
    srd(a, 12, P_WS, XP[2], XP_SZ)
    a(f"v_lshlrev_b32 v{vo}, 4, v0")
    a(f"s_lshl_b32 s24, s{S_SG}, 12")
    a(f"s_lshl_b32 s25, s{S_R64}, 16")
    a(f"s_add_u32 s24, s24, s25")
    a(f"buffer_store_dwordx4 {vr(p,4)}, v{vo}, s[12:15], s24 offen{g.st}")
    a(f"s_add_u32 s24, s24, 32768")
    a(f"buffer_store_dwordx4 {vr(p,4)}, v{vo}, s[12:15], s24 offen{g.st}")
    srd(a, 12, P_WS, SS[1], SS_SZ)
    a(f"s_lshl_b32 s24, s{S_SG}, 13")
    a(f"s_lshl_b32 s25, s{S_R64}, 8")
    a(f"s_add_u32 s24, s24, s25")
    a(f"v_cmp_gt_u32 vcc, 16, v0")
    a(f"s_and_saveexec_b64 s[26:27], vcc")
    Ls = g.lab("ssp")
    a(f"s_cbranch_execz {Ls}")
    a(f"buffer_store_dwordx4 {vr(p,4)}, v{vo}, s[12:15], s24 offen{g.st}")
    a.label(Ls)
    a(f"s_mov_b64 exec, s[26:27]")
    V.release(m)


def wait2(g, b1, t1, b2, t2, vt):
    a = g.a
    L = g.lab("wt2")
    a(f"s_cmp_lg_u32 s{S_W}, 0")
    a(f"s_cbranch_scc1 {L}")
    srd(a, 4, P_WS, SYNC, SYNC_SZ)
    a(f"s_and_b32 s24, s{S_L}, 15")
    a(f"s_lshl_b32 s24, s24, 3")
    a(f"v_and_b32 v{vt}, 7, v{V_LANE}")
    a(f"v_add_u32 v{vt}, s24, v{vt}")
    a(f"v_lshlrev_b32 v{vt}, 7, v{vt}")
    a(f"v_cmp_gt_u32 vcc, 8, v{V_LANE}")
    a(f"v_mov_b32 v{vt-1}, {4*b2}")
    a(f"v_mov_b32 v{vt+1}, {4*b1}")
    a(f"v_cndmask_b32 v{vt-1}, v{vt-1}, v{vt+1}, vcc")
    a(f"v_add_u32 v{vt}, v{vt}, v{vt-1}")
    a(f"v_mov_b32 v{vt-1}, {t2}")
    a(f"v_mov_b32 v{vt+1}, {t1}")
    a(f"v_cndmask_b32 v{vt-1}, v{vt-1}, v{vt+1}, vcc")
    Lp = g.lab("poll"); Ld = g.lab("polld")
    a(f"s_mov_b64 exec, 0xffff")
    a(f"s_mov_b32 s31, 0")
    a.label(Lp)
    a(f"buffer_load_dword v{vt+1}, v{vt}, s[4:7], 0 offen sc0 sc1")
    a(f"s_add_u32 s31, s31, 1")
    a("s_waitcnt vmcnt(0)")
    a(f"v_cmp_le_u32 vcc, v{vt-1}, v{vt+1}")
    a(f"s_cmp_eq_u64 vcc, exec")
    a(f"s_cbranch_scc1 {Ld}")
    a(f"s_cmp_lt_u32 s31, {SPIN_MAX}")
    a(f"s_cbranch_scc1 {Lp}")
    a.label(Ld)
    a("s_mov_b64 exec, -1")
    a.label(L)
    a("s_barrier")
```
